```python
import torch

def _softmax(x, axis=-1):
    return torch.softmax(x, dim=axis)
def _gelu(x):
    return torch.nn.functional.gelu(x, approximate="tanh")
def _silu(x):
    return torch.nn.functional.silu(x)
def _sigmoid(x):
    return torch.sigmoid(x)
def _layernorm(x, axis=-1, eps=1e-5):
    m = x.mean(dim=axis, keepdim=True)
    v = x.var(dim=axis, keepdim=True, unbiased=False)
    return (x - m) / torch.sqrt(v + eps)
def _scatter_add(tgt, idx, src, axis=0):
    return tgt.clone().index_add_(axis, idx, src)
def _segment_sum(src, seg, n):
    out = torch.zeros((n,) + src.shape[1:], dtype=src.dtype)
    return out.index_add_(0, seg, src)
def _pad(x, pw):
    flat = tuple(v for pair in reversed(pw) for v in pair)
    return torch.nn.functional.pad(x, flat)

kernel_name = 'concat_heads__mha_block_cached__gqa_block_cached__near_ridge'

def setup_inputs():

    _w = (lambda a: (lambda t: t.to(torch.bfloat16) if t.is_floating_point() else t)(torch.as_tensor(a)))
    def _A_setup():
        B, Sq, D = 16, 96, 512
        H, Sk, Dh = 32, 512, 128
        return {
            "x": _w((lambda *s: torch.randn(*s, dtype=torch.bfloat16) * 0.8)(B, Sq, D)),
            "k_cache": _w((lambda *s: torch.randn(*s, dtype=torch.bfloat16) * 0.8)(B, H, Sk, Dh)),
            "v_cache": _w((lambda *s: torch.randn(*s, dtype=torch.bfloat16) * 0.05)(B, H, Sk, Dh)),
            "wq": _w((lambda *s: torch.randn(*s, dtype=torch.bfloat16) * 0.8)(D, H * Dh) * (D ** -0.5)),
            "wo": _w((lambda *s: torch.randn(*s, dtype=torch.bfloat16) * 0.05)(H * Dh, D) * ((H * Dh) ** -0.5)),
        }
    _A_in = _A_setup()

    def _B_setup():
        B, Sq, D = 16, 96, 512
        Hq, Hkv, Sk, Dh = 32, 32, 512, 128
        assert Hq % Hkv == 0, (Hq, Hkv)
        return {
            "x": _w((lambda *s: torch.randn(*s, dtype=torch.bfloat16) * 0.8)(B, Sq, D)),
            "k_cache": _w((lambda *s: torch.randn(*s, dtype=torch.bfloat16) * 0.8)(B, Hkv, Sk, Dh)),
            "v_cache": _w((lambda *s: torch.randn(*s, dtype=torch.bfloat16) * 0.05)(B, Hkv, Sk, Dh)),
            "wq": _w((lambda *s: torch.randn(*s, dtype=torch.bfloat16) * 0.8)(D, Hq * Dh) * (D ** -0.5)),
            "wo": _w((lambda *s: torch.randn(*s, dtype=torch.bfloat16) * 0.05)(Hq * Dh, D) * ((Hq * Dh) ** -0.5)),
        }
    _B_in = _B_setup()

    return {
        "A_x": _A_in["x"],
        "A_k_cache": _A_in["k_cache"],
        "A_v_cache": _A_in["v_cache"],
        "A_wq": _A_in["wq"],
        "A_wo": _A_in["wo"],
        "B_x": _B_in["x"],
        "B_k_cache": _B_in["k_cache"],
        "B_v_cache": _B_in["v_cache"],
        "B_wq": _B_in["wq"],
        "B_wo": _B_in["wo"],
    }

def reference(A_x, A_k_cache, A_v_cache, A_wq, A_wo, B_x, B_k_cache, B_v_cache, B_wq, B_wo):
    def _A_ref(x, k_cache, v_cache, wq, wo):
        B, Sq, D = x.shape
        H, Dh = 32, 128
        q = (lambda x, *d: x.permute(*d))((x @ wq).reshape(B, Sq, H, Dh), 0, 2, 1, 3)
        scores = torch.einsum("bhqd,bhkd->bhqk", q, k_cache) * (Dh ** -0.5)
        p = _softmax(scores, axis=-1)
        o = torch.einsum("bhqk,bhkd->bhqd", p, v_cache)
        return (lambda x, *d: x.permute(*d))(o, 0, 2, 1, 3).reshape(B, Sq, H * Dh) @ wo

    def _B_ref(x, k_cache, v_cache, wq, wo):
        B, Sq, D = x.shape
        Hq, Dh = 32, 128
        Hkv = k_cache.shape[1]
        rep = Hq // Hkv
        q = (lambda x, *d: x.permute(*d))((x @ wq).reshape(B, Sq, Hq, Dh), 0, 2, 1, 3)
        k = (lambda x, n, axis: torch.repeat_interleave(x, n, dim=axis))(k_cache, rep, axis=1)
        v = (lambda x, n, axis: torch.repeat_interleave(x, n, dim=axis))(v_cache, rep, axis=1)
        scores = torch.einsum("bhqd,bhkd->bhqk", q, k) * (Dh ** -0.5)
        p = _softmax(scores, axis=-1)
        o = torch.einsum("bhqk,bhkd->bhqd", p, v)
        return (lambda x, *d: x.permute(*d))(o, 0, 2, 1, 3).reshape(B, Sq, Hq * Dh) @ wo

    a = _A_ref(A_x, A_k_cache, A_v_cache, A_wq, A_wo)
    b = _B_ref(B_x, B_k_cache, B_v_cache, B_wq, B_wo)
    return torch.concatenate([a, b], axis=-1)
```

```python
import re

class Asm:
    def __init__(self):
        self.lines = []
    def I(self, s):
        self.lines.append("  " + s)
    def L(self, name):
        self.lines.append(name + ":")
    def C(self, s):
        self.lines.append("  ; " + s)
    def raw(self, s):
        self.lines.append(s)
    def text(self):
        return "\n".join(self.lines) + "\n"

def vr(base, n=1):
    return f"v{base}" if n == 1 else f"v[{base}:{base+n-1}]"
def sr(base, n=1):
    return f"s{base}" if n == 1 else f"s[{base}:{base+n-1}]"

_reg_re = re.compile(r"^(-?)(\|?)([vsa])(?:(\d+)|\[(\d+):(\d+)\])\|?$")
def parse_reg(tok):
    tok = tok.strip()
    if tok in ("vcc",): return ("s", 106, 2)
    if tok in ("exec",): return ("s", 126, 2)
    if tok == "m0": return ("s", 124, 1)
    if tok == "vcc_lo": return ("s",106,1)
    m = _reg_re.match(tok)
    if not m: return None
    f = m.group(3)
    if m.group(4) is not None:
        return (f, int(m.group(4)), 1)
    lo, hi = int(m.group(5)), int(m.group(6))
    return (f, lo, hi - lo + 1)

def regset(r):
    if r is None: return set()
    return {(r[0], r[1] + i) for i in range(r[2])}

TRANS = ("v_exp_f32", "v_log_f32", "v_rcp_f32", "v_rsq_f32", "v_sqrt_f32", "v_sin_f32", "v_cos_f32")

class Ins:
    __slots__ = ("op", "ops", "text", "kind", "w", "r", "states", "srcC", "lineno", "mods")
    pass

def decode(text, lineno):
    t = text.split(";")[0].strip()
    if not t or t.endswith(":") or t.startswith("."):
        return None
    parts = t.split(None, 1)
    op = parts[0]
    rest = parts[1] if len(parts) > 1 else ""
    ops = [o.strip() for o in re.split(r",\s*(?![^\[]*\])", rest)] if rest else []
    mods = []
    if ops:
        sp = ops[-1].split()
        ops[-1] = sp[0]
        mods = sp[1:]
    ins = Ins(); ins.op = op; ins.text = t; ins.lineno = lineno; ins.mods = mods; ins.ops = ops
    ins.w = set(); ins.r = set(); ins.states = 1; ins.srcC = set()
    regs = [parse_reg(o) for o in ops]
    base = op.replace("_e32", "").replace("_e64", "")
    if op.startswith("v_mfma"):
        ins.kind = "mfma"
        ins.w = regset(regs[0]); ins.r = regset(regs[1]) | regset(regs[2]) | regset(regs[3]); ins.srcC = regset(regs[3])
    elif op.startswith("v_cmp"):
        ins.kind = "valu"
        ins.w = regset(regs[0]);
        for x in regs[1:]: ins.r |= regset(x)
    elif op.startswith("v_readfirstlane") or op.startswith("v_readlane"):
        ins.kind = "valu_rl"
        ins.w = regset(regs[0])
        for x in regs[1:]: ins.r |= regset(x)
    elif op.startswith("v_permlane32_swap") or op.startswith("v_permlane16_swap"):
        ins.kind = "permlane"
        ins.w = regset(regs[0]) | regset(regs[1]); ins.r = set(ins.w)
    elif op.startswith("v_"):
        ins.kind = "trans" if base in TRANS else "valu"
        ins.w = regset(regs[0])
        start = 1
        if base in ("v_add_co_u32", "v_addc_co_u32", "v_sub_co_u32"):
            ins.w |= regset(regs[1]); start = 2
        for x in regs[start:]: ins.r |= regset(x)
        if base in ("v_fmac_f32", "v_pk_fmac_f32"): ins.r |= regset(regs[0])
        if base == "v_cndmask_b32" and len(ops) == 3: ins.r |= regset(("s",106,2))
    elif op.startswith("ds_read") or op.startswith("ds_bpermute") or op.startswith("ds_swizzle"):
        ins.kind = "ds_read"
        ins.w = regset(regs[0])
        for x in regs[1:]: ins.r |= regset(x)
    elif op.startswith("ds_write"):
        ins.kind = "ds_write"
        for x in regs: ins.r |= regset(x)
    elif op.startswith("buffer_load") or op.startswith("global_load"):
        ins.kind = "vmem_load"
        if "lds" in mods or "_lds_" in op:
            for x in regs: ins.r |= regset(x)
            ins.r |= regset(("s",124,1)); ins.kind = "vmem_lds"
        else:
            ins.w = regset(regs[0])
            for x in regs[1:]: ins.r |= regset(x)
    elif op.startswith("buffer_store") or op.startswith("global_store"):
        ins.kind = "vmem_store"
        for x in regs: ins.r |= regset(x)
    elif op.startswith("buffer_atomic") or op.startswith("global_atomic"):
        ins.kind = "vmem_store"
        for x in regs: ins.r |= regset(x)
        if "sc0" in mods: ins.w = regset(regs[0])
    elif op == "s_nop":
        ins.kind = "nop"; ins.states = int(ops[0], 0) + 1
    elif op.startswith("s_"):
        ins.kind = "salu"
        if op.startswith(("s_cmp", "s_cbranch", "s_branch", "s_waitcnt", "s_barrier", "s_endpgm", "s_sleep", "s_setprio", "s_bitcmp")):
            for x in regs: ins.r |= regset(x)
        elif op.startswith(("buffer_",)):
            pass
        else:
            if regs: ins.w = regset(regs[0])
            for x in regs[1:]: ins.r |= regset(x)
            if op.startswith("s_and_saveexec") or op.startswith("s_or_saveexec"):
                ins.w |= regset(("s",126,2))
    else:
        ins.kind = "other"
    return ins

def mfma_passes(op):
    if "32x32x16" in op: return 8
    if "16x16x32" in op: return 4
    raise ValueError(op)

def check_seq(seq, out, tag=""):
    n = len(seq)
    LOOK = 24
    for i, c in enumerate(seq):
        dist = 0
        for j in range(i - 1, max(-1, i - LOOK - 1), -1):
            p = seq[j]
            need = 0; why = ""
            vw = {x for x in p.w if x[0] in "va"}
            sw = {x for x in p.w if x[0] == "s"}
            cv_r = {x for x in c.r if x[0] in "va"}
            cv_w = {x for x in c.w if x[0] in "va"}
            if p.kind in ("valu", "trans", "permlane", "valu_rl"):
                if c.kind == "mfma" and (vw & cv_r):
                    need, why = max(need, 2), "VALU write -> MFMA read"
                if c.kind == "permlane" and (vw & cv_r):
                    need, why = max(need, 2), "VALU write -> permlane"
                if c.kind == "valu_rl" and (vw & cv_r):
                    need, why = max(need, 1), "VALU write -> readlane"
                if p.kind == "trans" and c.kind in ("valu", "permlane", "valu_rl") and (vw & cv_r):
                    need, why = max(need, 1), "trans -> VALU"
                if p.kind == "trans" and c.kind in ("mfma",) and (vw & cv_r):
                    need, why = max(need, 2), "trans -> mfma"
                if sw:
                    if c.kind in ("valu", "trans") and (sw & c.r):
                        need, why = max(need, 2), "VALU writes SGPR -> VALU const read"
                    if c.kind.startswith("vmem") and (sw & c.r):
                        need, why = max(need, 5), "VALU writes SGPR -> VMEM"
                    if c.kind == "valu_rl" and (sw & c.r):
                        need, why = max(need, 4), "VALU writes SGPR -> lane select"
            if p.kind == "mfma":
                ps = mfma_passes(p.op)
                big = {4: 8, 8: 12}[ps]; ovl = {4: 6, 8: 10}[ps]; war = {4: 3, 8: 7}[ps]
                if c.kind == "mfma":
                    ab = set()
                    regs = [parse_reg(o) for o in c.ops]
                    ab = regset(regs[1]) | regset(regs[2])
                    if p.w & ab: need, why = max(need, big), "MFMA D -> MFMA A/B"
                    if p.w & c.srcC:
                        if not (p.w == c.srcC and mfma_passes(c.op) == ps):
                            need, why = max(need, ovl), "MFMA D -> MFMA C overlap"
                    elif p.w & c.w:
                        need, why = max(need, ovl), "MFMA D -> MFMA D WAW"
                else:
                    if c.kind in ("valu","trans","permlane","valu_rl","ds_write","vmem_store","ds_read","vmem_load","vmem_lds"):
                        if (p.w & cv_r) or (p.w & cv_w):
                            need, why = max(need, big), "MFMA D -> VALU/mem"
                    if c.kind in ("valu","trans","permlane") and (p.srcC & cv_w):
                        need, why = max(need, war), "MFMA srcC WAR"
            if p.kind == "salu" and (("s",124) in p.w) and c.kind == "vmem_lds":
                need, why = max(need, 1), "M0 write -> LDS DMA"
            if p.kind == "vmem_store" and ("x4" in p.op or "x3" in p.op) and c.kind in ("valu","trans","permlane"):
                data = regset(parse_reg(p.ops[0])) if p.op.startswith("buffer") else regset(parse_reg(p.ops[1]))
                if data & cv_w: need, why = max(need, 2), "wide store data WAR"
            if need > dist:
                out.append(f"{tag} line {c.lineno}: '{c.text}' needs {need} states after line {p.lineno} '{p.text}' ({why}); has {dist}")
            dist += p.states
            if dist >= 20: break

def check_file(lines):
    ins = []; labels = {}
    for k, ln in enumerate(lines, 1):
        s = ln.split(";")[0].strip()
        if s.endswith(":") and not s.startswith("."):
            labels[s[:-1]] = len(ins); continue
        d = decode(ln, k)
        if d is not None: ins.append(d)
    out = []
    seq = []
    for d in ins:
        seq.append(d)
        if d.op in ("s_branch", "s_endpgm", "s_setpc_b64"):
            check_seq(seq, out, "lin"); seq = []
    check_seq(seq, out, "lin")
    for idx, d in enumerate(ins):
        if d.op.startswith("s_cbranch") or d.op == "s_branch":
            tgt = labels.get(d.ops[0])
            if tgt is None: continue
            pre = []
            for j in range(idx, max(-1, idx - 30), -1):
                if j != idx and ins[j].op in ("s_branch", "s_endpgm"): break
                pre.append(ins[j])
            pre.reverse()
            post = []
            for j in range(tgt, min(len(ins), tgt + 30)):
                post.append(ins[j])
                if ins[j].op in ("s_branch", "s_endpgm"): break
            o2 = []
            check_seq(pre + post, o2, "br")
            out += o2
    return sorted(set(out))
```

```python
import struct, math, sys
from asmlib import Asm, vr, sr, check_file

NAME = "concat_heads__mha_block_cached__gqa_block_cached__near_ridge"
K1 = "attn_kernel"
K2 = "reduce_kernel"

def f2u(x): return struct.unpack("<I", struct.pack("<f", x))[0]
CSCALE = math.log2(math.e) / math.sqrt(128.0)

KR = 0; VR = 32768; WR = 65536; QH = 98304; XS = 98304
OS = [122880, 98304, 65536, 0]
STAGE = [24576, 32768, 40960, 49152, 57344, 90112, 147456, 155648]
LDS_BYTES = 163840
PART_BYTES = 32 * 64 * 12288

class Cfg:
    kv_pol = " nt"
    wq_pol = ""
    x_pol = ""
    wo_pol = ""
    part_st_pol = ""
    part_ld_pol = ""
    thresh = 8.0
    debug_dump = False
    prio_a = 0

cfg = Cfg()

S_WAVE = 20; S_XCD = 21; S_SLOT = 22; S_P = 23; S_B = 24; S_HQ = 25; S_HB = 26; S_RHO = 27; S_MJ = 28
P_X = 8; P_K = 10; P_V = 12; P_WQ = 14; P_WO = 16; P_WS = 18

def srd(a, dst, ptr, size):
    a.I(f"s_mov_b32 s{dst}, s{ptr}")
    a.I(f"s_and_b32 s{dst+1}, s{ptr+1}, 0xffff")
    a.I(f"s_mov_b32 s{dst+2}, {hex(size)}")
    a.I(f"s_mov_b32 s{dst+3}, 0x20000")

def setup_common(a):
    a.I("s_cmp_ge_u32 s2, 256")
    a.I("s_cbranch_scc1 L_k1_end")
    a.I(f"s_and_b32 s{S_XCD}, s2, 7")
    a.I(f"s_lshr_b32 s{S_SLOT}, s2, 3")
    a.I(f"s_lshr_b32 s{S_P}, s{S_XCD}, 2")
    a.I(f"s_mul_i32 s3, s{S_P}, 40")
    a.I("s_add_u32 s4, s0, s3")
    a.I("s_addc_u32 s5, s1, 0")
    a.I("s_load_dwordx8 s[8:15], s[4:5], 0")
    a.I(f"s_load_dwordx2 s[{P_WO}:{P_WO+1}], s[4:5], 32")
    a.I(f"s_load_dwordx2 s[{P_WS}:{P_WS+1}], s[0:1], 96")
    a.I("v_lshrrev_b32 v1, 6, v0")
    a.I("v_and_b32 v0, 63, v0")
    a.I(f"v_readfirstlane_b32 s{S_WAVE}, v1")
    a.I(f"s_lshr_b32 s{S_B}, s{S_SLOT}, 1")
    a.I(f"s_and_b32 s{S_HQ}, s{S_SLOT}, 1")
    a.I(f"s_and_b32 s3, s{S_XCD}, 3")
    a.I("s_lshl_b32 s3, s3, 1")
    a.I(f"s_add_u32 s{S_MJ}, s3, s{S_HQ}")
    a.I(f"s_lshl_b32 s{S_HB}, s{S_MJ}, 2")
    a.I(f"s_and_b32 s{S_RHO}, s{S_B}, 3")
    a.I(f"s_lshl_b32 s{S_RHO}, s{S_RHO}, 2")
    a.I("s_waitcnt lgkmcnt(0)")
    a.I(f"s_cmp_lt_u32 s{S_WAVE}, 3")
    a.I("s_cbranch_scc1 L_roleA")
    a.I(f"s_cmp_eq_u32 s{S_WAVE}, 3")
    a.I("s_cbranch_scc1 L_roleLK")
    a.I(f"s_cmp_eq_u32 s{S_WAVE}, 7")
    a.I("s_cbranch_scc1 L_roleLV")
    a.I("s_branch L_roleG")

def gen_loader(a, isK):
    tag = "LK" if isK else "LV"
    D = 13 if isK else 14
    a.L(f"L_role{tag}")
    SKV = 32; SW = 36
    srd(a, SKV, P_K if isK else P_V, 0x4000000)
    srd(a, SW, P_WQ, 0x400000)
    sKB = 48; sT = 49; sTau = 50; sN = 51; sA = 52; sBq = 53; sWrow = 54
    a.I(f"s_lshl_b32 s{sKB}, s{S_B}, 5")
    a.I(f"s_add_u32 s{sKB}, s{sKB}, s{S_HB}")
    a.I(f"s_lshl_b32 s{sKB}, s{sKB}, 17")
    a.I("v_and_b32 v1, 15, v0")
    a.I("v_lshrrev_b32 v2, 4, v0")
    if isK:
        for j in range(4):
            a.I(f"v_add_u32 v3, {4*j}, v2")
            a.I("v_xor_b32 v3, v1, v3")
            a.I("v_lshlrev_b32 v3, 4, v3")
            a.I(f"v_lshl_add_u32 v{4+j}, v2, 8, v3")
    else:
        a.I("v_lshlrev_b32 v3, 2, v2")
        a.I("v_xor_b32 v3, v1, v3")
        a.I("v_lshlrev_b32 v3, 4, v3")
        for j in range(4):
            a.I(f"v_lshl_add_u32 v{4+j}, v2, 8, v3")
    a.I("v_lshlrev_b32 v3, 2, v2")
    a.I("v_xor_b32 v3, v1, v3")
    a.I("v_lshlrev_b32 v3, 4, v3")
    a.I("v_lshlrev_b32 v9, 13, v2")
    a.I("v_add_u32 v8, v9, v3")
    i0 = 0 if isK else 4
    LB = KR if isK else VR

    def issue_w():
        a.I(f"s_add_u32 s{sA}, s{S_RHO}, s{sTau}")
        a.I(f"s_and_b32 s{sA}, s{sA}, 15")
        a.I(f"s_lshl_b32 s{sA}, s{sA}, 18")
        a.I(f"s_lshr_b32 s{sBq}, s{sTau}, 4")
        a.I(f"s_add_u32 s{sBq}, s{sBq}, s{S_HB}")
        a.I(f"s_lshl_b32 s{sBq}, s{sBq}, 8")
        a.I(f"s_add_u32 s{sA}, s{sA}, s{sBq}")
        a.I(f"s_add_u32 s{sA}, s{sA}, {i0*4*8192}")
        a.I(f"s_and_b32 s{sBq}, s{sTau}, 3")
        a.I(f"s_lshl_b32 s{sBq}, s{sBq}, 13")
        a.I(f"s_add_u32 s{sBq}, s{sBq}, {WR + i0*1024}")
        for i in range(4):
            a.I(f"s_add_u32 m0, s{sBq}, {i*1024}")
            if i: a.I(f"s_add_u32 s{sA}, s{sA}, 32768")
            else: a.I("s_nop 0")
            a.I(f"buffer_load_dwordx4 v8, s[{SW}:{SW+3}], s{sA} offen{cfg.wq_pol} lds")
        a.I(f"s_add_u32 s{sTau}, s{sTau}, 1")

    def issue_kv():
        a.I(f"s_lshl_b32 s{sA}, s{sT}, 13")
        a.I(f"s_add_u32 s{sA}, s{sA}, s{sKB}")
        a.I(f"s_and_b32 s{sBq}, s{sT}, 3")
        a.I(f"s_lshl_b32 s{sBq}, s{sBq}, 13")
        for half in range(2):
            a.I(f"s_add_u32 m0, s{sBq}, {LB + half*4096}")
            if half: a.I(f"s_add_u32 s{sA}, s{sA}, 4096")
            else: a.I("s_nop 0")
            for j in range(4):
                off = f" offset:{j*1024}" if j else ""
                a.I(f"buffer_load_dwordx4 v{4+j}, s[{SKV}:{SKV+3}], s{sA} offen{off}{cfg.kv_pol} lds")
        a.I(f"s_add_u32 s{sT}, s{sT}, 1")

    a.I(f"s_mov_b32 s{sT}, 0")
    a.I(f"s_mov_b32 s{sTau}, 0")
    for _ in range(3): issue_w()
    a.I("s_waitcnt vmcnt(8)")
    def cnt(n):
        if n < 0: return 4
        return (4 if n <= 60 else 0) + (8 if D <= n <= D + 63 else 0)
    phases = []
    for n in range(81):
        key = (D <= n <= D + 63, n <= 60, cnt(n) + cnt(n - 1))
        if phases and phases[-1][0] == key: phases[-1][2] = n
        else: phases.append([key, n, n])
    for pi, (key, n0, n1) in enumerate(phases):
        kv, w, N = key
        cntn = n1 - n0 + 1
        if cntn > 1:
            a.I(f"s_mov_b32 s{sN}, {cntn}")
            a.L(f"L_{tag}_ph{pi}")
        a.I("s_barrier")
        if kv: issue_kv()
        if w: issue_w()
        a.I(f"s_waitcnt vmcnt({N})")
        if cntn > 1:
            a.I(f"s_sub_u32 s{sN}, s{sN}, 1")
            a.I(f"s_cmp_lg_u32 s{sN}, 0")
            a.I(f"s_cbranch_scc1 L_{tag}_ph{pi}")
    a.I("s_branch L_tail")

def mfma(a, d, A, B, c=None):
    cs = vr(d, 16) if c is None else (c if isinstance(c, str) else vr(c, 16))
    a.I(f"v_mfma_f32_32x32x16_bf16 {vr(d,16)}, {vr(A,4)}, {vr(B,4)}, {cs}")

def kpattern_addr(a, dst, n, base_imm=None):
    a.I("v_and_b32 v1, 31, v0")
    a.I("v_lshrrev_b32 v2, 5, v0")
    a.I("v_and_b32 v3, 15, v0")
    a.I("v_xor_b32 v3, v3, v2")
    a.I("v_lshlrev_b32 v1, 8, v1")
    for k in range(n):
        a.I(f"v_xor_b32 v2, {2*k}, v3")
        a.I(f"v_lshl_add_u32 v{dst+k}, v2, 4, v1")
        if base_imm: a.I(f"v_add_u32 v{dst+k}, {base_imm}, v{dst+k}")

def gen_G(a):
    a.L("L_roleG")
    X = 0; QA = 128; WF = 192; vWA = 224; vXA = 228; vXO = 236; vL16 = 240; vLane = 241
    SX = 32
    sW = 48; sA = 49; sBq = 50; sU = 51; sXb = 52; sC = 56; sPi = 53
    srd(a, SX, P_X, 16*96*512*2)
    a.I(f"s_sub_u32 s{sW}, s{S_WAVE}, 4")
    a.I(f"s_mov_b32 s{sC}, {hex(f2u(CSCALE))}")
    a.I(f"s_mov_b32 s{sC+1}, {hex(f2u(CSCALE))}")
    a.I(f"v_mov_b32 v{vLane}, v0")
    a.I(f"v_lshlrev_b32 v{vL16}, 4, v0")
    kpattern_addr(a, vXA, 8)
    a.I(f"s_lshl_b32 s{sA}, s{sW}, 14")
    a.I(f"s_add_u32 s{sA}, s{sA}, {XS}")
    for k in range(8):
        a.I(f"v_add_u32 v{vXA+k}, s{sA}, v{vXA+k}")
    a.I("v_and_b32 v1, 15, v0")
    a.I("v_lshrrev_b32 v2, 4, v0")
    for j in range(4):
        a.I(f"v_add_u32 v3, {4*j}, v2")
        a.I("v_xor_b32 v3, v1, v3")
        a.I("v_lshlrev_b32 v3, 4, v3")
        a.I(f"v_lshl_add_u32 v{vXO+j}, v2, 10, v3")
    a.I("v_lshrrev_b32 v3, 2, v1")
    a.I("v_lshrrev_b32 v4, 1, v2")
    a.I("v_lshl_add_u32 v5, v4, 3, v3")
    a.I("v_lshlrev_b32 v5, 8, v5")
    a.I("v_and_b32 v6, 1, v2")
    a.I("v_lshlrev_b32 v6, 5, v6")
    a.I("v_add_u32 v5, v5, v6")
    a.I("v_and_b32 v6, 1, v1")
    a.I("v_lshl_add_u32 v5, v6, 4, v5")
    a.I("v_bfe_u32 v6, v1, 1, 1")
    a.I("v_lshl_add_u32 v5, v6, 3, v5")
    a.I(f"v_add_u32 v5, {WR}, v5")
    for i in range(4):
        a.I(f"v_xor_b32 v6, {i}, v3")
        a.I(f"v_lshl_add_u32 v{vWA+i}, v6, 6, v5")
    a.I(f"s_mul_i32 s{sXb}, s{S_B}, 98304")
    a.I(f"s_lshl_b32 s{sA}, s{sW}, 15")
    a.I(f"s_add_u32 s{sXb}, s{sXb}, s{sA}")

    def issue_x(piece):
        a.I(f"s_lshr_b32 s{sPi}, s{S_RHO}, 2")
        a.I(f"s_add_u32 s{sPi}, s{sPi}, {piece}")
        a.I(f"s_and_b32 s{sPi}, s{sPi}, 3")
        a.I(f"s_lshl_b32 s{sPi}, s{sPi}, 8")
        a.I(f"s_add_u32 s{sA}, s{sXb}, s{sPi}")
        a.I(f"s_lshl_b32 s{sBq}, s{sW}, 14")
        a.I(f"s_add_u32 s{sBq}, s{sBq}, {XS + (piece & 1)*8192}")
        for i in range(8):
            a.I(f"s_add_u32 m0, s{sBq}, {i*1024}")
            if i: a.I(f"s_add_u32 s{sA}, s{sA}, 4096")
            else: a.I("s_nop 0")
            a.I(f"buffer_load_dwordx4 v{vXO + (i & 3)}, s[{SX}:{SX+3}], s{sA} offen{cfg.x_pol} lds")
    issue_x(0); issue_x(1)

    def task(t, first_unit):
        slot = t & 3
        a.I("s_barrier")
        if first_unit and t % 4 == 0:
            piece = t // 4
            a.I(f"s_waitcnt vmcnt({8 if piece < 3 else 0})")
            for k in range(8):
                a.I(f"ds_read_b128 {vr(X + piece*32 + k*4, 4)}, v{vXA+k} offset:{(piece&1)*8192}")
            a.I("s_waitcnt lgkmcnt(0)")
            if piece + 2 < 4: issue_x(piece + 2)
        def rd(ks, i, sec):
            dst = WF + ks*16 + i*4 + sec*2
            a.I(f"ds_read_b64_tr_b16 {vr(dst,2)}, v{vWA+i} offset:{slot*8192 + ks*4096 + sec*1024}")
        for i in range(4):
            rd(0, i, 0); rd(0, i, 1)
        for i in range(2):
            rd(1, i, 0); rd(1, i, 1)
        a.I("s_waitcnt lgkmcnt(4)")
        xb = X + t*8
        c0 = "0" if t == 0 else None
        mfma(a, QA + 0, WF + 0, xb, c0)
        rd(1, 2, 0); rd(1, 2, 1)
        mfma(a, QA + 16, WF + 4, xb, c0)
        rd(1, 3, 0); rd(1, 3, 1)
        mfma(a, QA + 32, WF + 8, xb, c0)
        mfma(a, QA + 48, WF + 12, xb, c0)
        a.I("s_waitcnt lgkmcnt(4)")
        mfma(a, QA + 0, WF + 16, xb + 4)
        mfma(a, QA + 16, WF + 20, xb + 4)
        a.I("s_waitcnt lgkmcnt(0)")
        mfma(a, QA + 32, WF + 24, xb + 4)
        mfma(a, QA + 48, WF + 28, xb + 4)

    def handoff():
        a.I(f"s_cmp_lt_u32 s{sU}, 3")
        a.I(f"s_cselect_b32 s{sA}, {QH//8192}, {WR//8192}")
        a.I(f"s_add_u32 s{sA}, s{sA}, s{sW}")
        a.I(f"s_lshl_b32 s{sA}, s{sA}, 13")
        a.I(f"v_add_u32 v242, s{sA}, v{vL16}")
        a.I("s_nop 7")
        for j in range(32):
            if j == 24: a.I("s_nop 1")
            a.I(f"v_pk_mul_f32 {vr(QA+2*j,2)}, {vr(QA+2*j,2)}, s[{sC}:{sC+1}]")
        for j in range(32):
            a.I(f"v_cvt_pk_bf16_f32 v{WF+j}, v{QA+2*j}, v{QA+2*j+1}")
        for k in range(8):
            a.I(f"ds_write_b128 v242, {vr(WF+4*k,4)} offset:{k*1024}")
        a.I("s_waitcnt lgkmcnt(0)")

    a.I(f"s_mov_b32 s{sU}, 0")
    for t in range(16): task(t, True)
    handoff()
    a.I(f"s_mov_b32 s{sU}, 1")
    a.L("L_G_unit")
    for t in range(16): task(t, False)
    handoff()
    a.I(f"s_add_u32 s{sU}, s{sU}, 1")
    a.I(f"s_cmp_lt_u32 s{sU}, 4")
    a.I("s_cbranch_scc1 L_G_unit")
    a.I(f"s_mov_b32 s{sU}, 17")
    a.L("L_G_idle")
    a.I("s_barrier")
    a.I(f"s_sub_u32 s{sU}, s{sU}, 1")
    a.I(f"s_cmp_lg_u32 s{sU}, 0")
    a.I("s_cbranch_scc1 L_G_idle")
    a.I("s_branch L_tail")

def gen_A(a):
    a.L("L_roleA")
    O = 0; Q = 64; S = [96, 112]; NM = 128; P = 144; KF = 152; VF = 184
    vKA = 216; vVA = 224; l0 = 228; l1 = 229; mx = 230; t0 = 231; t1 = 232; inv = 234; vL16 = 240; vAd = 241
    sIt = 48; sU = 49; sA = 50; sBq = 51; sW = S_WAVE
    if cfg.prio_a: a.I(f"s_setprio {cfg.prio_a}")
    a.I(f"v_lshlrev_b32 v{vL16}, 4, v0")
    a.I("v_mov_b32 v244, v0")
    kpattern_addr(a, vKA, 8)
    a.I("v_and_b32 v1, 15, v0")
    a.I("v_lshrrev_b32 v2, 4, v0")
    a.I("v_lshrrev_b32 v3, 2, v1")
    a.I("v_lshrrev_b32 v4, 1, v2")
    a.I("v_lshl_add_u32 v5, v4, 2, v3")
    a.I("v_lshlrev_b32 v5, 8, v5")
    a.I("v_and_b32 v6, 1, v2")
    a.I("v_lshlrev_b32 v6, 5, v6")
    a.I("v_add_u32 v5, v5, v6")
    a.I("v_bfe_u32 v6, v1, 1, 1")
    a.I("v_lshl_add_u32 v5, v6, 4, v5")
    a.I("v_and_b32 v6, 1, v1")
    a.I("v_lshl_add_u32 v5, v6, 3, v5")
    a.I(f"v_add_u32 v5, {VR}, v5")
    for i in range(4):
        a.I(f"v_xor_b32 v6, {i}, v3")
        a.I(f"v_lshl_add_u32 v{vVA+i}, v6, 6, v5")
    a.I(f"s_mov_b32 s{sIt}, 16")
    a.L("L_A_idle")
    a.I("s_barrier")
    a.I(f"s_sub_u32 s{sIt}, s{sIt}, 1")
    a.I(f"s_cmp_lg_u32 s{sIt}, 0")
    a.I("s_cbranch_scc1 L_A_idle")

    rare_blocks = []

    def k_reads(slot):
        for k in range(8):
            a.I(f"ds_read_b128 {vr(KF+4*k,4)}, v{vKA+k} offset:{slot*8192}")
    def v_read(slot, idx):
        ks, i, sec = idx // 8, (idx // 2) % 4, idx % 2
        dst = VF + (ks*4 + i)*4 + sec*2
        a.I(f"ds_read_b64_tr_b16 {vr(dst,2)}, v{vVA+i} offset:{slot*8192 + ks*4096 + sec*2048}")

    def softmax_ops(Sc):
        ops = []
        for j in range(8):
            ops.append([f"v_exp_f32 v{Sc+2*j}, v{Sc+2*j}", f"v_exp_f32 v{Sc+2*j+1}, v{Sc+2*j+1}"])
        return ops

    def step(pos, has_qk=True, has_pv=True, boundary=False, tag=""):
        Sn = S[pos % 2]; Sc = S[(pos + 1) % 2]
        vslot = (pos + 3) % 4
        a.I("s_barrier")
        nq = 0
        if boundary and has_qk:
            a.I(f"s_cmp_lt_u32 s{sU}, 3")
            a.I(f"s_cselect_b32 s{sA}, {QH//8192}, {WR//8192}")
            a.I(f"s_add_u32 s{sA}, s{sA}, s{sW}")
            a.I(f"s_lshl_b32 s{sA}, s{sA}, 13")
            a.I(f"v_add_u32 v{vAd}, s{sA}, v{vL16}")
            for k in range(8):
                a.I(f"ds_read_b128 {vr(Q+4*k,4)}, v{vAd} offset:{k*1024}")
            a.I("s_waitcnt lgkmcnt(0)")
        if has_qk: k_reads(pos)
        vissued = 0
        def exp_pair(j):
            a.I(f"v_exp_f32 v{Sc+2*j}, v{Sc+2*j}")
            a.I(f"v_exp_f32 v{Sc+2*j+1}, v{Sc+2*j+1}")
        def fin_pair(j):
            a.I(f"v_add_f32 v{l0}, v{l0}, v{Sc+2*j}")
            a.I(f"v_add_f32 v{l1}, v{l1}, v{Sc+2*j+1}")
            a.I(f"v_cvt_pk_bf16_f32 v{P+j}, v{Sc+2*j}, v{Sc+2*j+1}")
        if has_pv:
            exp_pair(0)
        for k in range(8):
            if has_qk:
                a.I(f"s_waitcnt lgkmcnt({min(15, 7 - k + vissued)})")
                c = ("0" if boundary else vr(NM,16)) if k == 0 else None
                mfma(a, Sn, KF + 4*k, Q + 4*k, c)
            if has_pv:
                v_read(vslot, 2*k); v_read(vslot, 2*k + 1); vissued += 2
                if k < 7: exp_pair(k + 1)
                else: a.I("s_nop 0")
                fin_pair(k)
        if has_pv:
            a.I("s_waitcnt lgkmcnt(8)")
            for i in range(4):
                mfma(a, O + 16*i, VF + 4*i, P)
            a.I("s_waitcnt lgkmcnt(0)")
            for i in range(4):
                mfma(a, O + 16*i, VF + 16 + 4*i, P + 4)
        if has_qk and not boundary:
            a.I(f"v_max3_f32 v{mx}, v{Sn}, v{Sn+1}, v{Sn+2}")
            for j in range(6):
                a.I(f"v_max3_f32 v{mx}, v{mx}, v{Sn+3+2*j}, v{Sn+4+2*j}")
            a.I(f"v_max_f32 v{mx}, v{mx}, v{Sn+15}")
            a.I(f"v_cmp_lt_f32 vcc, {hex(f2u(cfg.thresh))}, v{mx}")
            a.I(f"s_cbranch_vccnz L_A_rare{tag}")
            a.L(f"L_A_ret{tag}")
            rare_blocks.append((tag, Sn))
        if boundary:
            if has_pv:
                a.I(f"v_add_f32 v{l0}, v{l0}, v{l1}")
                a.I(f"s_sub_u32 s{sA}, s{sU}, 1")
                a.I(f"s_lshl_b32 s{sA}, s{sA}, 2")
                a.I(f"s_lshr_b32 s{sA}, 0x08CF, s{sA}")
                a.I(f"s_and_b32 s{sA}, s{sA}, 15")
                a.I(f"s_lshl_b32 s{sA}, s{sA}, 13")
                a.I(f"v_mov_b32 v{t0}, v{l0}")
                a.I(f"s_lshl_b32 s{sBq}, s{sW}, 13")
                a.I(f"s_add_u32 s{sA}, s{sA}, s{sBq}")
                a.I(f"v_permlane32_swap_b32 v{l0}, v{t0}")
                a.I(f"v_add_u32 v{vAd}, s{sA}, v{vL16}")
                a.I(f"v_add_f32 v{l0}, v{l0}, v{t0}")
                a.I(f"v_rcp_f32 v{inv}, v{l0}")
                a.I("s_nop 0")
                a.I(f"v_mov_b32 v{inv+1}, v{inv}")
                a.I("s_nop 7")
                for j in range(32):
                    a.I(f"v_pk_mul_f32 {vr(O+2*j,2)}, {vr(O+2*j,2)}, {vr(inv,2)}")
                for j in range(32):
                    a.I(f"v_cvt_pk_bf16_f32 v{KF+j}, v{O+2*j}, v{O+2*j+1}")
                for k in range(8):
                    a.I(f"ds_write_b128 v{vAd}, {vr(KF+4*k,4)} offset:{k*1024}")
            if has_qk:
                if not has_pv: a.I("s_nop 12")
                a.I(f"v_max3_f32 v{mx}, v{Sn}, v{Sn+1}, v{Sn+2}")
                for j in range(6):
                    a.I(f"v_max3_f32 v{mx}, v{mx}, v{Sn+3+2*j}, v{Sn+4+2*j}")
                a.I(f"v_max_f32 v{mx}, v{mx}, v{Sn+15}")
                a.I(f"v_mov_b32 v{t0}, v{mx}")
                a.I("s_nop 1")
                a.I(f"v_permlane32_swap_b32 v{mx}, v{t0}")
                a.I("s_nop 0")
                a.I(f"v_max_f32 v{mx}, v{mx}, v{t0}")
                for j in range(16):
                    a.I(f"v_sub_f32 v{Sn+j}, v{Sn+j}, v{mx}")
                for j in range(16):
                    a.I(f"v_sub_f32 v{NM+j}, 0, v{mx}")
                for j in range(64):
                    a.I(f"v_mov_b32 v{O+j}, 0")
                a.I(f"v_mov_b32 v{l0}, 0")
                a.I(f"v_mov_b32 v{l1}, 0")
            if has_pv:
                a.I("s_waitcnt lgkmcnt(0)")

    a.I(f"s_mov_b32 s{sU}, 0")
    step(0, has_qk=True, has_pv=False, boundary=True, tag="_b0")
    a.I(f"s_mov_b32 s{sIt}, 0")
    a.I("s_branch L_A_pos1")
    a.L("L_A_loop")
    a.I(f"s_cmp_lg_u32 s{sIt}, 0")
    a.I("s_cbranch_scc1 L_A_pos0reg")
    a.I(f"s_cmp_eq_u32 s{sU}, 4")
    a.I("s_cbranch_scc1 L_A_last")
    step(0, boundary=True, tag="_bm")
    a.I("s_branch L_A_pos1")
    a.L("L_A_pos0reg")
    step(0, tag="_0")
    a.L("L_A_pos1")
    step(1, tag="_1")
    step(2, tag="_2")
    step(3, tag="_3")
    a.I(f"s_add_u32 s{sIt}, s{sIt}, 1")
    a.I(f"s_cmp_eq_u32 s{sIt}, 4")
    a.I("s_cbranch_scc0 L_A_loop")
    a.I(f"s_mov_b32 s{sIt}, 0")
    a.I(f"s_add_u32 s{sU}, s{sU}, 1")
    a.I("s_branch L_A_loop")
    a.L("L_A_last")
    step(0, has_qk=False, has_pv=True, boundary=True, tag="_bl")
    a.I("s_branch L_tail")
    for tag, Sn in rare_blocks:
        a.L(f"L_A_rare{tag}")
        a.I("s_nop 15")
        a.I(f"v_mov_b32 v{t0}, v{mx}")
        a.I("s_nop 1")
        a.I(f"v_permlane32_swap_b32 v{mx}, v{t0}")
        a.I("s_nop 0")
        a.I(f"v_max_f32 v{mx}, v{mx}, v{t0}")
        a.I(f"v_max_f32 v{mx}, 0, v{mx}")
        a.I(f"v_sub_f32 v{t0}, 0, v{mx}")
        a.I(f"v_exp_f32 v{inv}, v{t0}")
        a.I("s_nop 0")
        a.I(f"v_mov_b32 v{inv+1}, v{inv}")
        for j in range(16):
            a.I(f"v_sub_f32 v{Sn+j}, v{Sn+j}, v{mx}")
        for j in range(16):
            a.I(f"v_sub_f32 v{NM+j}, v{NM+j}, v{mx}")
        for j in range(32):
            a.I(f"v_pk_mul_f32 {vr(O+2*j,2)}, {vr(O+2*j,2)}, {vr(inv,2)}")
        a.I(f"v_mul_f32 v{l0}, v{l0}, v{inv}")
        a.I(f"v_mul_f32 v{l1}, v{l1}, v{inv}")
        a.I("s_nop 1")
        a.I(f"s_branch L_A_ret{tag}")

def gen_tail(a):
    a.L("L_tail")
    ACC = 0; AF = 96; BF = 112; vAA = 136; vB = 138; vWO = 139; vB2 = 140; vL = 141; vSt = 142; PK = 144
    SWO = 32; SPT = 36
    sSt = 48; sA = 49; sBq = 50; sStage = 51; sIt = 52; sRow = 53; sC = 54
    a.I("s_setprio 0")
    a.I("s_waitcnt lgkmcnt(0)")
    a.I("s_barrier")
    srd(a, SWO, P_WO, 0x400000)
    srd(a, SPT, P_WS, PART_BYTES)
    a.I(f"v_mbcnt_lo_u32_b32 v{vL}, -1, 0")
    a.I(f"v_mbcnt_hi_u32_b32 v{vL}, -1, v{vL}")
    a.I(f"s_lshl_b32 s{sStage}, s{S_WAVE}, 13")
    a.I(f"s_add_u32 s{sStage}, s{sStage}, 24576")
    a.I(f"s_cmp_eq_u32 s{S_WAVE}, 5")
    a.I(f"s_cselect_b32 s{sStage}, 90112, s{sStage}")
    a.I(f"s_cmp_eq_u32 s{S_WAVE}, 6")
    a.I(f"s_cselect_b32 s{sStage}, 147456, s{sStage}")
    a.I(f"s_cmp_eq_u32 s{S_WAVE}, 7")
    a.I(f"s_cselect_b32 s{sStage}, 155648, s{sStage}")
    a.I(f"v_lshrrev_b32 v1, 3, v{vL}")
    a.I(f"v_and_b32 v2, 7, v{vL}")
    a.I("v_bfe_u32 v3, v1, 1, 1")
    a.I("v_lshlrev_b32 v3, 2, v3")
    a.I("v_xor_b32 v2, v2, v3")
    a.I("v_lshlrev_b32 v2, 4, v2")
    a.I(f"v_lshl_add_u32 v{vWO}, v1, 10, v2")
    a.I(f"s_lshl_b32 s{sRow}, s{S_HB}, 17")
    a.I(f"s_lshl_b32 s{sA}, s{S_WAVE}, 7")
    a.I(f"s_add_u32 s{sRow}, s{sRow}, s{sA}")
    def issue_wo(slot, delta):
        a.I(f"s_add_u32 s{sA}, s{sSt}, s{S_B}")
        if delta: a.I(f"s_add_u32 s{sA}, s{sA}, {delta}")
        a.I(f"s_and_b32 s{sA}, s{sA}, 15")
        a.I(f"s_lshl_b32 s{sA}, s{sA}, 15")
        a.I(f"s_add_u32 s{sA}, s{sA}, s{sRow}")
        for i in range(4):
            a.I(f"s_add_u32 m0, s{sStage}, {slot*4096 + i*1024}")
            if i: a.I(f"s_add_u32 s{sA}, s{sA}, 8192")
            else: a.I("s_nop 0")
            a.I(f"buffer_load_dwordx4 v{vWO}, s[{SWO}:{SWO+3}], s{sA} offen{cfg.wo_pol} lds")
    a.I(f"s_mov_b32 s{sSt}, 0")
    issue_wo(0, 0); issue_wo(1, 1)
    a.I(f"v_and_b32 v1, 15, v{vL}")
    a.I(f"v_lshrrev_b32 v2, 4, v{vL}")
    a.I("v_lshrrev_b32 v3, 2, v1")
    a.I("v_lshrrev_b32 v4, 1, v2")
    a.I("v_lshl_add_u32 v5, v4, 2, v3")
    a.I("v_lshlrev_b32 v5, 7, v5")
    a.I("v_and_b32 v6, 1, v1")
    a.I("v_lshl_add_u32 v5, v6, 5, v5")
    a.I("v_and_b32 v6, 1, v2")
    a.I("v_lshl_add_u32 v5, v6, 4, v5")
    a.I("v_bfe_u32 v6, v1, 1, 1")
    a.I("v_lshl_add_u32 v5, v6, 3, v5")
    a.I(f"v_add_u32 v5, s{sStage}, v5")
    a.I("v_lshrrev_b32 v3, 1, v3")
    for nt in range(2):
        a.I(f"v_xor_b32 v6, {nt}, v3")
        a.I(f"v_lshl_add_u32 v{vAA+nt}, v6, 6, v5")
    a.I(f"v_lshlrev_b32 v{vB}, 4, v{vL}")
    for j in range(96):
        a.I(f"v_mov_b32 v{ACC+j}, 0")
    def sub(slot, last_pair):
        a.I(f"s_add_u32 s{sA}, s{sSt}, s{S_B}")
        if slot: a.I(f"s_add_u32 s{sA}, s{sA}, {slot}")
        a.I(f"s_and_b32 s{sA}, s{sA}, 15")
        a.I(f"s_lshr_b32 s{sBq}, s{sA}, 2")
        a.I(f"s_lshl_b32 s{sBq}, s{sBq}, 2")
        a.I(f"s_lshr_b32 s{sBq}, 0x08CF, s{sBq}")
        a.I(f"s_and_b32 s{sBq}, s{sBq}, 15")
        a.I(f"s_lshl_b32 s{sBq}, s{sBq}, 13")
        a.I(f"s_and_b32 s{sA}, s{sA}, 3")
        a.I(f"s_lshl_b32 s{sA}, s{sA}, 11")
        a.I(f"s_add_u32 s{sBq}, s{sBq}, s{sA}")
        a.I(f"v_add_u32 v{vB2}, s{sBq}, v{vB}")
        a.I(f"s_waitcnt vmcnt({0 if (last_pair and slot == 1) else 4})")
        for ks in range(2):
            for nt in range(2):
                for sec in range(2):
                    a.I(f"ds_read_b64_tr_b16 {vr(AF + ks*8 + nt*4 + sec*2, 2)}, v{vAA+nt} offset:{slot*4096 + ks*2048 + sec*1024}")
            for qt in range(3):
                a.I(f"ds_read_b128 {vr(BF + ks*12 + qt*4, 4)}, v{vB2} offset:{qt*8192 + ks*1024}")
        a.I("s_waitcnt lgkmcnt(7)")
        for nt in range(2):
            for qt in range(3):
                mfma(a, ACC + (nt*3 + qt)*16, AF + nt*4, BF + qt*4)
        a.I("s_waitcnt lgkmcnt(0)")
        if not last_pair: issue_wo(slot, slot + 2)
        for nt in range(2):
            for qt in range(3):
                mfma(a, ACC + (nt*3 + qt)*16, AF + 8 + nt*4, BF + 12 + qt*4)
    a.I(f"s_mov_b32 s{sIt}, 7")
    a.L("L_T_loop")
    sub(0, False); sub(1, False)
    a.I(f"s_add_u32 s{sSt}, s{sSt}, 2")
    a.I(f"s_sub_u32 s{sIt}, s{sIt}, 1")
    a.I(f"s_cmp_lg_u32 s{sIt}, 0")
    a.I("s_cbranch_scc1 L_T_loop")
    sub(0, True); sub(1, True)
    a.I(f"s_lshl_b32 s{sA}, s{S_P}, 4")
    a.I(f"s_add_u32 s{sA}, s{sA}, s{S_B}")
    a.I(f"s_lshl_b32 s{sA}, s{sA}, 3")
    a.I(f"s_add_u32 s{sA}, s{sA}, s{S_WAVE}")
    a.I(f"s_lshl_b32 s{sA}, s{sA}, 3")
    a.I(f"s_add_u32 s{sA}, s{sA}, s{S_MJ}")
    a.I(f"s_mul_i32 s{sA}, s{sA}, 12288")
    a.I("s_nop 7")
    for qt in range(3):
        for nt in range(2):
            base = ACC + (nt*3 + qt)*16
            pk = PK + ((qt*2 + nt) % 2) * 8
            if (qt, nt) == (0, 0): a.I("s_nop 3")
            for j in range(8):
                a.I(f"v_cvt_pk_bf16_f32 v{pk+j}, v{base+2*j}, v{base+2*j+1}")
            ch = (qt*2 + nt)*2
            a.I(f"s_add_u32 s{sBq}, s{sA}, {ch*1024}")
            a.I(f"buffer_store_dwordx4 {vr(pk,4)}, v{vB}, s[{SPT}:{SPT+3}], s{sBq} offen{cfg.part_st_pol}")
            a.I(f"buffer_store_dwordx4 {vr(pk+4,4)}, v{vB}, s[{SPT}:{SPT+3}], s{sBq} offen offset:1024{cfg.part_st_pol}")
    a.I("s_waitcnt vmcnt(0)")
    a.L("L_k1_end")
    a.I("s_endpgm")

def gen_k2(a):
    a.I("s_cmp_ge_u32 s2, 256")
    a.I("s_cbranch_scc1 L_k2_end")
    a.I("s_load_dwordx2 s[4:5], s[0:1], 80")
    a.I("s_load_dwordx2 s[6:7], s[0:1], 96")
    a.I("v_lshrrev_b32 v1, 6, v0")
    a.I("v_and_b32 v0, 63, v0")
    a.I("v_readfirstlane_b32 s20, v1")
    a.I("s_waitcnt lgkmcnt(0)")
    srd(a, 8, 6, PART_BYTES)
    srd(a, 12, 4, 16*96*1024*2)
    a.I("s_mul_i32 s21, s2, 98304")
    a.I("s_lshl_b32 s22, s20, 11")
    a.I("s_add_u32 s21, s21, s22")
    a.I("v_lshlrev_b32 v1, 4, v0")
    for src in range(8):
        a.I(f"s_add_u32 s23, s21, {src*12288}")
        a.I(f"buffer_load_dwordx4 {vr(8+src*8,4)}, v1, s[8:11], s23 offen{cfg.part_ld_pol}")
        a.I(f"buffer_load_dwordx4 {vr(8+src*8+4,4)}, v1, s[8:11], s23 offen offset:1024{cfg.part_ld_pol}")
    a.I("s_lshr_b32 s24, s2, 3")
    a.I("s_and_b32 s25, s2, 7")
    a.I("s_and_b32 s26, s24, 15")
    a.I("s_lshr_b32 s27, s24, 4")
    a.I("s_lshr_b32 s28, s20, 1")
    a.I("s_and_b32 s29, s20, 1")
    a.I("s_mul_i32 s26, s26, 96")
    a.I("s_lshl_b32 s28, s28, 5")
    a.I("s_add_u32 s26, s26, s28")
    a.I("s_lshl_b32 s26, s26, 11")
    a.I("s_lshl_b32 s27, s27, 10")
    a.I("s_lshl_b32 s25, s25, 7")
    a.I("s_lshl_b32 s29, s29, 6")
    a.I("s_add_u32 s26, s26, s27")
    a.I("s_add_u32 s26, s26, s25")
    a.I("s_add_u32 s26, s26, s29")
    a.I("v_and_b32 v2, 31, v0")
    a.I("v_lshlrev_b32 v2, 11, v2")
    a.I("v_lshrrev_b32 v3, 5, v0")
    a.I("v_lshl_add_u32 v2, v3, 5, v2")
    ACC = 80
    for src in range(8):
        a.I(f"s_waitcnt vmcnt({14 - 2*src})")
        for d in range(8):
            r = 8 + src*8 + d
            if src == 0:
                a.I(f"v_lshlrev_b32 v{ACC+2*d}, 16, v{r}")
                a.I(f"v_and_b32 v{ACC+2*d+1}, 0xffff0000, v{r}")
            else:
                a.I(f"v_lshlrev_b32 v4, 16, v{r}")
                a.I(f"v_and_b32 v5, 0xffff0000, v{r}")
                a.I(f"v_add_f32 v{ACC+2*d}, v{ACC+2*d}, v4")
                a.I(f"v_add_f32 v{ACC+2*d+1}, v{ACC+2*d+1}, v5")
    for d in range(8):
        a.I(f"v_cvt_pk_bf16_f32 v{8+d}, v{ACC+2*d}, v{ACC+2*d+1}")
    a.I("buffer_store_dwordx4 v[8:11], v2, s[12:15], s26 offen")
    a.I("buffer_store_dwordx4 v[12:15], v2, s[12:15], s26 offen offset:16")
    a.I("s_waitcnt vmcnt(0)")
    a.L("L_k2_end")
    a.I("s_endpgm")

def kd(a, name, vgpr, sgpr):
    a.raw('.section .rodata,"a"')
    a.raw(".p2align 6")
    a.raw(f".amdhsa_kernel {name}")
    a.raw(f"  .amdhsa_next_free_vgpr {vgpr}")
    a.raw(f"  .amdhsa_next_free_sgpr {sgpr}")
    a.raw(f"  .amdhsa_accum_offset {(vgpr+3)//4*4}")
    a.raw("  .amdhsa_group_segment_fixed_size 0")
    a.raw("  .amdhsa_kernarg_size 104")
    a.raw("  .amdhsa_user_sgpr_count 2")
    a.raw("  .amdhsa_user_sgpr_kernarg_segment_ptr 1")
    a.raw("  .amdhsa_system_sgpr_workgroup_id_x 1")
    a.raw(".end_amdhsa_kernel")

def build():
    a = Asm()
    a.raw(f"; @launch kernel={K1} grid=(256,1,1) block=(512,1,1) lds={LDS_BYTES}")
    a.raw(f"; @launch kernel={K2} grid=(256,1,1) block=(384,1,1) lds=0")
    a.raw('.amdgcn_target "amdgcn-amd-amdhsa--gfx950"')
    a.raw(".text")
    a.raw(f".globl {K1}")
    a.raw(".p2align 8")
    a.raw(f".type {K1},@function")
    a.L(K1)
    setup_common(a)
    gen_loader(a, True)
    gen_loader(a, False)
    gen_G(a)
    gen_A(a)
    gen_tail(a)
    a.raw(f".globl {K2}")
    a.raw(".p2align 8")
    a.raw(f".type {K2},@function")
    a.L(K2)
    gen_k2(a)
    kd(a, K1, 256, 64)
    a.raw(".text")
    kd(a, K2, 96, 40)
    return a

if __name__ == "__main__":
    a = build()
    out = sys.argv[1] if len(sys.argv) > 1 else f"cdna_kernels/{NAME}.s"
    open(out, "w").write(a.text())
    probs = check_file(a.lines)
    for p in probs: print("HAZARD", p)
    print("wrote", out, len(a.lines), "lines;", len(probs), "hazard reports")
```

```python
import struct, math, sys
from asmlib import Asm, vr, sr, check_file

NAME = "concat_heads__mha_block_cached__gqa_block_cached__near_ridge"
K1 = "attn_kernel"
K2 = "reduce_kernel"

def f2u(x): return struct.unpack("<I", struct.pack("<f", x))[0]
CSCALE = math.log2(math.e) / math.sqrt(128.0)

KR = 0; VR = 32768; WR = 65536; QH = 98304; XS = 98304
OS = [122880, 98304, 65536, 0]
STAGE = [24576, 32768, 40960, 49152, 57344, 90112, 147456, 155648]
LDS_BYTES = 163840
PART_BYTES = 32 * 64 * 12288

class Cfg:
    kv_pol = " nt"
    wq_pol = ""
    x_pol = ""
    wo_pol = ""
    part_st_pol = ""
    part_ld_pol = ""
    thresh = 8.0
    debug_dump = False
    prio_a = 0
    stamps = False

cfg = Cfg()

S_WAVE = 20; S_XCD = 21; S_SLOT = 22; S_P = 23; S_B = 24; S_HQ = 25; S_HB = 26; S_RHO = 27; S_MJ = 28
P_X = 8; P_K = 10; P_V = 12; P_WQ = 14; P_WO = 16; P_WS = 18

def srd(a, dst, ptr, size):
    a.I(f"s_mov_b32 s{dst}, s{ptr}")
    a.I(f"s_and_b32 s{dst+1}, s{ptr+1}, 0xffff")
    a.I(f"s_mov_b32 s{dst+2}, {hex(size)}")
    a.I(f"s_mov_b32 s{dst+3}, 0x20000")

def setup_common(a):
    a.I("s_cmp_ge_u32 s2, 256")
    a.I("s_cbranch_scc1 L_k1_end")
    a.I(f"s_and_b32 s{S_XCD}, s2, 7")
    a.I(f"s_lshr_b32 s{S_SLOT}, s2, 3")
    a.I(f"s_lshr_b32 s{S_P}, s{S_XCD}, 2")
    a.I(f"s_mul_i32 s3, s{S_P}, 40")
    a.I("s_add_u32 s4, s0, s3")
    a.I("s_addc_u32 s5, s1, 0")
    a.I("s_load_dwordx8 s[8:15], s[4:5], 0")
    a.I(f"s_load_dwordx2 s[{P_WO}:{P_WO+1}], s[4:5], 32")
    a.I(f"s_load_dwordx2 s[{P_WS}:{P_WS+1}], s[0:1], 96")
    a.I("v_lshrrev_b32 v1, 6, v0")
    a.I("v_and_b32 v0, 63, v0")
    a.I(f"v_readfirstlane_b32 s{S_WAVE}, v1")
    a.I(f"s_lshr_b32 s{S_B}, s{S_SLOT}, 1")
    a.I(f"s_and_b32 s{S_HQ}, s{S_SLOT}, 1")
    a.I(f"s_and_b32 s3, s{S_XCD}, 3")
    a.I("s_lshl_b32 s3, s3, 1")
    a.I(f"s_add_u32 s{S_MJ}, s3, s{S_HQ}")
    a.I(f"s_lshl_b32 s{S_HB}, s{S_MJ}, 2")
    a.I(f"s_and_b32 s{S_RHO}, s{S_B}, 3")
    a.I(f"s_lshl_b32 s{S_RHO}, s{S_RHO}, 2")
    a.I("s_waitcnt lgkmcnt(0)")
    a.I(f"s_cmp_lt_u32 s{S_WAVE}, 3")
    a.I("s_cbranch_scc1 L_roleA")
    a.I(f"s_cmp_eq_u32 s{S_WAVE}, 3")
    a.I("s_cbranch_scc1 L_roleLK")
    a.I(f"s_cmp_eq_u32 s{S_WAVE}, 7")
    a.I("s_cbranch_scc1 L_roleLV")
    a.I("s_branch L_roleG")

def gen_loader(a, isK):
    tag = "LK" if isK else "LV"
    D = 13 if isK else 14
    a.L(f"L_role{tag}")
    SKV = 32; SW = 36
    srd(a, SKV, P_K if isK else P_V, 0x4000000)
    srd(a, SW, P_WQ, 0x400000)
    sKB = 48; sT = 49; sTau = 50; sN = 51; sA = 52; sBq = 53; sWrow = 54
    a.I(f"s_lshl_b32 s{sKB}, s{S_B}, 5")
    a.I(f"s_add_u32 s{sKB}, s{sKB}, s{S_HB}")
    a.I(f"s_lshl_b32 s{sKB}, s{sKB}, 17")
    a.I("v_and_b32 v1, 15, v0")
    a.I("v_lshrrev_b32 v2, 4, v0")
    if isK:
        for j in range(4):
            a.I(f"v_add_u32 v3, {4*j}, v2")
            a.I("v_xor_b32 v3, v1, v3")
            a.I("v_lshlrev_b32 v3, 4, v3")
            a.I(f"v_lshl_add_u32 v{4+j}, v2, 8, v3")
    else:
        a.I("v_lshlrev_b32 v3, 2, v2")
        a.I("v_xor_b32 v3, v1, v3")
        a.I("v_lshlrev_b32 v3, 4, v3")
        for j in range(4):
            a.I(f"v_lshl_add_u32 v{4+j}, v2, 8, v3")
    a.I("v_lshlrev_b32 v3, 2, v2")
    a.I("v_xor_b32 v3, v1, v3")
    a.I("v_lshlrev_b32 v3, 4, v3")
    a.I("v_lshlrev_b32 v9, 13, v2")
    a.I("v_add_u32 v8, v9, v3")
    i0 = 0 if isK else 4
    LB = KR if isK else VR

    def issue_w():
        a.I(f"s_add_u32 s{sA}, s{S_RHO}, s{sTau}")
        a.I(f"s_and_b32 s{sA}, s{sA}, 15")
        a.I(f"s_lshl_b32 s{sA}, s{sA}, 18")
        a.I(f"s_lshr_b32 s{sBq}, s{sTau}, 4")
        a.I(f"s_add_u32 s{sBq}, s{sBq}, s{S_HB}")
        a.I(f"s_lshl_b32 s{sBq}, s{sBq}, 8")
        a.I(f"s_add_u32 s{sA}, s{sA}, s{sBq}")
        a.I(f"s_add_u32 s{sA}, s{sA}, {i0*4*8192}")
        a.I(f"s_and_b32 s{sBq}, s{sTau}, 3")
        a.I(f"s_lshl_b32 s{sBq}, s{sBq}, 13")
        a.I(f"s_add_u32 s{sBq}, s{sBq}, {WR + i0*1024}")
        for i in range(4):
            a.I(f"s_add_u32 m0, s{sBq}, {i*1024}")
            if i: a.I(f"s_add_u32 s{sA}, s{sA}, 32768")
            else: a.I("s_nop 0")
            a.I(f"buffer_load_dwordx4 v8, s[{SW}:{SW+3}], s{sA} offen{cfg.wq_pol} lds")
        a.I(f"s_add_u32 s{sTau}, s{sTau}, 1")

    def issue_kv():
        a.I(f"s_lshl_b32 s{sA}, s{sT}, 13")
        a.I(f"s_add_u32 s{sA}, s{sA}, s{sKB}")
        a.I(f"s_and_b32 s{sBq}, s{sT}, 3")
        a.I(f"s_lshl_b32 s{sBq}, s{sBq}, 13")
        for half in range(2):
            a.I(f"s_add_u32 m0, s{sBq}, {LB + half*4096}")
            if half: a.I(f"s_add_u32 s{sA}, s{sA}, 4096")
            else: a.I("s_nop 0")
            for j in range(4):
                off = f" offset:{j*1024}" if j else ""
                a.I(f"buffer_load_dwordx4 v{4+j}, s[{SKV}:{SKV+3}], s{sA} offen{off}{cfg.kv_pol} lds")
        a.I(f"s_add_u32 s{sT}, s{sT}, 1")

    a.I(f"s_mov_b32 s{sT}, 0")
    a.I(f"s_mov_b32 s{sTau}, 0")
    for _ in range(3): issue_w()
    a.I("s_waitcnt vmcnt(8)")
    def cnt(n):
        if n < 0: return 4
        return (4 if n <= 60 else 0) + (8 if D <= n <= D + 63 else 0)
    phases = []
    for n in range(81):
        key = (D <= n <= D + 63, n <= 60, cnt(n) + cnt(n - 1))
        if phases and phases[-1][0] == key: phases[-1][2] = n
        else: phases.append([key, n, n])
    for pi, (key, n0, n1) in enumerate(phases):
        kv, w, N = key
        cntn = n1 - n0 + 1
        if cntn > 1:
            a.I(f"s_mov_b32 s{sN}, {cntn}")
            a.L(f"L_{tag}_ph{pi}")
        a.I("s_barrier")
        if kv: issue_kv()
        if w: issue_w()
        a.I(f"s_waitcnt vmcnt({N})")
        if cntn > 1:
            a.I(f"s_sub_u32 s{sN}, s{sN}, 1")
            a.I(f"s_cmp_lg_u32 s{sN}, 0")
            a.I(f"s_cbranch_scc1 L_{tag}_ph{pi}")
    a.I("s_branch L_tail")

STAMP_BASE = 32 << 20
def stamp_setup(a):
    if not cfg.stamps: return
    a.I(f"s_mov_b32 s92, s{P_WS}")
    a.I(f"s_and_b32 s93, s{P_WS+1}, 0xffff")
    a.I(f"s_mov_b32 s94, {hex(STAMP_BASE + (2<<20))}")
    a.I("s_mov_b32 s95, 0x20000")
    a.I("s_lshl_b32 s96, s2, 3")
    a.I(f"s_add_u32 s96, s96, s{S_WAVE}")
    a.I("s_lshl_b32 s96, s96, 10")
    a.I(f"s_add_u32 s96, s96, {STAMP_BASE}")
def stamp(a, vtmp):
    if not cfg.stamps: return
    a.I("s_memrealtime s[98:99]")
    a.I("s_waitcnt lgkmcnt(0)")
    a.I(f"v_mov_b32 v{vtmp}, s98")
    a.I(f"v_mov_b32 v{vtmp+1}, 0")
    a.I(f"buffer_store_dword v{vtmp}, v{vtmp+1}, s[92:95], s96 offen")
    a.I("s_add_u32 s96, s96, 4")

def mfma(a, d, A, B, c=None):
    cs = vr(d, 16) if c is None else (c if isinstance(c, str) else vr(c, 16))
    a.I(f"v_mfma_f32_32x32x16_bf16 {vr(d,16)}, {vr(A,4)}, {vr(B,4)}, {cs}")

def kpattern_addr(a, dst, n, base_imm=None):
    a.I("v_and_b32 v1, 31, v0")
    a.I("v_lshrrev_b32 v2, 5, v0")
    a.I("v_and_b32 v3, 15, v0")
    a.I("v_xor_b32 v3, v3, v2")
    a.I("v_lshlrev_b32 v1, 8, v1")
    for k in range(n):
        a.I(f"v_xor_b32 v2, {2*k}, v3")
        a.I(f"v_lshl_add_u32 v{dst+k}, v2, 4, v1")
        if base_imm: a.I(f"v_add_u32 v{dst+k}, {base_imm}, v{dst+k}")

def gen_G(a):
    a.L("L_roleG")
    X = 0; QA = 128; WF = 192; vWA = 224; vXA = 228; vXO = 236; vL16 = 240; vLane = 241
    SX = 32
    sW = 48; sA = 49; sBq = 50; sU = 51; sXb = 52; sC = 56; sPi = 53
    srd(a, SX, P_X, 16*96*512*2)
    a.I(f"s_sub_u32 s{sW}, s{S_WAVE}, 4")
    a.I(f"s_mov_b32 s{sC}, {hex(f2u(CSCALE))}")
    a.I(f"s_mov_b32 s{sC+1}, {hex(f2u(CSCALE))}")
    a.I(f"v_mov_b32 v{vLane}, v0")
    a.I(f"v_lshlrev_b32 v{vL16}, 4, v0")
    kpattern_addr(a, vXA, 8)
    a.I(f"s_lshl_b32 s{sA}, s{sW}, 14")
    a.I(f"s_add_u32 s{sA}, s{sA}, {XS}")
    for k in range(8):
        a.I(f"v_add_u32 v{vXA+k}, s{sA}, v{vXA+k}")
    a.I("v_and_b32 v1, 15, v0")
    a.I("v_lshrrev_b32 v2, 4, v0")
    for j in range(4):
        a.I(f"v_add_u32 v3, {4*j}, v2")
        a.I("v_xor_b32 v3, v1, v3")
        a.I("v_lshlrev_b32 v3, 4, v3")
        a.I(f"v_lshl_add_u32 v{vXO+j}, v2, 10, v3")
    a.I("v_lshrrev_b32 v3, 2, v1")
    a.I("v_lshrrev_b32 v4, 1, v2")
    a.I("v_lshl_add_u32 v5, v4, 3, v3")
    a.I("v_lshlrev_b32 v5, 8, v5")
    a.I("v_and_b32 v6, 1, v2")
    a.I("v_lshlrev_b32 v6, 5, v6")
    a.I("v_add_u32 v5, v5, v6")
    a.I("v_and_b32 v6, 1, v1")
    a.I("v_lshl_add_u32 v5, v6, 4, v5")
    a.I("v_bfe_u32 v6, v1, 1, 1")
    a.I("v_lshl_add_u32 v5, v6, 3, v5")
    a.I(f"v_add_u32 v5, {WR}, v5")
    for i in range(4):
        a.I(f"v_xor_b32 v6, {i}, v3")
        a.I(f"v_lshl_add_u32 v{vWA+i}, v6, 6, v5")
    a.I(f"s_mul_i32 s{sXb}, s{S_B}, 98304")
    a.I(f"s_lshl_b32 s{sA}, s{sW}, 15")
    a.I(f"s_add_u32 s{sXb}, s{sXb}, s{sA}")

    def issue_x(piece):
        a.I(f"s_lshr_b32 s{sPi}, s{S_RHO}, 2")
        a.I(f"s_add_u32 s{sPi}, s{sPi}, {piece}")
        a.I(f"s_and_b32 s{sPi}, s{sPi}, 3")
        a.I(f"s_lshl_b32 s{sPi}, s{sPi}, 8")
        a.I(f"s_add_u32 s{sA}, s{sXb}, s{sPi}")
        a.I(f"s_lshl_b32 s{sBq}, s{sW}, 14")
        a.I(f"s_add_u32 s{sBq}, s{sBq}, {XS + (piece & 1)*8192}")
        for i in range(8):
            a.I(f"s_add_u32 m0, s{sBq}, {i*1024}")
            if i: a.I(f"s_add_u32 s{sA}, s{sA}, 4096")
            else: a.I("s_nop 0")
            a.I(f"buffer_load_dwordx4 v{vXO + (i & 3)}, s[{SX}:{SX+3}], s{sA} offen{cfg.x_pol} lds")
    issue_x(0); issue_x(1)

    def task(t, first_unit):
        slot = t & 3
        a.I("s_barrier")
        if first_unit and t % 4 == 0:
            piece = t // 4
            a.I(f"s_waitcnt vmcnt({8 if piece < 3 else 0})")
            for k in range(8):
                a.I(f"ds_read_b128 {vr(X + piece*32 + k*4, 4)}, v{vXA+k} offset:{(piece&1)*8192}")
            a.I("s_waitcnt lgkmcnt(0)")
            if piece + 2 < 4: issue_x(piece + 2)
        def rd(ks, i, sec):
            dst = WF + ks*16 + i*4 + sec*2
            a.I(f"ds_read_b64_tr_b16 {vr(dst,2)}, v{vWA+i} offset:{slot*8192 + ks*4096 + sec*1024}")
        for i in range(4):
            rd(0, i, 0); rd(0, i, 1)
        for i in range(2):
            rd(1, i, 0); rd(1, i, 1)
        a.I("s_waitcnt lgkmcnt(4)")
        xb = X + t*8
        c0 = "0" if t == 0 else None
        mfma(a, QA + 0, WF + 0, xb, c0)
        rd(1, 2, 0); rd(1, 2, 1)
        mfma(a, QA + 16, WF + 4, xb, c0)
        rd(1, 3, 0); rd(1, 3, 1)
        mfma(a, QA + 32, WF + 8, xb, c0)
        mfma(a, QA + 48, WF + 12, xb, c0)
        a.I("s_waitcnt lgkmcnt(4)")
        mfma(a, QA + 0, WF + 16, xb + 4)
        mfma(a, QA + 16, WF + 20, xb + 4)
        a.I("s_waitcnt lgkmcnt(0)")
        mfma(a, QA + 32, WF + 24, xb + 4)
        mfma(a, QA + 48, WF + 28, xb + 4)

    def handoff():
        a.I(f"s_cmp_lt_u32 s{sU}, 3")
        a.I(f"s_cselect_b32 s{sA}, {QH//8192}, {WR//8192}")
        a.I(f"s_add_u32 s{sA}, s{sA}, s{sW}")
        a.I(f"s_lshl_b32 s{sA}, s{sA}, 13")
        a.I(f"v_add_u32 v242, s{sA}, v{vL16}")
        a.I("s_nop 7")
        for j in range(32):
            if j == 24: a.I("s_nop 1")
            a.I(f"v_pk_mul_f32 {vr(QA+2*j,2)}, {vr(QA+2*j,2)}, s[{sC}:{sC+1}]")
        for j in range(32):
            a.I(f"v_cvt_pk_bf16_f32 v{WF+j}, v{QA+2*j}, v{QA+2*j+1}")
        for k in range(8):
            a.I(f"ds_write_b128 v242, {vr(WF+4*k,4)} offset:{k*1024}")
        a.I("s_waitcnt lgkmcnt(0)")

    a.I(f"s_mov_b32 s{sU}, 0")
    for t in range(16): task(t, True)
    handoff()
    a.I(f"s_mov_b32 s{sU}, 1")
    a.L("L_G_unit")
    for t in range(16): task(t, False)
    handoff()
    a.I(f"s_add_u32 s{sU}, s{sU}, 1")
    a.I(f"s_cmp_lt_u32 s{sU}, 4")
    a.I("s_cbranch_scc1 L_G_unit")
    a.I(f"s_mov_b32 s{sU}, 17")
    a.L("L_G_idle")
    a.I("s_barrier")
    a.I(f"s_sub_u32 s{sU}, s{sU}, 1")
    a.I(f"s_cmp_lg_u32 s{sU}, 0")
    a.I("s_cbranch_scc1 L_G_idle")
    a.I("s_branch L_tail")

def gen_A(a):
    a.L("L_roleA")
    O = 0; Q = 64; S = [96, 112]; NM = 128; P = 144; KF = 152; VF = 184
    vKA = 216; vVA = 224; l0 = 228; l1 = 229; mx = 230; t0 = 231; t1 = 232; inv = 234; vL16 = 240; vAd = 241
    sIt = 48; sU = 49; sA = 50; sBq = 51; sW = S_WAVE
    if cfg.prio_a: a.I(f"s_setprio {cfg.prio_a}")
    stamp_setup(a)
    stamp(a, 246)
    a.I(f"v_lshlrev_b32 v{vL16}, 4, v0")
    a.I("v_mov_b32 v244, v0")
    kpattern_addr(a, vKA, 8)
    a.I("v_and_b32 v1, 15, v0")
    a.I("v_lshrrev_b32 v2, 4, v0")
    a.I("v_lshrrev_b32 v3, 2, v1")
    a.I("v_lshrrev_b32 v4, 1, v2")
    a.I("v_lshl_add_u32 v5, v4, 2, v3")
    a.I("v_lshlrev_b32 v5, 8, v5")
    a.I("v_and_b32 v6, 1, v2")
    a.I("v_lshlrev_b32 v6, 5, v6")
    a.I("v_add_u32 v5, v5, v6")
    a.I("v_bfe_u32 v6, v1, 1, 1")
    a.I("v_lshl_add_u32 v5, v6, 4, v5")
    a.I("v_and_b32 v6, 1, v1")
    a.I("v_lshl_add_u32 v5, v6, 3, v5")
    a.I(f"v_add_u32 v5, {VR}, v5")
    for i in range(4):
        a.I(f"v_xor_b32 v6, {i}, v3")
        a.I(f"v_lshl_add_u32 v{vVA+i}, v6, 6, v5")
    a.I(f"s_mov_b32 s{sIt}, 16")
    a.L("L_A_idle")
    a.I("s_barrier")
    stamp(a, 246)
    a.I(f"s_sub_u32 s{sIt}, s{sIt}, 1")
    a.I(f"s_cmp_lg_u32 s{sIt}, 0")
    a.I("s_cbranch_scc1 L_A_idle")

    rare_blocks = []

    def k_reads(slot):
        for k in range(8):
            a.I(f"ds_read_b128 {vr(KF+4*k,4)}, v{vKA+k} offset:{slot*8192}")
    def v_read(slot, idx):
        ks, i, sec = idx // 8, (idx // 2) % 4, idx % 2
        dst = VF + (ks*4 + i)*4 + sec*2
        a.I(f"ds_read_b64_tr_b16 {vr(dst,2)}, v{vVA+i} offset:{slot*8192 + ks*4096 + sec*2048}")

    def softmax_ops(Sc):
        ops = []
        for j in range(8):
            ops.append([f"v_exp_f32 v{Sc+2*j}, v{Sc+2*j}", f"v_exp_f32 v{Sc+2*j+1}, v{Sc+2*j+1}"])
        return ops

    def step(pos, has_qk=True, has_pv=True, boundary=False, tag=""):
        Sn = S[pos % 2]; Sc = S[(pos + 1) % 2]
        vslot = (pos + 3) % 4
        a.I("s_barrier")
        stamp(a, 246)
        nq = 0
        if boundary and has_qk:
            a.I(f"s_cmp_lt_u32 s{sU}, 3")
            a.I(f"s_cselect_b32 s{sA}, {QH//8192}, {WR//8192}")
            a.I(f"s_add_u32 s{sA}, s{sA}, s{sW}")
            a.I(f"s_lshl_b32 s{sA}, s{sA}, 13")
            a.I(f"v_add_u32 v{vAd}, s{sA}, v{vL16}")
            for k in range(8):
                a.I(f"ds_read_b128 {vr(Q+4*k,4)}, v{vAd} offset:{k*1024}")
            a.I("s_waitcnt lgkmcnt(0)")
        if has_qk: k_reads(pos)
        vissued = 0
        def exp_pair(j):
            a.I(f"v_exp_f32 v{Sc+2*j}, v{Sc+2*j}")
            a.I(f"v_exp_f32 v{Sc+2*j+1}, v{Sc+2*j+1}")
        def fin_pair(j):
            a.I(f"v_add_f32 v{l0}, v{l0}, v{Sc+2*j}")
            a.I(f"v_add_f32 v{l1}, v{l1}, v{Sc+2*j+1}")
            a.I(f"v_cvt_pk_bf16_f32 v{P+j}, v{Sc+2*j}, v{Sc+2*j+1}")
        if has_pv:
            exp_pair(0)
        for k in range(8):
            if has_qk:
                a.I(f"s_waitcnt lgkmcnt({min(15, 7 - k + vissued)})")
                c = ("0" if boundary else vr(NM,16)) if k == 0 else None
                mfma(a, Sn, KF + 4*k, Q + 4*k, c)
            if has_pv:
                v_read(vslot, 2*k); v_read(vslot, 2*k + 1); vissued += 2
                if k < 7: exp_pair(k + 1)
                else: a.I("s_nop 0")
                fin_pair(k)
        if has_pv:
            a.I("s_waitcnt lgkmcnt(8)")
            for i in range(4):
                mfma(a, O + 16*i, VF + 4*i, P)
            a.I("s_waitcnt lgkmcnt(0)")
            for i in range(4):
                mfma(a, O + 16*i, VF + 16 + 4*i, P + 4)
        if has_qk and not boundary:
            a.I(f"v_max3_f32 v{mx}, v{Sn}, v{Sn+1}, v{Sn+2}")
            for j in range(6):
                a.I(f"v_max3_f32 v{mx}, v{mx}, v{Sn+3+2*j}, v{Sn+4+2*j}")
            a.I(f"v_max_f32 v{mx}, v{mx}, v{Sn+15}")
            a.I(f"v_cmp_lt_f32 vcc, {hex(f2u(cfg.thresh))}, v{mx}")
            a.I(f"s_cbranch_vccnz L_A_rare{tag}")
            a.L(f"L_A_ret{tag}")
            rare_blocks.append((tag, Sn))
        if boundary:
            if has_pv:
                a.I(f"v_add_f32 v{l0}, v{l0}, v{l1}")
                a.I(f"s_sub_u32 s{sA}, s{sU}, 1")
                a.I(f"s_lshl_b32 s{sA}, s{sA}, 2")
                a.I(f"s_lshr_b32 s{sA}, 0x08CF, s{sA}")
                a.I(f"s_and_b32 s{sA}, s{sA}, 15")
                a.I(f"s_lshl_b32 s{sA}, s{sA}, 13")
                a.I(f"v_mov_b32 v{t0}, v{l0}")
                a.I(f"s_lshl_b32 s{sBq}, s{sW}, 13")
                a.I(f"s_add_u32 s{sA}, s{sA}, s{sBq}")
                a.I(f"v_permlane32_swap_b32 v{l0}, v{t0}")
                a.I(f"v_add_u32 v{vAd}, s{sA}, v{vL16}")
                a.I(f"v_add_f32 v{l0}, v{l0}, v{t0}")
                a.I(f"v_rcp_f32 v{inv}, v{l0}")
                a.I("s_nop 0")
                a.I(f"v_mov_b32 v{inv+1}, v{inv}")
                a.I("s_nop 7")
                for j in range(32):
                    a.I(f"v_pk_mul_f32 {vr(O+2*j,2)}, {vr(O+2*j,2)}, {vr(inv,2)}")
                for j in range(32):
                    a.I(f"v_cvt_pk_bf16_f32 v{KF+j}, v{O+2*j}, v{O+2*j+1}")
                for k in range(8):
                    a.I(f"ds_write_b128 v{vAd}, {vr(KF+4*k,4)} offset:{k*1024}")
            if has_qk:
                if not has_pv: a.I("s_nop 12")
                a.I(f"v_max3_f32 v{mx}, v{Sn}, v{Sn+1}, v{Sn+2}")
                for j in range(6):
                    a.I(f"v_max3_f32 v{mx}, v{mx}, v{Sn+3+2*j}, v{Sn+4+2*j}")
                a.I(f"v_max_f32 v{mx}, v{mx}, v{Sn+15}")
                a.I(f"v_mov_b32 v{t0}, v{mx}")
                a.I("s_nop 1")
                a.I(f"v_permlane32_swap_b32 v{mx}, v{t0}")
                a.I("s_nop 0")
                a.I(f"v_max_f32 v{mx}, v{mx}, v{t0}")
                for j in range(16):
                    a.I(f"v_sub_f32 v{Sn+j}, v{Sn+j}, v{mx}")
                for j in range(16):
                    a.I(f"v_sub_f32 v{NM+j}, 0, v{mx}")
                for j in range(64):
                    a.I(f"v_mov_b32 v{O+j}, 0")
                a.I(f"v_mov_b32 v{l0}, 0")
                a.I(f"v_mov_b32 v{l1}, 0")
            if has_pv:
                a.I("s_waitcnt lgkmcnt(0)")

    a.I(f"s_mov_b32 s{sU}, 0")
    step(0, has_qk=True, has_pv=False, boundary=True, tag="_b0")
    a.I(f"s_mov_b32 s{sIt}, 0")
    a.I("s_branch L_A_pos1")
    a.L("L_A_loop")
    a.I(f"s_cmp_lg_u32 s{sIt}, 0")
    a.I("s_cbranch_scc1 L_A_pos0reg")
    a.I(f"s_cmp_eq_u32 s{sU}, 4")
    a.I("s_cbranch_scc1 L_A_last")
    step(0, boundary=True, tag="_bm")
    a.I("s_branch L_A_pos1")
    a.L("L_A_pos0reg")
    step(0, tag="_0")
    a.L("L_A_pos1")
    step(1, tag="_1")
    step(2, tag="_2")
    step(3, tag="_3")
    a.I(f"s_add_u32 s{sIt}, s{sIt}, 1")
    a.I(f"s_cmp_eq_u32 s{sIt}, 4")
    a.I("s_cbranch_scc0 L_A_loop")
    a.I(f"s_mov_b32 s{sIt}, 0")
    a.I(f"s_add_u32 s{sU}, s{sU}, 1")
    a.I("s_branch L_A_loop")
    a.L("L_A_last")
    step(0, has_qk=False, has_pv=True, boundary=True, tag="_bl")
    a.I("s_branch L_tail")
    for tag, Sn in rare_blocks:
        a.L(f"L_A_rare{tag}")
        a.I("s_nop 15")
        a.I(f"v_mov_b32 v{t0}, v{mx}")
        a.I("s_nop 1")
        a.I(f"v_permlane32_swap_b32 v{mx}, v{t0}")
        a.I("s_nop 0")
        a.I(f"v_max_f32 v{mx}, v{mx}, v{t0}")
        a.I(f"v_max_f32 v{mx}, 0, v{mx}")
        a.I(f"v_sub_f32 v{t0}, 0, v{mx}")
        a.I(f"v_exp_f32 v{inv}, v{t0}")
        a.I("s_nop 0")
        a.I(f"v_mov_b32 v{inv+1}, v{inv}")
        for j in range(16):
            a.I(f"v_sub_f32 v{Sn+j}, v{Sn+j}, v{mx}")
        for j in range(16):
            a.I(f"v_sub_f32 v{NM+j}, v{NM+j}, v{mx}")
        for j in range(32):
            a.I(f"v_pk_mul_f32 {vr(O+2*j,2)}, {vr(O+2*j,2)}, {vr(inv,2)}")
        a.I(f"v_mul_f32 v{l0}, v{l0}, v{inv}")
        a.I(f"v_mul_f32 v{l1}, v{l1}, v{inv}")
        a.I("s_nop 1")
        a.I(f"s_branch L_A_ret{tag}")

def gen_tail(a):
    a.L("L_tail")
    ACC = 0; AF = 96; BF = 112; vAA = 136; vB = 138; vWO = 139; vB2 = 140; vL = 141; vSt = 142; PK = 144
    SWO = 32; SPT = 36
    sSt = 48; sA = 49; sBq = 50; sStage = 51; sIt = 52; sRow = 53; sC = 54
    a.I("s_setprio 0")
    a.I("s_waitcnt lgkmcnt(0)")
    a.I("s_barrier")
    if cfg.stamps:
        a.I(f"s_cmp_lt_u32 s{S_WAVE}, 3")
        a.I("s_cbranch_scc1 L_T_st0")
        stamp_setup(a)
        a.L("L_T_st0")
    stamp(a, 246)
    srd(a, SWO, P_WO, 0x400000)
    srd(a, SPT, P_WS, PART_BYTES)
    a.I(f"v_mbcnt_lo_u32_b32 v{vL}, -1, 0")
    a.I(f"v_mbcnt_hi_u32_b32 v{vL}, -1, v{vL}")
    a.I(f"s_lshl_b32 s{sStage}, s{S_WAVE}, 13")
    a.I(f"s_add_u32 s{sStage}, s{sStage}, 24576")
    a.I(f"s_cmp_eq_u32 s{S_WAVE}, 5")
    a.I(f"s_cselect_b32 s{sStage}, 90112, s{sStage}")
    a.I(f"s_cmp_eq_u32 s{S_WAVE}, 6")
    a.I(f"s_cselect_b32 s{sStage}, 147456, s{sStage}")
    a.I(f"s_cmp_eq_u32 s{S_WAVE}, 7")
    a.I(f"s_cselect_b32 s{sStage}, 155648, s{sStage}")
    a.I(f"v_lshrrev_b32 v1, 3, v{vL}")
    a.I(f"v_and_b32 v2, 7, v{vL}")
    a.I("v_bfe_u32 v3, v1, 1, 1")
    a.I("v_lshlrev_b32 v3, 2, v3")
    a.I("v_xor_b32 v2, v2, v3")
    a.I("v_lshlrev_b32 v2, 4, v2")
    a.I(f"v_lshl_add_u32 v{vWO}, v1, 10, v2")
    a.I(f"s_lshl_b32 s{sRow}, s{S_HB}, 17")
    a.I(f"s_lshl_b32 s{sA}, s{S_WAVE}, 7")
    a.I(f"s_add_u32 s{sRow}, s{sRow}, s{sA}")
    def issue_wo(slot, delta):
        a.I(f"s_add_u32 s{sA}, s{sSt}, s{S_B}")
        if delta: a.I(f"s_add_u32 s{sA}, s{sA}, {delta}")
        a.I(f"s_and_b32 s{sA}, s{sA}, 15")
        a.I(f"s_lshl_b32 s{sA}, s{sA}, 15")
        a.I(f"s_add_u32 s{sA}, s{sA}, s{sRow}")
        for i in range(4):
            a.I(f"s_add_u32 m0, s{sStage}, {slot*4096 + i*1024}")
            if i: a.I(f"s_add_u32 s{sA}, s{sA}, 8192")
            else: a.I("s_nop 0")
            a.I(f"buffer_load_dwordx4 v{vWO}, s[{SWO}:{SWO+3}], s{sA} offen{cfg.wo_pol} lds")
    a.I(f"s_mov_b32 s{sSt}, 0")
    issue_wo(0, 0); issue_wo(1, 1)
    a.I(f"v_and_b32 v1, 15, v{vL}")
    a.I(f"v_lshrrev_b32 v2, 4, v{vL}")
    a.I("v_lshrrev_b32 v3, 2, v1")
    a.I("v_lshrrev_b32 v4, 1, v2")
    a.I("v_lshl_add_u32 v5, v4, 2, v3")
    a.I("v_lshlrev_b32 v5, 7, v5")
    a.I("v_and_b32 v6, 1, v1")
    a.I("v_lshl_add_u32 v5, v6, 5, v5")
    a.I("v_and_b32 v6, 1, v2")
    a.I("v_lshl_add_u32 v5, v6, 4, v5")
    a.I("v_bfe_u32 v6, v1, 1, 1")
    a.I("v_lshl_add_u32 v5, v6, 3, v5")
    a.I(f"v_add_u32 v5, s{sStage}, v5")
    a.I("v_lshrrev_b32 v3, 1, v3")
    for nt in range(2):
        a.I(f"v_xor_b32 v6, {nt}, v3")
        a.I(f"v_lshl_add_u32 v{vAA+nt}, v6, 6, v5")
    a.I(f"v_lshlrev_b32 v{vB}, 4, v{vL}")
    for j in range(96):
        a.I(f"v_mov_b32 v{ACC+j}, 0")
    def sub(slot, last_pair):
        a.I(f"s_add_u32 s{sA}, s{sSt}, s{S_B}")
        if slot: a.I(f"s_add_u32 s{sA}, s{sA}, {slot}")
        a.I(f"s_and_b32 s{sA}, s{sA}, 15")
        a.I(f"s_lshr_b32 s{sBq}, s{sA}, 2")
        a.I(f"s_lshl_b32 s{sBq}, s{sBq}, 2")
        a.I(f"s_lshr_b32 s{sBq}, 0x08CF, s{sBq}")
        a.I(f"s_and_b32 s{sBq}, s{sBq}, 15")
        a.I(f"s_lshl_b32 s{sBq}, s{sBq}, 13")
        a.I(f"s_and_b32 s{sA}, s{sA}, 3")
        a.I(f"s_lshl_b32 s{sA}, s{sA}, 11")
        a.I(f"s_add_u32 s{sBq}, s{sBq}, s{sA}")
        a.I(f"v_add_u32 v{vB2}, s{sBq}, v{vB}")
        a.I(f"s_waitcnt vmcnt({0 if (last_pair and slot == 1) else 4})")
        for ks in range(2):
            for nt in range(2):
                for sec in range(2):
                    a.I(f"ds_read_b64_tr_b16 {vr(AF + ks*8 + nt*4 + sec*2, 2)}, v{vAA+nt} offset:{slot*4096 + ks*2048 + sec*1024}")
            for qt in range(3):
                a.I(f"ds_read_b128 {vr(BF + ks*12 + qt*4, 4)}, v{vB2} offset:{qt*8192 + ks*1024}")
        a.I("s_waitcnt lgkmcnt(7)")
        for nt in range(2):
            for qt in range(3):
                mfma(a, ACC + (nt*3 + qt)*16, AF + nt*4, BF + qt*4)
        a.I("s_waitcnt lgkmcnt(0)")
        if not last_pair: issue_wo(slot, slot + 2)
        for nt in range(2):
            for qt in range(3):
                mfma(a, ACC + (nt*3 + qt)*16, AF + 8 + nt*4, BF + 12 + qt*4)
    a.I(f"s_mov_b32 s{sIt}, 7")
    a.L("L_T_loop")
    sub(0, False); sub(1, False)
    a.I(f"s_add_u32 s{sSt}, s{sSt}, 2")
    a.I(f"s_sub_u32 s{sIt}, s{sIt}, 1")
    a.I(f"s_cmp_lg_u32 s{sIt}, 0")
    a.I("s_cbranch_scc1 L_T_loop")
    sub(0, True); sub(1, True)
    a.I(f"s_lshl_b32 s{sA}, s{S_P}, 4")
    a.I(f"s_add_u32 s{sA}, s{sA}, s{S_B}")
    a.I(f"s_lshl_b32 s{sA}, s{sA}, 3")
    a.I(f"s_add_u32 s{sA}, s{sA}, s{S_WAVE}")
    a.I(f"s_lshl_b32 s{sA}, s{sA}, 3")
    a.I(f"s_add_u32 s{sA}, s{sA}, s{S_MJ}")
    a.I(f"s_mul_i32 s{sA}, s{sA}, 12288")
    stamp(a, 246)
    a.I("s_nop 7")
    for qt in range(3):
        for nt in range(2):
            base = ACC + (nt*3 + qt)*16
            pk = PK + ((qt*2 + nt) % 2) * 8
            if (qt, nt) == (0, 0): a.I("s_nop 3")
            for j in range(8):
                a.I(f"v_cvt_pk_bf16_f32 v{pk+j}, v{base+2*j}, v{base+2*j+1}")
            ch = (qt*2 + nt)*2
            a.I(f"s_add_u32 s{sBq}, s{sA}, {ch*1024}")
            a.I(f"buffer_store_dwordx4 {vr(pk,4)}, v{vB}, s[{SPT}:{SPT+3}], s{sBq} offen{cfg.part_st_pol}")
            a.I(f"buffer_store_dwordx4 {vr(pk+4,4)}, v{vB}, s[{SPT}:{SPT+3}], s{sBq} offen offset:1024{cfg.part_st_pol}")
    a.I("s_waitcnt vmcnt(0)")
    stamp(a, 246)
    a.I("s_waitcnt vmcnt(0)")
    a.L("L_k1_end")
    a.I("s_endpgm")

def gen_k2(a):
    a.I("s_cmp_ge_u32 s2, 256")
    a.I("s_cbranch_scc1 L_k2_end")
    a.I("s_load_dwordx2 s[4:5], s[0:1], 80")
    a.I("s_load_dwordx2 s[6:7], s[0:1], 96")
    a.I("v_lshrrev_b32 v1, 6, v0")
    a.I("v_and_b32 v0, 63, v0")
    a.I("v_readfirstlane_b32 s20, v1")
    a.I("s_waitcnt lgkmcnt(0)")
    srd(a, 8, 6, PART_BYTES)
    srd(a, 12, 4, 16*96*1024*2)
    a.I("s_mul_i32 s21, s2, 98304")
    a.I("s_lshl_b32 s22, s20, 11")
    a.I("s_add_u32 s21, s21, s22")
    a.I("v_lshlrev_b32 v1, 4, v0")
    for src in range(8):
        a.I(f"s_add_u32 s23, s21, {src*12288}")
        a.I(f"buffer_load_dwordx4 {vr(8+src*8,4)}, v1, s[8:11], s23 offen{cfg.part_ld_pol}")
        a.I(f"buffer_load_dwordx4 {vr(8+src*8+4,4)}, v1, s[8:11], s23 offen offset:1024{cfg.part_ld_pol}")
    a.I("s_lshr_b32 s24, s2, 3")
    a.I("s_and_b32 s25, s2, 7")
    a.I("s_and_b32 s26, s24, 15")
    a.I("s_lshr_b32 s27, s24, 4")
    a.I("s_lshr_b32 s28, s20, 1")
    a.I("s_and_b32 s29, s20, 1")
    a.I("s_mul_i32 s26, s26, 96")
    a.I("s_lshl_b32 s28, s28, 5")
    a.I("s_add_u32 s26, s26, s28")
    a.I("s_lshl_b32 s26, s26, 11")
    a.I("s_lshl_b32 s27, s27, 10")
    a.I("s_lshl_b32 s25, s25, 7")
    a.I("s_lshl_b32 s29, s29, 6")
    a.I("s_add_u32 s26, s26, s27")
    a.I("s_add_u32 s26, s26, s25")
    a.I("s_add_u32 s26, s26, s29")
    a.I("v_and_b32 v2, 31, v0")
    a.I("v_lshlrev_b32 v2, 11, v2")
    a.I("v_lshrrev_b32 v3, 5, v0")
    a.I("v_lshl_add_u32 v2, v3, 5, v2")
    ACC = 80
    for src in range(8):
        a.I(f"s_waitcnt vmcnt({14 - 2*src})")
        for d in range(8):
            r = 8 + src*8 + d
            if src == 0:
                a.I(f"v_lshlrev_b32 v{ACC+2*d}, 16, v{r}")
                a.I(f"v_and_b32 v{ACC+2*d+1}, 0xffff0000, v{r}")
            else:
                a.I(f"v_lshlrev_b32 v4, 16, v{r}")
                a.I(f"v_and_b32 v5, 0xffff0000, v{r}")
                a.I(f"v_add_f32 v{ACC+2*d}, v{ACC+2*d}, v4")
                a.I(f"v_add_f32 v{ACC+2*d+1}, v{ACC+2*d+1}, v5")
    for d in range(8):
        a.I(f"v_cvt_pk_bf16_f32 v{8+d}, v{ACC+2*d}, v{ACC+2*d+1}")
    a.I("buffer_store_dwordx4 v[8:11], v2, s[12:15], s26 offen")
    a.I("buffer_store_dwordx4 v[12:15], v2, s[12:15], s26 offen offset:16")
    a.I("s_waitcnt vmcnt(0)")
    a.L("L_k2_end")
    a.I("s_endpgm")

def kd(a, name, vgpr, sgpr):
    a.raw('.section .rodata,"a"')
    a.raw(".p2align 6")
    a.raw(f".amdhsa_kernel {name}")
    a.raw(f"  .amdhsa_next_free_vgpr {vgpr}")
    a.raw(f"  .amdhsa_next_free_sgpr {sgpr}")
    a.raw(f"  .amdhsa_accum_offset {(vgpr+3)//4*4}")
    a.raw("  .amdhsa_group_segment_fixed_size 0")
    a.raw("  .amdhsa_kernarg_size 104")
    a.raw("  .amdhsa_user_sgpr_count 2")
    a.raw("  .amdhsa_user_sgpr_kernarg_segment_ptr 1")
    a.raw("  .amdhsa_system_sgpr_workgroup_id_x 1")
    a.raw(".end_amdhsa_kernel")

def build():
    a = Asm()
    a.raw(f"; @launch kernel={K1} grid=(256,1,1) block=(512,1,1) lds={LDS_BYTES}")
    a.raw(f"; @launch kernel={K2} grid=(256,1,1) block=(384,1,1) lds=0")
    a.raw('.amdgcn_target "amdgcn-amd-amdhsa--gfx950"')
    a.raw(".text")
    a.raw(f".globl {K1}")
    a.raw(".p2align 8")
    a.raw(f".type {K1},@function")
    a.L(K1)
    setup_common(a)
    gen_loader(a, True)
    gen_loader(a, False)
    gen_G(a)
    gen_A(a)
    gen_tail(a)
    a.raw(f".globl {K2}")
    a.raw(".p2align 8")
    a.raw(f".type {K2},@function")
    a.L(K2)
    gen_k2(a)
    kd(a, K1, 256, 102 if cfg.stamps else 64)
    a.raw(".text")
    kd(a, K2, 96, 40)
    return a

if __name__ == "__main__":
    for arg in sys.argv[2:]:
        k, v = arg.split("=", 1)
        cur = getattr(cfg, k)
        if isinstance(cur, bool): v = v in ("1", "True", "true")
        elif isinstance(cur, int): v = int(v)
        elif isinstance(cur, float): v = float(v)
        else: v = v.replace("_", " ")
        setattr(cfg, k, v)
    a = build()
    out = sys.argv[1] if len(sys.argv) > 1 else f"cdna_kernels/{NAME}.s"
    open(out, "w").write(a.text())
    probs = check_file(a.lines)
    for p in probs: print("HAZARD", p)
    print("wrote", out, len(a.lines), "lines;", len(probs), "hazard reports")
```

```python
import struct, math, sys
from asmlib import Asm, vr, sr, check_file

NAME = "concat_heads__mha_block_cached__gqa_block_cached__near_ridge"
K1 = "attn_kernel"
K2 = "reduce_kernel"

def f2u(x): return struct.unpack("<I", struct.pack("<f", x))[0]
CSCALE = math.log2(math.e) / math.sqrt(128.0)

KR = 0; VR = 32768; WR = 65536; QH = 98304; XS = 98304
OS = [122880, 98304, 65536, 0]
STAGE = [24576, 32768, 40960, 49152, 57344, 90112, 147456, 155648]
LDS_BYTES = 163840
PART_BYTES = 32 * 64 * 12288

class Cfg:
    kv_pol = " nt"
    wq_pol = ""
    x_pol = ""
    wo_pol = ""
    part_st_pol = ""
    part_ld_pol = ""
    thresh = 8.0
    debug_dump = False
    prio_a = 0
    stamps = False
    dbgst = False

cfg = Cfg()

S_WAVE = 20; S_XCD = 21; S_SLOT = 22; S_P = 23; S_B = 24; S_HQ = 25; S_HB = 26; S_RHO = 27; S_MJ = 28
P_X = 8; P_K = 10; P_V = 12; P_WQ = 14; P_WO = 16; P_WS = 18

def srd(a, dst, ptr, size):
    a.I(f"s_mov_b32 s{dst}, s{ptr}")
    a.I(f"s_and_b32 s{dst+1}, s{ptr+1}, 0xffff")
    a.I(f"s_mov_b32 s{dst+2}, {hex(size)}")
    a.I(f"s_mov_b32 s{dst+3}, 0x20000")

def setup_common(a):
    a.I("s_cmp_ge_u32 s2, 256")
    a.I("s_cbranch_scc1 L_k1_end")
    a.I(f"s_and_b32 s{S_XCD}, s2, 7")
    a.I(f"s_lshr_b32 s{S_SLOT}, s2, 3")
    a.I(f"s_lshr_b32 s{S_P}, s{S_XCD}, 2")
    a.I(f"s_mul_i32 s3, s{S_P}, 40")
    a.I("s_add_u32 s4, s0, s3")
    a.I("s_addc_u32 s5, s1, 0")
    a.I("s_load_dwordx8 s[8:15], s[4:5], 0")
    a.I(f"s_load_dwordx2 s[{P_WO}:{P_WO+1}], s[4:5], 32")
    a.I(f"s_load_dwordx2 s[{P_WS}:{P_WS+1}], s[0:1], 96")
    a.I("v_lshrrev_b32 v1, 6, v0")
    a.I("v_and_b32 v0, 63, v0")
    a.I(f"v_readfirstlane_b32 s{S_WAVE}, v1")
    a.I(f"s_lshr_b32 s{S_B}, s{S_SLOT}, 1")
    a.I(f"s_and_b32 s{S_HQ}, s{S_SLOT}, 1")
    a.I(f"s_and_b32 s3, s{S_XCD}, 3")
    a.I("s_lshl_b32 s3, s3, 1")
    a.I(f"s_add_u32 s{S_MJ}, s3, s{S_HQ}")
    a.I(f"s_lshl_b32 s{S_HB}, s{S_MJ}, 2")
    a.I(f"s_and_b32 s{S_RHO}, s{S_B}, 3")
    a.I(f"s_lshl_b32 s{S_RHO}, s{S_RHO}, 2")
    a.I("s_waitcnt lgkmcnt(0)")
    dbg_setup(a)
    a.I(f"s_cmp_lt_u32 s{S_WAVE}, 3")
    a.I("s_cbranch_scc1 L_roleA")
    a.I(f"s_cmp_eq_u32 s{S_WAVE}, 3")
    a.I("s_cbranch_scc1 L_roleLK")
    a.I(f"s_cmp_eq_u32 s{S_WAVE}, 7")
    a.I("s_cbranch_scc1 L_roleLV")
    a.I("s_branch L_roleG")

def gen_loader(a, isK):
    tag = "LK" if isK else "LV"
    D = 13 if isK else 14
    a.L(f"L_role{tag}")
    SKV = 32; SW = 36
    srd(a, SKV, P_K if isK else P_V, 0x4000000)
    srd(a, SW, P_WQ, 0x400000)
    sKB = 48; sT = 49; sTau = 50; sN = 51; sA = 52; sBq = 53; sWrow = 54
    a.I(f"s_lshl_b32 s{sKB}, s{S_B}, 5")
    a.I(f"s_add_u32 s{sKB}, s{sKB}, s{S_HB}")
    a.I(f"s_lshl_b32 s{sKB}, s{sKB}, 17")
    a.I("v_and_b32 v1, 15, v0")
    a.I("v_lshrrev_b32 v2, 4, v0")
    if isK:
        for j in range(4):
            a.I(f"v_add_u32 v3, {4*j}, v2")
            a.I("v_xor_b32 v3, v1, v3")
            a.I("v_lshlrev_b32 v3, 4, v3")
            a.I(f"v_lshl_add_u32 v{4+j}, v2, 8, v3")
    else:
        a.I("v_lshlrev_b32 v3, 2, v2")
        a.I("v_xor_b32 v3, v1, v3")
        a.I("v_lshlrev_b32 v3, 4, v3")
        for j in range(4):
            a.I(f"v_lshl_add_u32 v{4+j}, v2, 8, v3")
    a.I("v_lshlrev_b32 v3, 2, v2")
    a.I("v_xor_b32 v3, v1, v3")
    a.I("v_lshlrev_b32 v3, 4, v3")
    a.I("v_lshlrev_b32 v9, 13, v2")
    a.I("v_add_u32 v8, v9, v3")
    i0 = 0 if isK else 4
    LB = KR if isK else VR

    def issue_w():
        a.I(f"s_add_u32 s{sA}, s{S_RHO}, s{sTau}")
        a.I(f"s_and_b32 s{sA}, s{sA}, 15")
        a.I(f"s_lshl_b32 s{sA}, s{sA}, 18")
        a.I(f"s_lshr_b32 s{sBq}, s{sTau}, 4")
        a.I(f"s_add_u32 s{sBq}, s{sBq}, s{S_HB}")
        a.I(f"s_lshl_b32 s{sBq}, s{sBq}, 8")
        a.I(f"s_add_u32 s{sA}, s{sA}, s{sBq}")
        a.I(f"s_add_u32 s{sA}, s{sA}, {i0*4*8192}")
        a.I(f"s_and_b32 s{sBq}, s{sTau}, 3")
        a.I(f"s_lshl_b32 s{sBq}, s{sBq}, 13")
        a.I(f"s_add_u32 s{sBq}, s{sBq}, {WR + i0*1024}")
        for i in range(4):
            a.I(f"s_add_u32 m0, s{sBq}, {i*1024}")
            if i: a.I(f"s_add_u32 s{sA}, s{sA}, 32768")
            else: a.I("s_nop 0")
            a.I(f"buffer_load_dwordx4 v8, s[{SW}:{SW+3}], s{sA} offen{cfg.wq_pol} lds")
        a.I(f"s_add_u32 s{sTau}, s{sTau}, 1")

    def issue_kv():
        a.I(f"s_lshl_b32 s{sA}, s{sT}, 13")
        a.I(f"s_add_u32 s{sA}, s{sA}, s{sKB}")
        a.I(f"s_and_b32 s{sBq}, s{sT}, 3")
        a.I(f"s_lshl_b32 s{sBq}, s{sBq}, 13")
        for half in range(2):
            a.I(f"s_add_u32 m0, s{sBq}, {LB + half*4096}")
            if half: a.I(f"s_add_u32 s{sA}, s{sA}, 4096")
            else: a.I("s_nop 0")
            for j in range(4):
                off = f" offset:{j*1024}" if j else ""
                a.I(f"buffer_load_dwordx4 v{4+j}, s[{SKV}:{SKV+3}], s{sA} offen{off}{cfg.kv_pol} lds")
        a.I(f"s_add_u32 s{sT}, s{sT}, 1")

    a.I(f"s_mov_b32 s{sT}, 0")
    a.I(f"s_mov_b32 s{sTau}, 0")
    for _ in range(3): issue_w()
    a.I("s_waitcnt vmcnt(8)")
    def cnt(n):
        if n < 0: return 4
        return (4 if n <= 60 else 0) + (8 if D <= n <= D + 63 else 0)
    phases = []
    for n in range(81):
        key = (D <= n <= D + 63, n <= 60, cnt(n) + cnt(n - 1))
        if phases and phases[-1][0] == key: phases[-1][2] = n
        else: phases.append([key, n, n])
    for pi, (key, n0, n1) in enumerate(phases):
        kv, w, N = key
        cntn = n1 - n0 + 1
        if cntn > 1:
            a.I(f"s_mov_b32 s{sN}, {cntn}")
            a.L(f"L_{tag}_ph{pi}")
        a.I("s_barrier")
        if kv: issue_kv()
        if w: issue_w()
        a.I(f"s_waitcnt vmcnt({N})")
        if cntn > 1:
            a.I(f"s_sub_u32 s{sN}, s{sN}, 1")
            a.I(f"s_cmp_lg_u32 s{sN}, 0")
            a.I(f"s_cbranch_scc1 L_{tag}_ph{pi}")
    a.I("s_branch L_tail")

STAMP_BASE = 32 << 20
def stamp_setup(a):
    if not cfg.stamps: return
    a.I(f"s_mov_b32 s92, s{P_WS}")
    a.I(f"s_and_b32 s93, s{P_WS+1}, 0xffff")
    a.I(f"s_mov_b32 s94, {hex(STAMP_BASE + (2<<20))}")
    a.I("s_mov_b32 s95, 0x20000")
    a.I("s_lshl_b32 s96, s2, 3")
    a.I(f"s_add_u32 s96, s96, s{S_WAVE}")
    a.I("s_lshl_b32 s96, s96, 10")
    a.I(f"s_add_u32 s96, s96, {STAMP_BASE}")
def stamp(a, vtmp):
    if not cfg.stamps: return
    a.I("s_memrealtime s[98:99]")
    a.I("s_waitcnt lgkmcnt(0)")
    a.I(f"v_mov_b32 v{vtmp}, s98")
    a.I(f"v_mov_b32 v{vtmp+1}, 0")
    a.I(f"buffer_store_dword v{vtmp}, v{vtmp+1}, s[92:95], s96 offen")
    a.I("s_add_u32 s96, s96, 4")

def dbg_setup(a):
    if not cfg.dbgst: return
    a.I("s_load_dwordx2 s[90:91], s[0:1], 88")
    a.I("s_waitcnt lgkmcnt(0)")
    a.I("s_mov_b32 s92, s90")
    a.I("s_and_b32 s93, s91, 0xffff")
    a.I("s_mov_b32 s94, 0")
    a.I("s_mov_b32 s96, 0")
    a.I(f"s_cmp_lg_u32 s{S_WAVE}, 0")
    a.I("s_cbranch_scc1 L_dbg_done")
    a.I("s_cmp_eq_u32 s2, 0")
    a.I("s_cselect_b32 s94, 256, 0")
    a.I("s_cmp_eq_u32 s2, 129")
    a.I("s_cselect_b32 s94, 256, s94")
    a.I("s_cselect_b32 s96, 32, 0")
    a.L("L_dbg_done")
    a.I("s_mov_b32 s95, 0x20000")
def dbg_stamp(a, vtmp):
    if not cfg.dbgst: return
    a.I("s_memrealtime s[98:99]")
    a.I("s_waitcnt lgkmcnt(0)")
    a.I(f"v_mov_b32 v{vtmp}, s98")
    a.I(f"v_mov_b32 v{vtmp+1}, 0")
    a.I(f"buffer_store_dword v{vtmp}, v{vtmp+1}, s[92:95], s96 offen")
    a.I("s_add_u32 s96, s96, 4")

def mfma(a, d, A, B, c=None):
    cs = vr(d, 16) if c is None else (c if isinstance(c, str) else vr(c, 16))
    a.I(f"v_mfma_f32_32x32x16_bf16 {vr(d,16)}, {vr(A,4)}, {vr(B,4)}, {cs}")

def kpattern_addr(a, dst, n, base_imm=None):
    a.I("v_and_b32 v1, 31, v0")
    a.I("v_lshrrev_b32 v2, 5, v0")
    a.I("v_and_b32 v3, 15, v0")
    a.I("v_xor_b32 v3, v3, v2")
    a.I("v_lshlrev_b32 v1, 8, v1")
    for k in range(n):
        a.I(f"v_xor_b32 v2, {2*k}, v3")
        a.I(f"v_lshl_add_u32 v{dst+k}, v2, 4, v1")
        if base_imm: a.I(f"v_add_u32 v{dst+k}, {base_imm}, v{dst+k}")

def gen_G(a):
    a.L("L_roleG")
    X = 0; QA = 128; WF = 192; vWA = 224; vXA = 228; vXO = 236; vL16 = 240; vLane = 241
    SX = 32
    sW = 48; sA = 49; sBq = 50; sU = 51; sXb = 52; sC = 56; sPi = 53
    srd(a, SX, P_X, 16*96*512*2)
    a.I(f"s_sub_u32 s{sW}, s{S_WAVE}, 4")
    a.I(f"s_mov_b32 s{sC}, {hex(f2u(CSCALE))}")
    a.I(f"s_mov_b32 s{sC+1}, {hex(f2u(CSCALE))}")
    a.I(f"v_mov_b32 v{vLane}, v0")
    a.I(f"v_lshlrev_b32 v{vL16}, 4, v0")
    kpattern_addr(a, vXA, 8)
    a.I(f"s_lshl_b32 s{sA}, s{sW}, 14")
    a.I(f"s_add_u32 s{sA}, s{sA}, {XS}")
    for k in range(8):
        a.I(f"v_add_u32 v{vXA+k}, s{sA}, v{vXA+k}")
    a.I("v_and_b32 v1, 15, v0")
    a.I("v_lshrrev_b32 v2, 4, v0")
    for j in range(4):
        a.I(f"v_add_u32 v3, {4*j}, v2")
        a.I("v_xor_b32 v3, v1, v3")
        a.I("v_lshlrev_b32 v3, 4, v3")
        a.I(f"v_lshl_add_u32 v{vXO+j}, v2, 10, v3")
    a.I("v_lshrrev_b32 v3, 2, v1")
    a.I("v_lshrrev_b32 v4, 1, v2")
    a.I("v_lshl_add_u32 v5, v4, 3, v3")
    a.I("v_lshlrev_b32 v5, 8, v5")
    a.I("v_and_b32 v6, 1, v2")
    a.I("v_lshlrev_b32 v6, 5, v6")
    a.I("v_add_u32 v5, v5, v6")
    a.I("v_and_b32 v6, 1, v1")
    a.I("v_lshl_add_u32 v5, v6, 4, v5")
    a.I("v_bfe_u32 v6, v1, 1, 1")
    a.I("v_lshl_add_u32 v5, v6, 3, v5")
    a.I(f"v_add_u32 v5, {WR}, v5")
    for i in range(4):
        a.I(f"v_xor_b32 v6, {i}, v3")
        a.I(f"v_lshl_add_u32 v{vWA+i}, v6, 6, v5")
    a.I(f"s_mul_i32 s{sXb}, s{S_B}, 98304")
    a.I(f"s_lshl_b32 s{sA}, s{sW}, 15")
    a.I(f"s_add_u32 s{sXb}, s{sXb}, s{sA}")

    def issue_x(piece):
        a.I(f"s_lshr_b32 s{sPi}, s{S_RHO}, 2")
        a.I(f"s_add_u32 s{sPi}, s{sPi}, {piece}")
        a.I(f"s_and_b32 s{sPi}, s{sPi}, 3")
        a.I(f"s_lshl_b32 s{sPi}, s{sPi}, 8")
        a.I(f"s_add_u32 s{sA}, s{sXb}, s{sPi}")
        a.I(f"s_lshl_b32 s{sBq}, s{sW}, 14")
        a.I(f"s_add_u32 s{sBq}, s{sBq}, {XS + (piece & 1)*8192}")
        for i in range(8):
            a.I(f"s_add_u32 m0, s{sBq}, {i*1024}")
            if i: a.I(f"s_add_u32 s{sA}, s{sA}, 4096")
            else: a.I("s_nop 0")
            a.I(f"buffer_load_dwordx4 v{vXO + (i & 3)}, s[{SX}:{SX+3}], s{sA} offen{cfg.x_pol} lds")
    issue_x(0); issue_x(1)

    def task(t, first_unit):
        slot = t & 3
        a.I("s_barrier")
        if first_unit and t % 4 == 0:
            piece = t // 4
            a.I(f"s_waitcnt vmcnt({8 if piece < 3 else 0})")
            for k in range(8):
                a.I(f"ds_read_b128 {vr(X + piece*32 + k*4, 4)}, v{vXA+k} offset:{(piece&1)*8192}")
            a.I("s_waitcnt lgkmcnt(0)")
            if piece + 2 < 4: issue_x(piece + 2)
        def rd(ks, i, sec):
            dst = WF + ks*16 + i*4 + sec*2
            a.I(f"ds_read_b64_tr_b16 {vr(dst,2)}, v{vWA+i} offset:{slot*8192 + ks*4096 + sec*1024}")
        for i in range(4):
            rd(0, i, 0); rd(0, i, 1)
        for i in range(2):
            rd(1, i, 0); rd(1, i, 1)
        a.I("s_waitcnt lgkmcnt(4)")
        xb = X + t*8
        c0 = "0" if t == 0 else None
        mfma(a, QA + 0, WF + 0, xb, c0)
        rd(1, 2, 0); rd(1, 2, 1)
        mfma(a, QA + 16, WF + 4, xb, c0)
        rd(1, 3, 0); rd(1, 3, 1)
        mfma(a, QA + 32, WF + 8, xb, c0)
        mfma(a, QA + 48, WF + 12, xb, c0)
        a.I("s_waitcnt lgkmcnt(4)")
        mfma(a, QA + 0, WF + 16, xb + 4)
        mfma(a, QA + 16, WF + 20, xb + 4)
        a.I("s_waitcnt lgkmcnt(0)")
        mfma(a, QA + 32, WF + 24, xb + 4)
        mfma(a, QA + 48, WF + 28, xb + 4)

    def handoff():
        a.I(f"s_cmp_lt_u32 s{sU}, 3")
        a.I(f"s_cselect_b32 s{sA}, {QH//8192}, {WR//8192}")
        a.I(f"s_add_u32 s{sA}, s{sA}, s{sW}")
        a.I(f"s_lshl_b32 s{sA}, s{sA}, 13")
        a.I(f"v_add_u32 v242, s{sA}, v{vL16}")
        a.I("s_nop 7")
        for j in range(32):
            if j == 24: a.I("s_nop 1")
            a.I(f"v_pk_mul_f32 {vr(QA+2*j,2)}, {vr(QA+2*j,2)}, s[{sC}:{sC+1}]")
        for j in range(32):
            a.I(f"v_cvt_pk_bf16_f32 v{WF+j}, v{QA+2*j}, v{QA+2*j+1}")
        for k in range(8):
            a.I(f"ds_write_b128 v242, {vr(WF+4*k,4)} offset:{k*1024}")
        a.I("s_waitcnt lgkmcnt(0)")

    a.I(f"s_mov_b32 s{sU}, 0")
    for t in range(16): task(t, True)
    handoff()
    a.I(f"s_mov_b32 s{sU}, 1")
    a.L("L_G_unit")
    for t in range(16): task(t, False)
    handoff()
    a.I(f"s_add_u32 s{sU}, s{sU}, 1")
    a.I(f"s_cmp_lt_u32 s{sU}, 4")
    a.I("s_cbranch_scc1 L_G_unit")
    a.I(f"s_mov_b32 s{sU}, 17")
    a.L("L_G_idle")
    a.I("s_barrier")
    a.I(f"s_sub_u32 s{sU}, s{sU}, 1")
    a.I(f"s_cmp_lg_u32 s{sU}, 0")
    a.I("s_cbranch_scc1 L_G_idle")
    a.I("s_branch L_tail")

def gen_A(a):
    a.L("L_roleA")
    O = 0; Q = 64; S = [96, 112]; NM = 128; P = 144; KF = 152; VF = 184
    vKA = 216; vVA = 224; l0 = 228; l1 = 229; mx = 230; t0 = 231; t1 = 232; inv = 234; vL16 = 240; vAd = 241
    sIt = 48; sU = 49; sA = 50; sBq = 51; sW = S_WAVE
    if cfg.prio_a: a.I(f"s_setprio {cfg.prio_a}")
    stamp_setup(a)
    stamp(a, 246)
    dbg_stamp(a, 246)
    a.I(f"v_lshlrev_b32 v{vL16}, 4, v0")
    a.I("v_mov_b32 v244, v0")
    kpattern_addr(a, vKA, 8)
    a.I("v_and_b32 v1, 15, v0")
    a.I("v_lshrrev_b32 v2, 4, v0")
    a.I("v_lshrrev_b32 v3, 2, v1")
    a.I("v_lshrrev_b32 v4, 1, v2")
    a.I("v_lshl_add_u32 v5, v4, 2, v3")
    a.I("v_lshlrev_b32 v5, 8, v5")
    a.I("v_and_b32 v6, 1, v2")
    a.I("v_lshlrev_b32 v6, 5, v6")
    a.I("v_add_u32 v5, v5, v6")
    a.I("v_bfe_u32 v6, v1, 1, 1")
    a.I("v_lshl_add_u32 v5, v6, 4, v5")
    a.I("v_and_b32 v6, 1, v1")
    a.I("v_lshl_add_u32 v5, v6, 3, v5")
    a.I(f"v_add_u32 v5, {VR}, v5")
    for i in range(4):
        a.I(f"v_xor_b32 v6, {i}, v3")
        a.I(f"v_lshl_add_u32 v{vVA+i}, v6, 6, v5")
    a.I(f"s_mov_b32 s{sIt}, 16")
    a.L("L_A_idle")
    a.I("s_barrier")
    stamp(a, 246)
    a.I(f"s_sub_u32 s{sIt}, s{sIt}, 1")
    a.I(f"s_cmp_lg_u32 s{sIt}, 0")
    a.I("s_cbranch_scc1 L_A_idle")

    rare_blocks = []

    def k_reads(slot):
        for k in range(8):
            a.I(f"ds_read_b128 {vr(KF+4*k,4)}, v{vKA+k} offset:{slot*8192}")
    def v_read(slot, idx):
        ks, i, sec = idx // 8, (idx // 2) % 4, idx % 2
        dst = VF + (ks*4 + i)*4 + sec*2
        a.I(f"ds_read_b64_tr_b16 {vr(dst,2)}, v{vVA+i} offset:{slot*8192 + ks*4096 + sec*2048}")

    def softmax_ops(Sc):
        ops = []
        for j in range(8):
            ops.append([f"v_exp_f32 v{Sc+2*j}, v{Sc+2*j}", f"v_exp_f32 v{Sc+2*j+1}, v{Sc+2*j+1}"])
        return ops

    def step(pos, has_qk=True, has_pv=True, boundary=False, tag=""):
        Sn = S[pos % 2]; Sc = S[(pos + 1) % 2]
        vslot = (pos + 3) % 4
        a.I("s_barrier")
        stamp(a, 246)
        if boundary: dbg_stamp(a, 246)
        nq = 0
        if boundary and has_qk:
            a.I(f"s_cmp_lt_u32 s{sU}, 3")
            a.I(f"s_cselect_b32 s{sA}, {QH//8192}, {WR//8192}")
            a.I(f"s_add_u32 s{sA}, s{sA}, s{sW}")
            a.I(f"s_lshl_b32 s{sA}, s{sA}, 13")
            a.I(f"v_add_u32 v{vAd}, s{sA}, v{vL16}")
            for k in range(8):
                a.I(f"ds_read_b128 {vr(Q+4*k,4)}, v{vAd} offset:{k*1024}")
            a.I("s_waitcnt lgkmcnt(0)")
        if has_qk: k_reads(pos)
        vissued = 0
        def exp_pair(j):
            a.I(f"v_exp_f32 v{Sc+2*j}, v{Sc+2*j}")
            a.I(f"v_exp_f32 v{Sc+2*j+1}, v{Sc+2*j+1}")
        def fin_pair(j):
            a.I(f"v_add_f32 v{l0}, v{l0}, v{Sc+2*j}")
            a.I(f"v_add_f32 v{l1}, v{l1}, v{Sc+2*j+1}")
            a.I(f"v_cvt_pk_bf16_f32 v{P+j}, v{Sc+2*j}, v{Sc+2*j+1}")
        if has_pv:
            exp_pair(0)
        for k in range(8):
            if has_qk:
                a.I(f"s_waitcnt lgkmcnt({min(15, 7 - k + vissued)})")
                c = ("0" if boundary else vr(NM,16)) if k == 0 else None
                mfma(a, Sn, KF + 4*k, Q + 4*k, c)
            if has_pv:
                v_read(vslot, 2*k); v_read(vslot, 2*k + 1); vissued += 2
                if k < 7: exp_pair(k + 1)
                else: a.I("s_nop 0")
                fin_pair(k)
        if has_pv:
            a.I("s_waitcnt lgkmcnt(8)")
            for i in range(4):
                mfma(a, O + 16*i, VF + 4*i, P)
            a.I("s_waitcnt lgkmcnt(0)")
            for i in range(4):
                mfma(a, O + 16*i, VF + 16 + 4*i, P + 4)
        if has_qk and not boundary:
            a.I(f"v_max3_f32 v{mx}, v{Sn}, v{Sn+1}, v{Sn+2}")
            for j in range(6):
                a.I(f"v_max3_f32 v{mx}, v{mx}, v{Sn+3+2*j}, v{Sn+4+2*j}")
            a.I(f"v_max_f32 v{mx}, v{mx}, v{Sn+15}")
            a.I(f"v_cmp_lt_f32 vcc, {hex(f2u(cfg.thresh))}, v{mx}")
            a.I(f"s_cbranch_vccnz L_A_rare{tag}")
            a.L(f"L_A_ret{tag}")
            rare_blocks.append((tag, Sn))
        if boundary:
            if has_pv:
                a.I(f"v_add_f32 v{l0}, v{l0}, v{l1}")
                a.I(f"s_sub_u32 s{sA}, s{sU}, 1")
                a.I(f"s_lshl_b32 s{sA}, s{sA}, 2")
                a.I(f"s_lshr_b32 s{sA}, 0x08CF, s{sA}")
                a.I(f"s_and_b32 s{sA}, s{sA}, 15")
                a.I(f"s_lshl_b32 s{sA}, s{sA}, 13")
                a.I(f"v_mov_b32 v{t0}, v{l0}")
                a.I(f"s_lshl_b32 s{sBq}, s{sW}, 13")
                a.I(f"s_add_u32 s{sA}, s{sA}, s{sBq}")
                a.I(f"v_permlane32_swap_b32 v{l0}, v{t0}")
                a.I(f"v_add_u32 v{vAd}, s{sA}, v{vL16}")
                a.I(f"v_add_f32 v{l0}, v{l0}, v{t0}")
                a.I(f"v_rcp_f32 v{inv}, v{l0}")
                a.I("s_nop 0")
                a.I(f"v_mov_b32 v{inv+1}, v{inv}")
                a.I("s_nop 7")
                for j in range(32):
                    a.I(f"v_pk_mul_f32 {vr(O+2*j,2)}, {vr(O+2*j,2)}, {vr(inv,2)}")
                for j in range(32):
                    a.I(f"v_cvt_pk_bf16_f32 v{KF+j}, v{O+2*j}, v{O+2*j+1}")
                for k in range(8):
                    a.I(f"ds_write_b128 v{vAd}, {vr(KF+4*k,4)} offset:{k*1024}")
            if has_qk:
                if not has_pv: a.I("s_nop 12")
                a.I(f"v_max3_f32 v{mx}, v{Sn}, v{Sn+1}, v{Sn+2}")
                for j in range(6):
                    a.I(f"v_max3_f32 v{mx}, v{mx}, v{Sn+3+2*j}, v{Sn+4+2*j}")
                a.I(f"v_max_f32 v{mx}, v{mx}, v{Sn+15}")
                a.I(f"v_mov_b32 v{t0}, v{mx}")
                a.I("s_nop 1")
                a.I(f"v_permlane32_swap_b32 v{mx}, v{t0}")
                a.I("s_nop 0")
                a.I(f"v_max_f32 v{mx}, v{mx}, v{t0}")
                for j in range(16):
                    a.I(f"v_sub_f32 v{Sn+j}, v{Sn+j}, v{mx}")
                for j in range(16):
                    a.I(f"v_sub_f32 v{NM+j}, 0, v{mx}")
                for j in range(64):
                    a.I(f"v_mov_b32 v{O+j}, 0")
                a.I(f"v_mov_b32 v{l0}, 0")
                a.I(f"v_mov_b32 v{l1}, 0")
            if has_pv:
                a.I("s_waitcnt lgkmcnt(0)")

    a.I(f"s_mov_b32 s{sU}, 0")
    step(0, has_qk=True, has_pv=False, boundary=True, tag="_b0")
    a.I(f"s_mov_b32 s{sIt}, 0")
    a.I("s_branch L_A_pos1")
    a.L("L_A_loop")
    a.I(f"s_cmp_lg_u32 s{sIt}, 0")
    a.I("s_cbranch_scc1 L_A_pos0reg")
    a.I(f"s_cmp_eq_u32 s{sU}, 4")
    a.I("s_cbranch_scc1 L_A_last")
    step(0, boundary=True, tag="_bm")
    a.I("s_branch L_A_pos1")
    a.L("L_A_pos0reg")
    step(0, tag="_0")
    a.L("L_A_pos1")
    step(1, tag="_1")
    step(2, tag="_2")
    step(3, tag="_3")
    a.I(f"s_add_u32 s{sIt}, s{sIt}, 1")
    a.I(f"s_cmp_eq_u32 s{sIt}, 4")
    a.I("s_cbranch_scc0 L_A_loop")
    a.I(f"s_mov_b32 s{sIt}, 0")
    a.I(f"s_add_u32 s{sU}, s{sU}, 1")
    a.I("s_branch L_A_loop")
    a.L("L_A_last")
    step(0, has_qk=False, has_pv=True, boundary=True, tag="_bl")
    a.I("s_branch L_tail")
    for tag, Sn in rare_blocks:
        a.L(f"L_A_rare{tag}")
        a.I("s_nop 15")
        a.I(f"v_mov_b32 v{t0}, v{mx}")
        a.I("s_nop 1")
        a.I(f"v_permlane32_swap_b32 v{mx}, v{t0}")
        a.I("s_nop 0")
        a.I(f"v_max_f32 v{mx}, v{mx}, v{t0}")
        a.I(f"v_max_f32 v{mx}, 0, v{mx}")
        a.I(f"v_sub_f32 v{t0}, 0, v{mx}")
        a.I(f"v_exp_f32 v{inv}, v{t0}")
        a.I("s_nop 0")
        a.I(f"v_mov_b32 v{inv+1}, v{inv}")
        for j in range(16):
            a.I(f"v_sub_f32 v{Sn+j}, v{Sn+j}, v{mx}")
        for j in range(16):
            a.I(f"v_sub_f32 v{NM+j}, v{NM+j}, v{mx}")
        for j in range(32):
            a.I(f"v_pk_mul_f32 {vr(O+2*j,2)}, {vr(O+2*j,2)}, {vr(inv,2)}")
        a.I(f"v_mul_f32 v{l0}, v{l0}, v{inv}")
        a.I(f"v_mul_f32 v{l1}, v{l1}, v{inv}")
        a.I("s_nop 1")
        a.I(f"s_branch L_A_ret{tag}")

def gen_tail(a):
    a.L("L_tail")
    ACC = 0; AF = 96; BF = 112; vAA = 136; vB = 138; vWO = 139; vB2 = 140; vL = 141; vSt = 142; PK = 144
    SWO = 32; SPT = 36
    sSt = 48; sA = 49; sBq = 50; sStage = 51; sIt = 52; sRow = 53; sC = 54
    a.I("s_setprio 0")
    a.I("s_waitcnt lgkmcnt(0)")
    a.I("s_barrier")
    if cfg.stamps:
        a.I(f"s_cmp_lt_u32 s{S_WAVE}, 3")
        a.I("s_cbranch_scc1 L_T_st0")
        stamp_setup(a)
        a.L("L_T_st0")
    stamp(a, 246)
    dbg_stamp(a, 246)
    srd(a, SWO, P_WO, 0x400000)
    srd(a, SPT, P_WS, PART_BYTES)
    a.I(f"v_mbcnt_lo_u32_b32 v{vL}, -1, 0")
    a.I(f"v_mbcnt_hi_u32_b32 v{vL}, -1, v{vL}")
    a.I(f"s_lshl_b32 s{sStage}, s{S_WAVE}, 13")
    a.I(f"s_add_u32 s{sStage}, s{sStage}, 24576")
    a.I(f"s_cmp_eq_u32 s{S_WAVE}, 5")
    a.I(f"s_cselect_b32 s{sStage}, 90112, s{sStage}")
    a.I(f"s_cmp_eq_u32 s{S_WAVE}, 6")
    a.I(f"s_cselect_b32 s{sStage}, 147456, s{sStage}")
    a.I(f"s_cmp_eq_u32 s{S_WAVE}, 7")
    a.I(f"s_cselect_b32 s{sStage}, 155648, s{sStage}")
    a.I(f"v_lshrrev_b32 v1, 3, v{vL}")
    a.I(f"v_and_b32 v2, 7, v{vL}")
    a.I("v_bfe_u32 v3, v1, 1, 1")
    a.I("v_lshlrev_b32 v3, 2, v3")
    a.I("v_xor_b32 v2, v2, v3")
    a.I("v_lshlrev_b32 v2, 4, v2")
    a.I(f"v_lshl_add_u32 v{vWO}, v1, 10, v2")
    a.I(f"s_lshl_b32 s{sRow}, s{S_HB}, 17")
    a.I(f"s_lshl_b32 s{sA}, s{S_WAVE}, 7")
    a.I(f"s_add_u32 s{sRow}, s{sRow}, s{sA}")
    def issue_wo(slot, delta):
        a.I(f"s_add_u32 s{sA}, s{sSt}, s{S_B}")
        if delta: a.I(f"s_add_u32 s{sA}, s{sA}, {delta}")
        a.I(f"s_and_b32 s{sA}, s{sA}, 15")
        a.I(f"s_lshl_b32 s{sA}, s{sA}, 15")
        a.I(f"s_add_u32 s{sA}, s{sA}, s{sRow}")
        for i in range(4):
            a.I(f"s_add_u32 m0, s{sStage}, {slot*4096 + i*1024}")
            if i: a.I(f"s_add_u32 s{sA}, s{sA}, 8192")
            else: a.I("s_nop 0")
            a.I(f"buffer_load_dwordx4 v{vWO}, s[{SWO}:{SWO+3}], s{sA} offen{cfg.wo_pol} lds")
    a.I(f"s_mov_b32 s{sSt}, 0")
    issue_wo(0, 0); issue_wo(1, 1)
    a.I(f"v_and_b32 v1, 15, v{vL}")
    a.I(f"v_lshrrev_b32 v2, 4, v{vL}")
    a.I("v_lshrrev_b32 v3, 2, v1")
    a.I("v_lshrrev_b32 v4, 1, v2")
    a.I("v_lshl_add_u32 v5, v4, 2, v3")
    a.I("v_lshlrev_b32 v5, 7, v5")
    a.I("v_and_b32 v6, 1, v1")
    a.I("v_lshl_add_u32 v5, v6, 5, v5")
    a.I("v_and_b32 v6, 1, v2")
    a.I("v_lshl_add_u32 v5, v6, 4, v5")
    a.I("v_bfe_u32 v6, v1, 1, 1")
    a.I("v_lshl_add_u32 v5, v6, 3, v5")
    a.I(f"v_add_u32 v5, s{sStage}, v5")
    a.I("v_lshrrev_b32 v3, 1, v3")
    for nt in range(2):
        a.I(f"v_xor_b32 v6, {nt}, v3")
        a.I(f"v_lshl_add_u32 v{vAA+nt}, v6, 6, v5")
    a.I(f"v_lshlrev_b32 v{vB}, 4, v{vL}")
    for j in range(96):
        a.I(f"v_mov_b32 v{ACC+j}, 0")
    def sub(slot, last_pair):
        a.I(f"s_add_u32 s{sA}, s{sSt}, s{S_B}")
        if slot: a.I(f"s_add_u32 s{sA}, s{sA}, {slot}")
        a.I(f"s_and_b32 s{sA}, s{sA}, 15")
        a.I(f"s_lshr_b32 s{sBq}, s{sA}, 2")
        a.I(f"s_lshl_b32 s{sBq}, s{sBq}, 2")
        a.I(f"s_lshr_b32 s{sBq}, 0x08CF, s{sBq}")
        a.I(f"s_and_b32 s{sBq}, s{sBq}, 15")
        a.I(f"s_lshl_b32 s{sBq}, s{sBq}, 13")
        a.I(f"s_and_b32 s{sA}, s{sA}, 3")
        a.I(f"s_lshl_b32 s{sA}, s{sA}, 11")
        a.I(f"s_add_u32 s{sBq}, s{sBq}, s{sA}")
        a.I(f"v_add_u32 v{vB2}, s{sBq}, v{vB}")
        a.I(f"s_waitcnt vmcnt({0 if (last_pair and slot == 1) else 4})")
        for ks in range(2):
            for nt in range(2):
                for sec in range(2):
                    a.I(f"ds_read_b64_tr_b16 {vr(AF + ks*8 + nt*4 + sec*2, 2)}, v{vAA+nt} offset:{slot*4096 + ks*2048 + sec*1024}")
            for qt in range(3):
                a.I(f"ds_read_b128 {vr(BF + ks*12 + qt*4, 4)}, v{vB2} offset:{qt*8192 + ks*1024}")
        a.I("s_waitcnt lgkmcnt(7)")
        for nt in range(2):
            for qt in range(3):
                mfma(a, ACC + (nt*3 + qt)*16, AF + nt*4, BF + qt*4)
        a.I("s_waitcnt lgkmcnt(0)")
        if not last_pair: issue_wo(slot, slot + 2)
        for nt in range(2):
            for qt in range(3):
                mfma(a, ACC + (nt*3 + qt)*16, AF + 8 + nt*4, BF + 12 + qt*4)
    a.I(f"s_mov_b32 s{sIt}, 7")
    a.L("L_T_loop")
    sub(0, False); sub(1, False)
    a.I(f"s_add_u32 s{sSt}, s{sSt}, 2")
    a.I(f"s_sub_u32 s{sIt}, s{sIt}, 1")
    a.I(f"s_cmp_lg_u32 s{sIt}, 0")
    a.I("s_cbranch_scc1 L_T_loop")
    sub(0, True); sub(1, True)
    a.I(f"s_lshl_b32 s{sA}, s{S_P}, 4")
    a.I(f"s_add_u32 s{sA}, s{sA}, s{S_B}")
    a.I(f"s_lshl_b32 s{sA}, s{sA}, 3")
    a.I(f"s_add_u32 s{sA}, s{sA}, s{S_WAVE}")
    a.I(f"s_lshl_b32 s{sA}, s{sA}, 3")
    a.I(f"s_add_u32 s{sA}, s{sA}, s{S_MJ}")
    a.I(f"s_mul_i32 s{sA}, s{sA}, 12288")
    stamp(a, 246)
    dbg_stamp(a, 246)
    a.I("s_nop 7")
    for qt in range(3):
        for nt in range(2):
            base = ACC + (nt*3 + qt)*16
            pk = PK + ((qt*2 + nt) % 2) * 8
            if (qt, nt) == (0, 0): a.I("s_nop 3")
            for j in range(8):
                a.I(f"v_cvt_pk_bf16_f32 v{pk+j}, v{base+2*j}, v{base+2*j+1}")
            ch = (qt*2 + nt)*2
            a.I(f"s_add_u32 s{sBq}, s{sA}, {ch*1024}")
            a.I(f"buffer_store_dwordx4 {vr(pk,4)}, v{vB}, s[{SPT}:{SPT+3}], s{sBq} offen{cfg.part_st_pol}")
            a.I(f"buffer_store_dwordx4 {vr(pk+4,4)}, v{vB}, s[{SPT}:{SPT+3}], s{sBq} offen offset:1024{cfg.part_st_pol}")
    a.I("s_waitcnt vmcnt(0)")
    stamp(a, 246)
    dbg_stamp(a, 246)
    a.I("s_waitcnt vmcnt(0)")
    a.L("L_k1_end")
    a.I("s_endpgm")

def gen_k2(a):
    a.I("s_cmp_ge_u32 s2, 256")
    a.I("s_cbranch_scc1 L_k2_end")
    a.I("s_load_dwordx2 s[4:5], s[0:1], 80")
    a.I("s_load_dwordx2 s[6:7], s[0:1], 96")
    a.I("v_lshrrev_b32 v1, 6, v0")
    a.I("v_and_b32 v0, 63, v0")
    a.I("v_readfirstlane_b32 s20, v1")
    a.I("s_waitcnt lgkmcnt(0)")
    srd(a, 8, 6, PART_BYTES)
    srd(a, 12, 4, 16*96*1024*2)
    a.I("s_mul_i32 s21, s2, 98304")
    a.I("s_lshl_b32 s22, s20, 11")
    a.I("s_add_u32 s21, s21, s22")
    a.I("v_lshlrev_b32 v1, 4, v0")
    for src in range(8):
        a.I(f"s_add_u32 s23, s21, {src*12288}")
        a.I(f"buffer_load_dwordx4 {vr(8+src*8,4)}, v1, s[8:11], s23 offen{cfg.part_ld_pol}")
        a.I(f"buffer_load_dwordx4 {vr(8+src*8+4,4)}, v1, s[8:11], s23 offen offset:1024{cfg.part_ld_pol}")
    a.I("s_lshr_b32 s24, s2, 3")
    a.I("s_and_b32 s25, s2, 7")
    a.I("s_and_b32 s26, s24, 15")
    a.I("s_lshr_b32 s27, s24, 4")
    a.I("s_lshr_b32 s28, s20, 1")
    a.I("s_and_b32 s29, s20, 1")
    a.I("s_mul_i32 s26, s26, 96")
    a.I("s_lshl_b32 s28, s28, 5")
    a.I("s_add_u32 s26, s26, s28")
    a.I("s_lshl_b32 s26, s26, 11")
    a.I("s_lshl_b32 s27, s27, 10")
    a.I("s_lshl_b32 s25, s25, 7")
    a.I("s_lshl_b32 s29, s29, 6")
    a.I("s_add_u32 s26, s26, s27")
    a.I("s_add_u32 s26, s26, s25")
    a.I("s_add_u32 s26, s26, s29")
    a.I("v_and_b32 v2, 31, v0")
    a.I("v_lshlrev_b32 v2, 11, v2")
    a.I("v_lshrrev_b32 v3, 5, v0")
    a.I("v_lshl_add_u32 v2, v3, 5, v2")
    ACC = 80
    for src in range(8):
        a.I(f"s_waitcnt vmcnt({14 - 2*src})")
        for d in range(8):
            r = 8 + src*8 + d
            if src == 0:
                a.I(f"v_lshlrev_b32 v{ACC+2*d}, 16, v{r}")
                a.I(f"v_and_b32 v{ACC+2*d+1}, 0xffff0000, v{r}")
            else:
                a.I(f"v_lshlrev_b32 v4, 16, v{r}")
                a.I(f"v_and_b32 v5, 0xffff0000, v{r}")
                a.I(f"v_add_f32 v{ACC+2*d}, v{ACC+2*d}, v4")
                a.I(f"v_add_f32 v{ACC+2*d+1}, v{ACC+2*d+1}, v5")
    for d in range(8):
        a.I(f"v_cvt_pk_bf16_f32 v{8+d}, v{ACC+2*d}, v{ACC+2*d+1}")
    a.I("buffer_store_dwordx4 v[8:11], v2, s[12:15], s26 offen")
    a.I("buffer_store_dwordx4 v[12:15], v2, s[12:15], s26 offen offset:16")
    a.I("s_waitcnt vmcnt(0)")
    a.L("L_k2_end")
    a.I("s_endpgm")

def kd(a, name, vgpr, sgpr):
    a.raw('.section .rodata,"a"')
    a.raw(".p2align 6")
    a.raw(f".amdhsa_kernel {name}")
    a.raw(f"  .amdhsa_next_free_vgpr {vgpr}")
    a.raw(f"  .amdhsa_next_free_sgpr {sgpr}")
    a.raw(f"  .amdhsa_accum_offset {(vgpr+3)//4*4}")
    a.raw("  .amdhsa_group_segment_fixed_size 0")
    a.raw("  .amdhsa_kernarg_size 104")
    a.raw("  .amdhsa_user_sgpr_count 2")
    a.raw("  .amdhsa_user_sgpr_kernarg_segment_ptr 1")
    a.raw("  .amdhsa_system_sgpr_workgroup_id_x 1")
    a.raw(".end_amdhsa_kernel")

def build():
    a = Asm()
    a.raw(f"; @launch kernel={K1} grid=(256,1,1) block=(512,1,1) lds={LDS_BYTES}")
    a.raw(f"; @launch kernel={K2} grid=(256,1,1) block=(384,1,1) lds=0")
    a.raw('.amdgcn_target "amdgcn-amd-amdhsa--gfx950"')
    a.raw(".text")
    a.raw(f".globl {K1}")
    a.raw(".p2align 8")
    a.raw(f".type {K1},@function")
    a.L(K1)
    setup_common(a)
    gen_loader(a, True)
    gen_loader(a, False)
    gen_G(a)
    gen_A(a)
    gen_tail(a)
    a.raw(f".globl {K2}")
    a.raw(".p2align 8")
    a.raw(f".type {K2},@function")
    a.L(K2)
    gen_k2(a)
    kd(a, K1, 256, 102 if (cfg.stamps or cfg.dbgst) else 64)
    a.raw(".text")
    kd(a, K2, 96, 40)
    return a

if __name__ == "__main__":
    for arg in sys.argv[2:]:
        k, v = arg.split("=", 1)
        cur = getattr(cfg, k)
        if isinstance(cur, bool): v = v in ("1", "True", "true")
        elif isinstance(cur, int): v = int(v)
        elif isinstance(cur, float): v = float(v)
        else: v = v.replace("_", " ")
        setattr(cfg, k, v)
    a = build()
    out = sys.argv[1] if len(sys.argv) > 1 else f"cdna_kernels/{NAME}.s"
    open(out, "w").write(a.text())
    probs = check_file(a.lines)
    for p in probs: print("HAZARD", p)
    print("wrote", out, len(a.lines), "lines;", len(probs), "hazard reports")
```

```python
import struct, math, sys
from asmlib import Asm, vr, sr, check_file

NAME = "concat_heads__mha_block_cached__gqa_block_cached__near_ridge"
K1 = "attn_kernel"
K2 = "reduce_kernel"

def f2u(x): return struct.unpack("<I", struct.pack("<f", x))[0]
CSCALE = math.log2(math.e) / math.sqrt(128.0)

KR = 0; VR = 32768; WR = 65536; QH = 98304; XS = 98304
OS = [122880, 98304, 65536, 0]
STAGE = [24576, 32768, 40960, 49152, 57344, 90112, 147456, 155648]
LDS_BYTES = 163840
PART_BYTES = 32 * 64 * 12288

class Cfg:
    kv_pol = " nt"
    wq_pol = ""
    x_pol = ""
    wo_pol = ""
    part_st_pol = ""
    part_ld_pol = ""
    thresh = 8.0
    debug_dump = False
    prio_a = 0
    stamps = False
    dbgst = False

cfg = Cfg()

S_WAVE = 20; S_XCD = 21; S_SLOT = 22; S_P = 23; S_B = 24; S_HQ = 25; S_HB = 26; S_RHO = 27; S_MJ = 28
P_X = 8; P_K = 10; P_V = 12; P_WQ = 14; P_WO = 16; P_WS = 18

def srd(a, dst, ptr, size):
    a.I(f"s_mov_b32 s{dst}, s{ptr}")
    a.I(f"s_and_b32 s{dst+1}, s{ptr+1}, 0xffff")
    a.I(f"s_mov_b32 s{dst+2}, {hex(size)}")
    a.I(f"s_mov_b32 s{dst+3}, 0x20000")

def setup_common(a):
    a.I("s_cmp_ge_u32 s2, 256")
    a.I("s_cbranch_scc1 L_k1_end")
    a.I(f"s_and_b32 s{S_XCD}, s2, 7")
    a.I(f"s_lshr_b32 s{S_SLOT}, s2, 3")
    a.I(f"s_lshr_b32 s{S_P}, s{S_XCD}, 2")
    a.I(f"s_mul_i32 s3, s{S_P}, 40")
    a.I("s_add_u32 s4, s0, s3")
    a.I("s_addc_u32 s5, s1, 0")
    a.I("s_load_dwordx8 s[8:15], s[4:5], 0")
    a.I(f"s_load_dwordx2 s[{P_WO}:{P_WO+1}], s[4:5], 32")
    a.I(f"s_load_dwordx2 s[{P_WS}:{P_WS+1}], s[0:1], 96")
    a.I("v_lshrrev_b32 v1, 6, v0")
    a.I("v_and_b32 v0, 63, v0")
    a.I(f"v_readfirstlane_b32 s{S_WAVE}, v1")
    a.I(f"s_lshr_b32 s{S_B}, s{S_SLOT}, 1")
    a.I(f"s_and_b32 s{S_HQ}, s{S_SLOT}, 1")
    a.I(f"s_and_b32 s3, s{S_XCD}, 3")
    a.I("s_lshl_b32 s3, s3, 1")
    a.I(f"s_add_u32 s{S_MJ}, s3, s{S_HQ}")
    a.I(f"s_lshl_b32 s{S_HB}, s{S_MJ}, 2")
    a.I(f"s_and_b32 s{S_RHO}, s{S_B}, 3")
    a.I(f"s_lshl_b32 s{S_RHO}, s{S_RHO}, 2")
    a.I("s_waitcnt lgkmcnt(0)")
    dbg_setup(a)
    a.I(f"s_cmp_lt_u32 s{S_WAVE}, 3")
    a.I("s_cbranch_scc1 L_roleA")
    a.I(f"s_cmp_eq_u32 s{S_WAVE}, 3")
    a.I("s_cbranch_scc1 L_roleLK")
    a.I(f"s_cmp_eq_u32 s{S_WAVE}, 7")
    a.I("s_cbranch_scc1 L_roleLV")
    a.I("s_branch L_roleG")

def gen_loader(a, isK):
    tag = "LK" if isK else "LV"
    D = 13 if isK else 14
    a.L(f"L_role{tag}")
    SKV = 32; SW = 36
    srd(a, SKV, P_K if isK else P_V, 0x4000000)
    srd(a, SW, P_WQ, 0x400000)
    sKB = 48; sT = 49; sTau = 50; sN = 51; sA = 52; sBq = 53; sWrow = 54
    a.I(f"s_lshl_b32 s{sKB}, s{S_B}, 5")
    a.I(f"s_add_u32 s{sKB}, s{sKB}, s{S_HB}")
    a.I(f"s_lshl_b32 s{sKB}, s{sKB}, 17")
    a.I("v_and_b32 v1, 15, v0")
    a.I("v_lshrrev_b32 v2, 4, v0")
    if isK:
        for j in range(4):
            a.I(f"v_add_u32 v3, {4*j}, v2")
            a.I("v_xor_b32 v3, v1, v3")
            a.I("v_lshlrev_b32 v3, 4, v3")
            a.I(f"v_lshl_add_u32 v{4+j}, v2, 8, v3")
    else:
        a.I("v_lshlrev_b32 v3, 2, v2")
        a.I("v_xor_b32 v3, v1, v3")
        a.I("v_lshlrev_b32 v3, 4, v3")
        for j in range(4):
            a.I(f"v_lshl_add_u32 v{4+j}, v2, 8, v3")
    a.I("v_lshlrev_b32 v3, 2, v2")
    a.I("v_xor_b32 v3, v1, v3")
    a.I("v_lshlrev_b32 v3, 4, v3")
    a.I("v_lshlrev_b32 v9, 13, v2")
    a.I("v_add_u32 v8, v9, v3")
    i0 = 0 if isK else 4
    LB = KR if isK else VR

    def issue_w():
        a.I(f"s_add_u32 s{sA}, s{S_RHO}, s{sTau}")
        a.I(f"s_and_b32 s{sA}, s{sA}, 15")
        a.I(f"s_lshl_b32 s{sA}, s{sA}, 18")
        a.I(f"s_lshr_b32 s{sBq}, s{sTau}, 4")
        a.I(f"s_add_u32 s{sBq}, s{sBq}, s{S_HB}")
        a.I(f"s_lshl_b32 s{sBq}, s{sBq}, 8")
        a.I(f"s_add_u32 s{sA}, s{sA}, s{sBq}")
        a.I(f"s_add_u32 s{sA}, s{sA}, {i0*4*8192}")
        a.I(f"s_and_b32 s{sBq}, s{sTau}, 3")
        a.I(f"s_lshl_b32 s{sBq}, s{sBq}, 13")
        a.I(f"s_add_u32 s{sBq}, s{sBq}, {WR + i0*1024}")
        for i in range(4):
            a.I(f"s_add_u32 m0, s{sBq}, {i*1024}")
            if i: a.I(f"s_add_u32 s{sA}, s{sA}, 32768")
            else: a.I("s_nop 0")
            a.I(f"buffer_load_dwordx4 v8, s[{SW}:{SW+3}], s{sA} offen{cfg.wq_pol} lds")
        a.I(f"s_add_u32 s{sTau}, s{sTau}, 1")

    def issue_kv():
        a.I(f"s_lshl_b32 s{sA}, s{sT}, 13")
        a.I(f"s_add_u32 s{sA}, s{sA}, s{sKB}")
        a.I(f"s_and_b32 s{sBq}, s{sT}, 3")
        a.I(f"s_lshl_b32 s{sBq}, s{sBq}, 13")
        for half in range(2):
            a.I(f"s_add_u32 m0, s{sBq}, {LB + half*4096}")
            if half: a.I(f"s_add_u32 s{sA}, s{sA}, 4096")
            else: a.I("s_nop 0")
            for j in range(4):
                off = f" offset:{j*1024}" if j else ""
                a.I(f"buffer_load_dwordx4 v{4+j}, s[{SKV}:{SKV+3}], s{sA} offen{off}{cfg.kv_pol} lds")
        a.I(f"s_add_u32 s{sT}, s{sT}, 1")

    a.I(f"s_mov_b32 s{sT}, 0")
    a.I(f"s_mov_b32 s{sTau}, 0")
    for _ in range(3): issue_w()
    a.I("s_waitcnt vmcnt(8)")
    def cnt(n):
        if n < 0: return 4
        return (4 if n <= 60 else 0) + (8 if D <= n <= D + 63 else 0)
    phases = []
    for n in range(81):
        key = (D <= n <= D + 63, n <= 60, cnt(n) + cnt(n - 1))
        if phases and phases[-1][0] == key: phases[-1][2] = n
        else: phases.append([key, n, n])
    for pi, (key, n0, n1) in enumerate(phases):
        kv, w, N = key
        cntn = n1 - n0 + 1
        if cntn > 1:
            a.I(f"s_mov_b32 s{sN}, {cntn}")
            a.L(f"L_{tag}_ph{pi}")
        a.I("s_barrier")
        if kv: issue_kv()
        if w: issue_w()
        a.I(f"s_waitcnt vmcnt({N})")
        if cntn > 1:
            a.I(f"s_sub_u32 s{sN}, s{sN}, 1")
            a.I(f"s_cmp_lg_u32 s{sN}, 0")
            a.I(f"s_cbranch_scc1 L_{tag}_ph{pi}")
    a.I("s_branch L_tail")

STAMP_BASE = 32 << 20
def stamp_setup(a):
    if not cfg.stamps: return
    a.I(f"s_mov_b32 s92, s{P_WS}")
    a.I(f"s_and_b32 s93, s{P_WS+1}, 0xffff")
    a.I(f"s_mov_b32 s94, {hex(STAMP_BASE + (2<<20))}")
    a.I("s_mov_b32 s95, 0x20000")
    a.I("s_lshl_b32 s96, s2, 3")
    a.I(f"s_add_u32 s96, s96, s{S_WAVE}")
    a.I("s_lshl_b32 s96, s96, 10")
    a.I(f"s_add_u32 s96, s96, {STAMP_BASE}")
def stamp(a, vtmp):
    if not cfg.stamps: return
    a.I("s_memrealtime s[98:99]")
    a.I("s_waitcnt lgkmcnt(0)")
    a.I(f"v_mov_b32 v{vtmp}, s98")
    a.I(f"v_mov_b32 v{vtmp+1}, 0")
    a.I(f"buffer_store_dword v{vtmp}, v{vtmp+1}, s[92:95], s96 offen")
    a.I("s_add_u32 s96, s96, 4")

def dbg_setup(a):
    if not cfg.dbgst: return
    a.I(f"s_add_u32 s92, s{P_WS}, {40<<20}")
    a.I(f"s_addc_u32 s93, s{P_WS+1}, 0")
    a.I("s_and_b32 s93, s93, 0xffff")
    a.I("s_mov_b32 s94, 0")
    a.I("s_mov_b32 s96, 0")
    a.I(f"s_cmp_lg_u32 s{S_WAVE}, 0")
    a.I("s_cbranch_scc1 L_dbg_done")
    a.I("s_cmp_eq_u32 s2, 0")
    a.I("s_cselect_b32 s94, 256, 0")
    a.I("s_cmp_eq_u32 s2, 129")
    a.I("s_cselect_b32 s94, 256, s94")
    a.I("s_cselect_b32 s96, 32, 0")
    a.L("L_dbg_done")
    a.I("s_mov_b32 s95, 0x20000")
def dbg_stamp(a, vtmp):
    if not cfg.dbgst: return
    a.I("s_memrealtime s[98:99]")
    a.I("s_waitcnt lgkmcnt(0)")
    a.I(f"v_mov_b32 v{vtmp}, s98")
    a.I(f"v_mov_b32 v{vtmp+1}, 0")
    a.I(f"buffer_store_dword v{vtmp}, v{vtmp+1}, s[92:95], s96 offen")
    a.I("s_add_u32 s96, s96, 4")

def mfma(a, d, A, B, c=None):
    cs = vr(d, 16) if c is None else (c if isinstance(c, str) else vr(c, 16))
    a.I(f"v_mfma_f32_32x32x16_bf16 {vr(d,16)}, {vr(A,4)}, {vr(B,4)}, {cs}")

def kpattern_addr(a, dst, n, base_imm=None):
    a.I("v_and_b32 v1, 31, v0")
    a.I("v_lshrrev_b32 v2, 5, v0")
    a.I("v_and_b32 v3, 15, v0")
    a.I("v_xor_b32 v3, v3, v2")
    a.I("v_lshlrev_b32 v1, 8, v1")
    for k in range(n):
        a.I(f"v_xor_b32 v2, {2*k}, v3")
        a.I(f"v_lshl_add_u32 v{dst+k}, v2, 4, v1")
        if base_imm: a.I(f"v_add_u32 v{dst+k}, {base_imm}, v{dst+k}")

def gen_G(a):
    a.L("L_roleG")
    X = 0; QA = 128; WF = 192; vWA = 224; vXA = 228; vXO = 236; vL16 = 240; vLane = 241
    SX = 32
    sW = 48; sA = 49; sBq = 50; sU = 51; sXb = 52; sC = 56; sPi = 53
    srd(a, SX, P_X, 16*96*512*2)
    a.I(f"s_sub_u32 s{sW}, s{S_WAVE}, 4")
    a.I(f"s_mov_b32 s{sC}, {hex(f2u(CSCALE))}")
    a.I(f"s_mov_b32 s{sC+1}, {hex(f2u(CSCALE))}")
    a.I(f"v_mov_b32 v{vLane}, v0")
    a.I(f"v_lshlrev_b32 v{vL16}, 4, v0")
    kpattern_addr(a, vXA, 8)
    a.I(f"s_lshl_b32 s{sA}, s{sW}, 14")
    a.I(f"s_add_u32 s{sA}, s{sA}, {XS}")
    for k in range(8):
        a.I(f"v_add_u32 v{vXA+k}, s{sA}, v{vXA+k}")
    a.I("v_and_b32 v1, 15, v0")
    a.I("v_lshrrev_b32 v2, 4, v0")
    for j in range(4):
        a.I(f"v_add_u32 v3, {4*j}, v2")
        a.I("v_xor_b32 v3, v1, v3")
        a.I("v_lshlrev_b32 v3, 4, v3")
        a.I(f"v_lshl_add_u32 v{vXO+j}, v2, 10, v3")
    a.I("v_lshrrev_b32 v3, 2, v1")
    a.I("v_lshrrev_b32 v4, 1, v2")
    a.I("v_lshl_add_u32 v5, v4, 3, v3")
    a.I("v_lshlrev_b32 v5, 8, v5")
    a.I("v_and_b32 v6, 1, v2")
    a.I("v_lshlrev_b32 v6, 5, v6")
    a.I("v_add_u32 v5, v5, v6")
    a.I("v_and_b32 v6, 1, v1")
    a.I("v_lshl_add_u32 v5, v6, 4, v5")
    a.I("v_bfe_u32 v6, v1, 1, 1")
    a.I("v_lshl_add_u32 v5, v6, 3, v5")
    a.I(f"v_add_u32 v5, {WR}, v5")
    for i in range(4):
        a.I(f"v_xor_b32 v6, {i}, v3")
        a.I(f"v_lshl_add_u32 v{vWA+i}, v6, 6, v5")
    a.I(f"s_mul_i32 s{sXb}, s{S_B}, 98304")
    a.I(f"s_lshl_b32 s{sA}, s{sW}, 15")
    a.I(f"s_add_u32 s{sXb}, s{sXb}, s{sA}")

    def issue_x(piece):
        a.I(f"s_lshr_b32 s{sPi}, s{S_RHO}, 2")
        a.I(f"s_add_u32 s{sPi}, s{sPi}, {piece}")
        a.I(f"s_and_b32 s{sPi}, s{sPi}, 3")
        a.I(f"s_lshl_b32 s{sPi}, s{sPi}, 8")
        a.I(f"s_add_u32 s{sA}, s{sXb}, s{sPi}")
        a.I(f"s_lshl_b32 s{sBq}, s{sW}, 14")
        a.I(f"s_add_u32 s{sBq}, s{sBq}, {XS + (piece & 1)*8192}")
        for i in range(8):
            a.I(f"s_add_u32 m0, s{sBq}, {i*1024}")
            if i: a.I(f"s_add_u32 s{sA}, s{sA}, 4096")
            else: a.I("s_nop 0")
            a.I(f"buffer_load_dwordx4 v{vXO + (i & 3)}, s[{SX}:{SX+3}], s{sA} offen{cfg.x_pol} lds")
    issue_x(0); issue_x(1)

    def task(t, first_unit):
        slot = t & 3
        a.I("s_barrier")
        if first_unit and t % 4 == 0:
            piece = t // 4
            a.I(f"s_waitcnt vmcnt({8 if piece < 3 else 0})")
            for k in range(8):
                a.I(f"ds_read_b128 {vr(X + piece*32 + k*4, 4)}, v{vXA+k} offset:{(piece&1)*8192}")
            a.I("s_waitcnt lgkmcnt(0)")
            if piece + 2 < 4: issue_x(piece + 2)
        def rd(ks, i, sec):
            dst = WF + ks*16 + i*4 + sec*2
            a.I(f"ds_read_b64_tr_b16 {vr(dst,2)}, v{vWA+i} offset:{slot*8192 + ks*4096 + sec*1024}")
        for i in range(4):
            rd(0, i, 0); rd(0, i, 1)
        for i in range(2):
            rd(1, i, 0); rd(1, i, 1)
        a.I("s_waitcnt lgkmcnt(4)")
        xb = X + t*8
        c0 = "0" if t == 0 else None
        mfma(a, QA + 0, WF + 0, xb, c0)
        rd(1, 2, 0); rd(1, 2, 1)
        mfma(a, QA + 16, WF + 4, xb, c0)
        rd(1, 3, 0); rd(1, 3, 1)
        mfma(a, QA + 32, WF + 8, xb, c0)
        mfma(a, QA + 48, WF + 12, xb, c0)
        a.I("s_waitcnt lgkmcnt(4)")
        mfma(a, QA + 0, WF + 16, xb + 4)
        mfma(a, QA + 16, WF + 20, xb + 4)
        a.I("s_waitcnt lgkmcnt(0)")
        mfma(a, QA + 32, WF + 24, xb + 4)
        mfma(a, QA + 48, WF + 28, xb + 4)

    def handoff():
        a.I(f"s_cmp_lt_u32 s{sU}, 3")
        a.I(f"s_cselect_b32 s{sA}, {QH//8192}, {WR//8192}")
        a.I(f"s_add_u32 s{sA}, s{sA}, s{sW}")
        a.I(f"s_lshl_b32 s{sA}, s{sA}, 13")
        a.I(f"v_add_u32 v242, s{sA}, v{vL16}")
        a.I("s_nop 7")
        for j in range(32):
            if j == 24: a.I("s_nop 1")
            a.I(f"v_pk_mul_f32 {vr(QA+2*j,2)}, {vr(QA+2*j,2)}, s[{sC}:{sC+1}]")
        for j in range(32):
            a.I(f"v_cvt_pk_bf16_f32 v{WF+j}, v{QA+2*j}, v{QA+2*j+1}")
        for k in range(8):
            a.I(f"ds_write_b128 v242, {vr(WF+4*k,4)} offset:{k*1024}")
        a.I("s_waitcnt lgkmcnt(0)")

    a.I(f"s_mov_b32 s{sU}, 0")
    for t in range(16): task(t, True)
    handoff()
    a.I(f"s_mov_b32 s{sU}, 1")
    a.L("L_G_unit")
    for t in range(16): task(t, False)
    handoff()
    a.I(f"s_add_u32 s{sU}, s{sU}, 1")
    a.I(f"s_cmp_lt_u32 s{sU}, 4")
    a.I("s_cbranch_scc1 L_G_unit")
    a.I(f"s_mov_b32 s{sU}, 17")
    a.L("L_G_idle")
    a.I("s_barrier")
    a.I(f"s_sub_u32 s{sU}, s{sU}, 1")
    a.I(f"s_cmp_lg_u32 s{sU}, 0")
    a.I("s_cbranch_scc1 L_G_idle")
    a.I("s_branch L_tail")

def gen_A(a):
    a.L("L_roleA")
    O = 0; Q = 64; S = [96, 112]; NM = 128; P = 144; KF = 152; VF = 184
    vKA = 216; vVA = 224; l0 = 228; l1 = 229; mx = 230; t0 = 231; t1 = 232; inv = 234; vL16 = 240; vAd = 241
    sIt = 48; sU = 49; sA = 50; sBq = 51; sW = S_WAVE
    if cfg.prio_a: a.I(f"s_setprio {cfg.prio_a}")
    stamp_setup(a)
    stamp(a, 246)
    dbg_stamp(a, 246)
    a.I(f"v_lshlrev_b32 v{vL16}, 4, v0")
    a.I("v_mov_b32 v244, v0")
    kpattern_addr(a, vKA, 8)
    a.I("v_and_b32 v1, 15, v0")
    a.I("v_lshrrev_b32 v2, 4, v0")
    a.I("v_lshrrev_b32 v3, 2, v1")
    a.I("v_lshrrev_b32 v4, 1, v2")
    a.I("v_lshl_add_u32 v5, v4, 2, v3")
    a.I("v_lshlrev_b32 v5, 8, v5")
    a.I("v_and_b32 v6, 1, v2")
    a.I("v_lshlrev_b32 v6, 5, v6")
    a.I("v_add_u32 v5, v5, v6")
    a.I("v_bfe_u32 v6, v1, 1, 1")
    a.I("v_lshl_add_u32 v5, v6, 4, v5")
    a.I("v_and_b32 v6, 1, v1")
    a.I("v_lshl_add_u32 v5, v6, 3, v5")
    a.I(f"v_add_u32 v5, {VR}, v5")
    for i in range(4):
        a.I(f"v_xor_b32 v6, {i}, v3")
        a.I(f"v_lshl_add_u32 v{vVA+i}, v6, 6, v5")
    a.I(f"s_mov_b32 s{sIt}, 16")
    a.L("L_A_idle")
    a.I("s_barrier")
    stamp(a, 246)
    a.I(f"s_sub_u32 s{sIt}, s{sIt}, 1")
    a.I(f"s_cmp_lg_u32 s{sIt}, 0")
    a.I("s_cbranch_scc1 L_A_idle")

    rare_blocks = []

    def k_reads(slot):
        for k in range(8):
            a.I(f"ds_read_b128 {vr(KF+4*k,4)}, v{vKA+k} offset:{slot*8192}")
    def v_read(slot, idx):
        ks, i, sec = idx // 8, (idx // 2) % 4, idx % 2
        dst = VF + (ks*4 + i)*4 + sec*2
        a.I(f"ds_read_b64_tr_b16 {vr(dst,2)}, v{vVA+i} offset:{slot*8192 + ks*4096 + sec*2048}")

    def softmax_ops(Sc):
        ops = []
        for j in range(8):
            ops.append([f"v_exp_f32 v{Sc+2*j}, v{Sc+2*j}", f"v_exp_f32 v{Sc+2*j+1}, v{Sc+2*j+1}"])
        return ops

    def step(pos, has_qk=True, has_pv=True, boundary=False, tag=""):
        Sn = S[pos % 2]; Sc = S[(pos + 1) % 2]
        vslot = (pos + 3) % 4
        a.I("s_barrier")
        stamp(a, 246)
        if boundary: dbg_stamp(a, 246)
        nq = 0
        if boundary and has_qk:
            a.I(f"s_cmp_lt_u32 s{sU}, 3")
            a.I(f"s_cselect_b32 s{sA}, {QH//8192}, {WR//8192}")
            a.I(f"s_add_u32 s{sA}, s{sA}, s{sW}")
            a.I(f"s_lshl_b32 s{sA}, s{sA}, 13")
            a.I(f"v_add_u32 v{vAd}, s{sA}, v{vL16}")
            for k in range(8):
                a.I(f"ds_read_b128 {vr(Q+4*k,4)}, v{vAd} offset:{k*1024}")
            a.I("s_waitcnt lgkmcnt(0)")
        if has_qk: k_reads(pos)
        vissued = 0
        def exp_pair(j):
            a.I(f"v_exp_f32 v{Sc+2*j}, v{Sc+2*j}")
            a.I(f"v_exp_f32 v{Sc+2*j+1}, v{Sc+2*j+1}")
        def fin_pair(j):
            a.I(f"v_add_f32 v{l0}, v{l0}, v{Sc+2*j}")
            a.I(f"v_add_f32 v{l1}, v{l1}, v{Sc+2*j+1}")
            a.I(f"v_cvt_pk_bf16_f32 v{P+j}, v{Sc+2*j}, v{Sc+2*j+1}")
        if has_pv:
            exp_pair(0)
        for k in range(8):
            if has_qk:
                a.I(f"s_waitcnt lgkmcnt({min(15, 7 - k + vissued)})")
                c = ("0" if boundary else vr(NM,16)) if k == 0 else None
                mfma(a, Sn, KF + 4*k, Q + 4*k, c)
            if has_pv:
                v_read(vslot, 2*k); v_read(vslot, 2*k + 1); vissued += 2
                if k < 7: exp_pair(k + 1)
                else: a.I("s_nop 0")
                fin_pair(k)
        if has_pv:
            a.I("s_waitcnt lgkmcnt(8)")
            for i in range(4):
                mfma(a, O + 16*i, VF + 4*i, P)
            a.I("s_waitcnt lgkmcnt(0)")
            for i in range(4):
                mfma(a, O + 16*i, VF + 16 + 4*i, P + 4)
        if has_qk and not boundary:
            a.I(f"v_max3_f32 v{mx}, v{Sn}, v{Sn+1}, v{Sn+2}")
            for j in range(6):
                a.I(f"v_max3_f32 v{mx}, v{mx}, v{Sn+3+2*j}, v{Sn+4+2*j}")
            a.I(f"v_max_f32 v{mx}, v{mx}, v{Sn+15}")
            a.I(f"v_cmp_lt_f32 vcc, {hex(f2u(cfg.thresh))}, v{mx}")
            a.I(f"s_cbranch_vccnz L_A_rare{tag}")
            a.L(f"L_A_ret{tag}")
            rare_blocks.append((tag, Sn))
        if boundary:
            if has_pv:
                a.I(f"v_add_f32 v{l0}, v{l0}, v{l1}")
                a.I(f"s_sub_u32 s{sA}, s{sU}, 1")
                a.I(f"s_lshl_b32 s{sA}, s{sA}, 2")
                a.I(f"s_lshr_b32 s{sA}, 0x08CF, s{sA}")
                a.I(f"s_and_b32 s{sA}, s{sA}, 15")
                a.I(f"s_lshl_b32 s{sA}, s{sA}, 13")
                a.I(f"v_mov_b32 v{t0}, v{l0}")
                a.I(f"s_lshl_b32 s{sBq}, s{sW}, 13")
                a.I(f"s_add_u32 s{sA}, s{sA}, s{sBq}")
                a.I(f"v_permlane32_swap_b32 v{l0}, v{t0}")
                a.I(f"v_add_u32 v{vAd}, s{sA}, v{vL16}")
                a.I(f"v_add_f32 v{l0}, v{l0}, v{t0}")
                a.I(f"v_rcp_f32 v{inv}, v{l0}")
                a.I("s_nop 0")
                a.I(f"v_mov_b32 v{inv+1}, v{inv}")
                a.I("s_nop 7")
                for j in range(32):
                    a.I(f"v_pk_mul_f32 {vr(O+2*j,2)}, {vr(O+2*j,2)}, {vr(inv,2)}")
                for j in range(32):
                    a.I(f"v_cvt_pk_bf16_f32 v{KF+j}, v{O+2*j}, v{O+2*j+1}")
                for k in range(8):
                    a.I(f"ds_write_b128 v{vAd}, {vr(KF+4*k,4)} offset:{k*1024}")
            if has_qk:
                if not has_pv: a.I("s_nop 12")
                a.I(f"v_max3_f32 v{mx}, v{Sn}, v{Sn+1}, v{Sn+2}")
                for j in range(6):
                    a.I(f"v_max3_f32 v{mx}, v{mx}, v{Sn+3+2*j}, v{Sn+4+2*j}")
                a.I(f"v_max_f32 v{mx}, v{mx}, v{Sn+15}")
                a.I(f"v_mov_b32 v{t0}, v{mx}")
                a.I("s_nop 1")
                a.I(f"v_permlane32_swap_b32 v{mx}, v{t0}")
                a.I("s_nop 0")
                a.I(f"v_max_f32 v{mx}, v{mx}, v{t0}")
                for j in range(16):
                    a.I(f"v_sub_f32 v{Sn+j}, v{Sn+j}, v{mx}")
                for j in range(16):
                    a.I(f"v_sub_f32 v{NM+j}, 0, v{mx}")
                for j in range(64):
                    a.I(f"v_mov_b32 v{O+j}, 0")
                a.I(f"v_mov_b32 v{l0}, 0")
                a.I(f"v_mov_b32 v{l1}, 0")
            if has_pv:
                a.I("s_waitcnt lgkmcnt(0)")

    a.I(f"s_mov_b32 s{sU}, 0")
    step(0, has_qk=True, has_pv=False, boundary=True, tag="_b0")
    a.I(f"s_mov_b32 s{sIt}, 0")
    a.I("s_branch L_A_pos1")
    a.L("L_A_loop")
    a.I(f"s_cmp_lg_u32 s{sIt}, 0")
    a.I("s_cbranch_scc1 L_A_pos0reg")
    a.I(f"s_cmp_eq_u32 s{sU}, 4")
    a.I("s_cbranch_scc1 L_A_last")
    step(0, boundary=True, tag="_bm")
    a.I("s_branch L_A_pos1")
    a.L("L_A_pos0reg")
    step(0, tag="_0")
    a.L("L_A_pos1")
    step(1, tag="_1")
    step(2, tag="_2")
    step(3, tag="_3")
    a.I(f"s_add_u32 s{sIt}, s{sIt}, 1")
    a.I(f"s_cmp_eq_u32 s{sIt}, 4")
    a.I("s_cbranch_scc0 L_A_loop")
    a.I(f"s_mov_b32 s{sIt}, 0")
    a.I(f"s_add_u32 s{sU}, s{sU}, 1")
    a.I("s_branch L_A_loop")
    a.L("L_A_last")
    step(0, has_qk=False, has_pv=True, boundary=True, tag="_bl")
    a.I("s_branch L_tail")
    for tag, Sn in rare_blocks:
        a.L(f"L_A_rare{tag}")
        a.I("s_nop 15")
        a.I(f"v_mov_b32 v{t0}, v{mx}")
        a.I("s_nop 1")
        a.I(f"v_permlane32_swap_b32 v{mx}, v{t0}")
        a.I("s_nop 0")
        a.I(f"v_max_f32 v{mx}, v{mx}, v{t0}")
        a.I(f"v_max_f32 v{mx}, 0, v{mx}")
        a.I(f"v_sub_f32 v{t0}, 0, v{mx}")
        a.I(f"v_exp_f32 v{inv}, v{t0}")
        a.I("s_nop 0")
        a.I(f"v_mov_b32 v{inv+1}, v{inv}")
        for j in range(16):
            a.I(f"v_sub_f32 v{Sn+j}, v{Sn+j}, v{mx}")
        for j in range(16):
            a.I(f"v_sub_f32 v{NM+j}, v{NM+j}, v{mx}")
        for j in range(32):
            a.I(f"v_pk_mul_f32 {vr(O+2*j,2)}, {vr(O+2*j,2)}, {vr(inv,2)}")
        a.I(f"v_mul_f32 v{l0}, v{l0}, v{inv}")
        a.I(f"v_mul_f32 v{l1}, v{l1}, v{inv}")
        a.I("s_nop 1")
        a.I(f"s_branch L_A_ret{tag}")

def gen_tail(a):
    a.L("L_tail")
    ACC = 0; AF = 96; BF = 112; vAA = 136; vB = 138; vWO = 139; vB2 = 140; vL = 141; vSt = 142; PK = 144
    SWO = 32; SPT = 36
    sSt = 48; sA = 49; sBq = 50; sStage = 51; sIt = 52; sRow = 53; sC = 54
    a.I("s_setprio 0")
    a.I("s_waitcnt lgkmcnt(0)")
    a.I("s_barrier")
    if cfg.stamps:
        a.I(f"s_cmp_lt_u32 s{S_WAVE}, 3")
        a.I("s_cbranch_scc1 L_T_st0")
        stamp_setup(a)
        a.L("L_T_st0")
    stamp(a, 246)
    dbg_stamp(a, 246)
    srd(a, SWO, P_WO, 0x400000)
    srd(a, SPT, P_WS, PART_BYTES)
    a.I(f"v_mbcnt_lo_u32_b32 v{vL}, -1, 0")
    a.I(f"v_mbcnt_hi_u32_b32 v{vL}, -1, v{vL}")
    a.I(f"s_lshl_b32 s{sStage}, s{S_WAVE}, 13")
    a.I(f"s_add_u32 s{sStage}, s{sStage}, 24576")
    a.I(f"s_cmp_eq_u32 s{S_WAVE}, 5")
    a.I(f"s_cselect_b32 s{sStage}, 90112, s{sStage}")
    a.I(f"s_cmp_eq_u32 s{S_WAVE}, 6")
    a.I(f"s_cselect_b32 s{sStage}, 147456, s{sStage}")
    a.I(f"s_cmp_eq_u32 s{S_WAVE}, 7")
    a.I(f"s_cselect_b32 s{sStage}, 155648, s{sStage}")
    a.I(f"v_lshrrev_b32 v1, 3, v{vL}")
    a.I(f"v_and_b32 v2, 7, v{vL}")
    a.I("v_bfe_u32 v3, v1, 1, 1")
    a.I("v_lshlrev_b32 v3, 2, v3")
    a.I("v_xor_b32 v2, v2, v3")
    a.I("v_lshlrev_b32 v2, 4, v2")
    a.I(f"v_lshl_add_u32 v{vWO}, v1, 10, v2")
    a.I(f"s_lshl_b32 s{sRow}, s{S_HB}, 17")
    a.I(f"s_lshl_b32 s{sA}, s{S_WAVE}, 7")
    a.I(f"s_add_u32 s{sRow}, s{sRow}, s{sA}")
    def issue_wo(slot, delta):
        a.I(f"s_add_u32 s{sA}, s{sSt}, s{S_B}")
        if delta: a.I(f"s_add_u32 s{sA}, s{sA}, {delta}")
        a.I(f"s_and_b32 s{sA}, s{sA}, 15")
        a.I(f"s_lshl_b32 s{sA}, s{sA}, 15")
        a.I(f"s_add_u32 s{sA}, s{sA}, s{sRow}")
        for i in range(4):
            a.I(f"s_add_u32 m0, s{sStage}, {slot*4096 + i*1024}")
            if i: a.I(f"s_add_u32 s{sA}, s{sA}, 8192")
            else: a.I("s_nop 0")
            a.I(f"buffer_load_dwordx4 v{vWO}, s[{SWO}:{SWO+3}], s{sA} offen{cfg.wo_pol} lds")
    a.I(f"s_mov_b32 s{sSt}, 0")
    issue_wo(0, 0); issue_wo(1, 1)
    a.I(f"v_and_b32 v1, 15, v{vL}")
    a.I(f"v_lshrrev_b32 v2, 4, v{vL}")
    a.I("v_lshrrev_b32 v3, 2, v1")
    a.I("v_lshrrev_b32 v4, 1, v2")
    a.I("v_lshl_add_u32 v5, v4, 2, v3")
    a.I("v_lshlrev_b32 v5, 7, v5")
    a.I("v_and_b32 v6, 1, v1")
    a.I("v_lshl_add_u32 v5, v6, 5, v5")
    a.I("v_and_b32 v6, 1, v2")
    a.I("v_lshl_add_u32 v5, v6, 4, v5")
    a.I("v_bfe_u32 v6, v1, 1, 1")
    a.I("v_lshl_add_u32 v5, v6, 3, v5")
    a.I(f"v_add_u32 v5, s{sStage}, v5")
    a.I("v_lshrrev_b32 v3, 1, v3")
    for nt in range(2):
        a.I(f"v_xor_b32 v6, {nt}, v3")
        a.I(f"v_lshl_add_u32 v{vAA+nt}, v6, 6, v5")
    a.I(f"v_lshlrev_b32 v{vB}, 4, v{vL}")
    for j in range(96):
        a.I(f"v_mov_b32 v{ACC+j}, 0")
    def sub(slot, last_pair):
        a.I(f"s_add_u32 s{sA}, s{sSt}, s{S_B}")
        if slot: a.I(f"s_add_u32 s{sA}, s{sA}, {slot}")
        a.I(f"s_and_b32 s{sA}, s{sA}, 15")
        a.I(f"s_lshr_b32 s{sBq}, s{sA}, 2")
        a.I(f"s_lshl_b32 s{sBq}, s{sBq}, 2")
        a.I(f"s_lshr_b32 s{sBq}, 0x08CF, s{sBq}")
        a.I(f"s_and_b32 s{sBq}, s{sBq}, 15")
        a.I(f"s_lshl_b32 s{sBq}, s{sBq}, 13")
        a.I(f"s_and_b32 s{sA}, s{sA}, 3")
        a.I(f"s_lshl_b32 s{sA}, s{sA}, 11")
        a.I(f"s_add_u32 s{sBq}, s{sBq}, s{sA}")
        a.I(f"v_add_u32 v{vB2}, s{sBq}, v{vB}")
        a.I(f"s_waitcnt vmcnt({0 if (last_pair and slot == 1) else 4})")
        for ks in range(2):
            for nt in range(2):
                for sec in range(2):
                    a.I(f"ds_read_b64_tr_b16 {vr(AF + ks*8 + nt*4 + sec*2, 2)}, v{vAA+nt} offset:{slot*4096 + ks*2048 + sec*1024}")
            for qt in range(3):
                a.I(f"ds_read_b128 {vr(BF + ks*12 + qt*4, 4)}, v{vB2} offset:{qt*8192 + ks*1024}")
        a.I("s_waitcnt lgkmcnt(7)")
        for nt in range(2):
            for qt in range(3):
                mfma(a, ACC + (nt*3 + qt)*16, AF + nt*4, BF + qt*4)
        a.I("s_waitcnt lgkmcnt(0)")
        if not last_pair: issue_wo(slot, slot + 2)
        for nt in range(2):
            for qt in range(3):
                mfma(a, ACC + (nt*3 + qt)*16, AF + 8 + nt*4, BF + 12 + qt*4)
    a.I(f"s_mov_b32 s{sIt}, 7")
    a.L("L_T_loop")
    sub(0, False); sub(1, False)
    a.I(f"s_add_u32 s{sSt}, s{sSt}, 2")
    a.I(f"s_sub_u32 s{sIt}, s{sIt}, 1")
    a.I(f"s_cmp_lg_u32 s{sIt}, 0")
    a.I("s_cbranch_scc1 L_T_loop")
    sub(0, True); sub(1, True)
    a.I(f"s_lshl_b32 s{sA}, s{S_P}, 4")
    a.I(f"s_add_u32 s{sA}, s{sA}, s{S_B}")
    a.I(f"s_lshl_b32 s{sA}, s{sA}, 3")
    a.I(f"s_add_u32 s{sA}, s{sA}, s{S_WAVE}")
    a.I(f"s_lshl_b32 s{sA}, s{sA}, 3")
    a.I(f"s_add_u32 s{sA}, s{sA}, s{S_MJ}")
    a.I(f"s_mul_i32 s{sA}, s{sA}, 12288")
    stamp(a, 246)
    dbg_stamp(a, 246)
    a.I("s_nop 7")
    for qt in range(3):
        for nt in range(2):
            base = ACC + (nt*3 + qt)*16
            pk = PK + ((qt*2 + nt) % 2) * 8
            if (qt, nt) == (0, 0): a.I("s_nop 3")
            for j in range(8):
                a.I(f"v_cvt_pk_bf16_f32 v{pk+j}, v{base+2*j}, v{base+2*j+1}")
            ch = (qt*2 + nt)*2
            a.I(f"s_add_u32 s{sBq}, s{sA}, {ch*1024}")
            a.I(f"buffer_store_dwordx4 {vr(pk,4)}, v{vB}, s[{SPT}:{SPT+3}], s{sBq} offen{cfg.part_st_pol}")
            a.I(f"buffer_store_dwordx4 {vr(pk+4,4)}, v{vB}, s[{SPT}:{SPT+3}], s{sBq} offen offset:1024{cfg.part_st_pol}")
    a.I("s_waitcnt vmcnt(0)")
    stamp(a, 246)
    dbg_stamp(a, 246)
    a.I("s_waitcnt vmcnt(0)")
    a.L("L_k1_end")
    a.I("s_endpgm")

def gen_k2(a):
    a.I("s_cmp_ge_u32 s2, 256")
    a.I("s_cbranch_scc1 L_k2_end")
    a.I("s_load_dwordx2 s[4:5], s[0:1], 80")
    a.I("s_load_dwordx2 s[6:7], s[0:1], 96")
    if cfg.dbgst: a.I("s_memrealtime s[34:35]")
    a.I("v_lshrrev_b32 v1, 6, v0")
    a.I("v_and_b32 v0, 63, v0")
    a.I("v_readfirstlane_b32 s20, v1")
    a.I("s_waitcnt lgkmcnt(0)")
    srd(a, 8, 6, PART_BYTES)
    srd(a, 12, 4, 16*96*1024*2)
    a.I("s_mul_i32 s21, s2, 98304")
    a.I("s_lshl_b32 s22, s20, 11")
    a.I("s_add_u32 s21, s21, s22")
    a.I("v_lshlrev_b32 v1, 4, v0")
    for src in range(8):
        a.I(f"s_add_u32 s23, s21, {src*12288}")
        a.I(f"buffer_load_dwordx4 {vr(8+src*8,4)}, v1, s[8:11], s23 offen{cfg.part_ld_pol}")
        a.I(f"buffer_load_dwordx4 {vr(8+src*8+4,4)}, v1, s[8:11], s23 offen offset:1024{cfg.part_ld_pol}")
    a.I("s_lshr_b32 s24, s2, 3")
    a.I("s_and_b32 s25, s2, 7")
    a.I("s_and_b32 s26, s24, 15")
    a.I("s_lshr_b32 s27, s24, 4")
    a.I("s_lshr_b32 s28, s20, 1")
    a.I("s_and_b32 s29, s20, 1")
    a.I("s_mul_i32 s26, s26, 96")
    a.I("s_lshl_b32 s28, s28, 5")
    a.I("s_add_u32 s26, s26, s28")
    a.I("s_lshl_b32 s26, s26, 11")
    a.I("s_lshl_b32 s27, s27, 10")
    a.I("s_lshl_b32 s25, s25, 7")
    a.I("s_lshl_b32 s29, s29, 6")
    a.I("s_add_u32 s26, s26, s27")
    a.I("s_add_u32 s26, s26, s25")
    a.I("s_add_u32 s26, s26, s29")
    a.I("v_and_b32 v2, 31, v0")
    a.I("v_lshlrev_b32 v2, 11, v2")
    a.I("v_lshrrev_b32 v3, 5, v0")
    a.I("v_lshl_add_u32 v2, v3, 5, v2")
    ACC = 80
    for src in range(8):
        a.I(f"s_waitcnt vmcnt({14 - 2*src})")
        for d in range(8):
            r = 8 + src*8 + d
            if src == 0:
                a.I(f"v_lshlrev_b32 v{ACC+2*d}, 16, v{r}")
                a.I(f"v_and_b32 v{ACC+2*d+1}, 0xffff0000, v{r}")
            else:
                a.I(f"v_lshlrev_b32 v4, 16, v{r}")
                a.I(f"v_and_b32 v5, 0xffff0000, v{r}")
                a.I(f"v_add_f32 v{ACC+2*d}, v{ACC+2*d}, v4")
                a.I(f"v_add_f32 v{ACC+2*d+1}, v{ACC+2*d+1}, v5")
    for d in range(8):
        a.I(f"v_cvt_pk_bf16_f32 v{8+d}, v{ACC+2*d}, v{ACC+2*d+1}")
    a.I("buffer_store_dwordx4 v[8:11], v2, s[12:15], s26 offen")
    a.I("buffer_store_dwordx4 v[12:15], v2, s[12:15], s26 offen offset:16")
    a.I("s_waitcnt vmcnt(0)")
    if cfg.dbgst:
        a.I("s_cmp_lg_u32 s2, 0")
        a.I("s_cbranch_scc1 L_k2_end")
        a.I("s_cmp_lg_u32 s20, 0")
        a.I("s_cbranch_scc1 L_k2_end")
        a.I("s_memrealtime s[36:37]")
        a.I("s_load_dwordx2 s[30:31], s[0:1], 88")
        a.I("s_waitcnt lgkmcnt(0)")
        a.I(f"s_add_u32 s8, s6, {40<<20}")
        a.I("s_addc_u32 s9, s7, 0")
        a.I("s_and_b32 s9, s9, 0xffff")
        a.I("s_mov_b32 s10, 256")
        a.I("s_mov_b32 s11, 0x20000")
        a.I("s_mov_b32 s12, s30")
        a.I("s_and_b32 s13, s31, 0xffff")
        a.I("s_mov_b32 s14, 64")
        a.I("s_mov_b32 s15, 0x20000")
        a.I("v_lshlrev_b32 v1, 2, v0")
        a.I("buffer_load_dword v2, v1, s[8:11], 0 offen sc1")
        a.I("s_waitcnt vmcnt(0)")
        a.I("v_mov_b32 v3, s34")
        a.I("v_cmp_eq_u32 vcc, 14, v0")
        a.I("s_nop 1")
        a.I("v_cndmask_b32 v2, v2, v3, vcc")
        a.I("v_mov_b32 v3, s36")
        a.I("v_cmp_eq_u32 vcc, 15, v0")
        a.I("s_nop 1")
        a.I("v_cndmask_b32 v2, v2, v3, vcc")
        a.I("buffer_store_dword v2, v1, s[12:15], 0 offen")
        a.I("s_waitcnt vmcnt(0)")
    a.L("L_k2_end")
    a.I("s_endpgm")

def kd(a, name, vgpr, sgpr):
    a.raw('.section .rodata,"a"')
    a.raw(".p2align 6")
    a.raw(f".amdhsa_kernel {name}")
    a.raw(f"  .amdhsa_next_free_vgpr {vgpr}")
    a.raw(f"  .amdhsa_next_free_sgpr {sgpr}")
    a.raw(f"  .amdhsa_accum_offset {(vgpr+3)//4*4}")
    a.raw("  .amdhsa_group_segment_fixed_size 0")
    a.raw("  .amdhsa_kernarg_size 104")
    a.raw("  .amdhsa_user_sgpr_count 2")
    a.raw("  .amdhsa_user_sgpr_kernarg_segment_ptr 1")
    a.raw("  .amdhsa_system_sgpr_workgroup_id_x 1")
    a.raw(".end_amdhsa_kernel")

def build():
    a = Asm()
    a.raw(f"; @launch kernel={K1} grid=(256,1,1) block=(512,1,1) lds={LDS_BYTES}")
    a.raw(f"; @launch kernel={K2} grid=(256,1,1) block=(384,1,1) lds=0")
    a.raw('.amdgcn_target "amdgcn-amd-amdhsa--gfx950"')
    a.raw(".text")
    a.raw(f".globl {K1}")
    a.raw(".p2align 8")
    a.raw(f".type {K1},@function")
    a.L(K1)
    setup_common(a)
    gen_loader(a, True)
    gen_loader(a, False)
    gen_G(a)
    gen_A(a)
    gen_tail(a)
    a.raw(f".globl {K2}")
    a.raw(".p2align 8")
    a.raw(f".type {K2},@function")
    a.L(K2)
    gen_k2(a)
    kd(a, K1, 256, 102 if (cfg.stamps or cfg.dbgst) else 64)
    a.raw(".text")
    kd(a, K2, 96, 40)
    return a

if __name__ == "__main__":
    for arg in sys.argv[2:]:
        k, v = arg.split("=", 1)
        cur = getattr(cfg, k)
        if isinstance(cur, bool): v = v in ("1", "True", "true")
        elif isinstance(cur, int): v = int(v)
        elif isinstance(cur, float): v = float(v)
        else: v = v.replace("_", " ")
        setattr(cfg, k, v)
    a = build()
    out = sys.argv[1] if len(sys.argv) > 1 else f"cdna_kernels/{NAME}.s"
    open(out, "w").write(a.text())
    probs = check_file(a.lines)
    for p in probs: print("HAZARD", p)
    print("wrote", out, len(a.lines), "lines;", len(probs), "hazard reports")
```

```python
import re

class Asm:
    def __init__(self):
        self.lines = []
    def I(self, s):
        self.lines.append("  " + s)
    def L(self, name):
        self.lines.append(name + ":")
    def C(self, s):
        self.lines.append("  ; " + s)
    def raw(self, s):
        self.lines.append(s)
    def mark(self):
        return len(self.lines)
    def pad_since(self, mark, need):
        n = 0
        for ln in self.lines[mark:]:
            t = ln.split(";")[0].strip()
            if not t or t.endswith(":"): continue
            if t.startswith("s_nop"): n += int(t.split()[1], 0) + 1
            else: n += 1
        rem = need - n
        while rem > 0:
            k = min(rem, 16)
            self.I(f"s_nop {k-1}")
            rem -= k
    def text(self):
        return "\n".join(self.lines) + "\n"

def vr(base, n=1):
    return f"v{base}" if n == 1 else f"v[{base}:{base+n-1}]"
def sr(base, n=1):
    return f"s{base}" if n == 1 else f"s[{base}:{base+n-1}]"

_reg_re = re.compile(r"^(-?)(\|?)([vsa])(?:(\d+)|\[(\d+):(\d+)\])\|?$")
def parse_reg(tok):
    tok = tok.strip()
    if tok in ("vcc",): return ("s", 106, 2)
    if tok in ("exec",): return ("s", 126, 2)
    if tok == "m0": return ("s", 124, 1)
    if tok == "vcc_lo": return ("s",106,1)
    m = _reg_re.match(tok)
    if not m: return None
    f = m.group(3)
    if m.group(4) is not None:
        return (f, int(m.group(4)), 1)
    lo, hi = int(m.group(5)), int(m.group(6))
    return (f, lo, hi - lo + 1)

def regset(r):
    if r is None: return set()
    return {(r[0], r[1] + i) for i in range(r[2])}

TRANS = ("v_exp_f32", "v_log_f32", "v_rcp_f32", "v_rsq_f32", "v_sqrt_f32", "v_sin_f32", "v_cos_f32")

class Ins:
    __slots__ = ("op", "ops", "text", "kind", "w", "r", "states", "srcC", "lineno", "mods")
    pass

def decode(text, lineno):
    t = text.split(";")[0].strip()
    if not t or t.endswith(":") or t.startswith("."):
        return None
    parts = t.split(None, 1)
    op = parts[0]
    rest = parts[1] if len(parts) > 1 else ""
    ops = [o.strip() for o in re.split(r",\s*(?![^\[]*\])", rest)] if rest else []
    mods = []
    if ops:
        sp = ops[-1].split()
        ops[-1] = sp[0]
        mods = sp[1:]
    ins = Ins(); ins.op = op; ins.text = t; ins.lineno = lineno; ins.mods = mods; ins.ops = ops
    ins.w = set(); ins.r = set(); ins.states = 1; ins.srcC = set()
    regs = [parse_reg(o) for o in ops]
    base = op.replace("_e32", "").replace("_e64", "")
    if op.startswith("v_mfma"):
        ins.kind = "mfma"
        ins.w = regset(regs[0]); ins.r = regset(regs[1]) | regset(regs[2]) | regset(regs[3]); ins.srcC = regset(regs[3])
    elif op.startswith("v_cmp"):
        ins.kind = "valu"
        ins.w = regset(regs[0]);
        for x in regs[1:]: ins.r |= regset(x)
    elif op.startswith("v_readfirstlane") or op.startswith("v_readlane"):
        ins.kind = "valu_rl"
        ins.w = regset(regs[0])
        for x in regs[1:]: ins.r |= regset(x)
    elif op.startswith("v_permlane32_swap") or op.startswith("v_permlane16_swap"):
        ins.kind = "permlane"
        ins.w = regset(regs[0]) | regset(regs[1]); ins.r = set(ins.w)
    elif op.startswith("v_"):
        ins.kind = "trans" if base in TRANS else "valu"
        ins.w = regset(regs[0])
        start = 1
        if base in ("v_add_co_u32", "v_addc_co_u32", "v_sub_co_u32"):
            ins.w |= regset(regs[1]); start = 2
        for x in regs[start:]: ins.r |= regset(x)
        if base in ("v_fmac_f32", "v_pk_fmac_f32"): ins.r |= regset(regs[0])
        if base == "v_cndmask_b32" and len(ops) == 3: ins.r |= regset(("s",106,2))
    elif op.startswith("ds_read") or op.startswith("ds_bpermute") or op.startswith("ds_swizzle"):
        ins.kind = "ds_read"
        ins.w = regset(regs[0])
        for x in regs[1:]: ins.r |= regset(x)
    elif op.startswith("ds_write"):
        ins.kind = "ds_write"
        for x in regs: ins.r |= regset(x)
    elif op.startswith("buffer_load") or op.startswith("global_load"):
        ins.kind = "vmem_load"
        if "lds" in mods or "_lds_" in op:
            for x in regs: ins.r |= regset(x)
            ins.r |= regset(("s",124,1)); ins.kind = "vmem_lds"
        else:
            ins.w = regset(regs[0])
            for x in regs[1:]: ins.r |= regset(x)
    elif op.startswith("buffer_store") or op.startswith("global_store"):
        ins.kind = "vmem_store"
        for x in regs: ins.r |= regset(x)
    elif op.startswith("buffer_atomic") or op.startswith("global_atomic"):
        ins.kind = "vmem_store"
        for x in regs: ins.r |= regset(x)
        if "sc0" in mods: ins.w = regset(regs[0])
    elif op == "s_nop":
        ins.kind = "nop"; ins.states = int(ops[0], 0) + 1
    elif op.startswith("s_"):
        ins.kind = "salu"
        if op.startswith(("s_cmp", "s_cbranch", "s_branch", "s_waitcnt", "s_barrier", "s_endpgm", "s_sleep", "s_setprio", "s_bitcmp")):
            for x in regs: ins.r |= regset(x)
        elif op.startswith(("buffer_",)):
            pass
        else:
            if regs: ins.w = regset(regs[0])
            for x in regs[1:]: ins.r |= regset(x)
            if op.startswith("s_and_saveexec") or op.startswith("s_or_saveexec"):
                ins.w |= regset(("s",126,2))
    else:
        ins.kind = "other"
    return ins

def mfma_passes(op):
    if "32x32x16" in op: return 8
    if "16x16x32" in op: return 4
    raise ValueError(op)

def check_seq(seq, out, tag=""):
    n = len(seq)
    LOOK = 24
    for i, c in enumerate(seq):
        dist = 0
        for j in range(i - 1, max(-1, i - LOOK - 1), -1):
            p = seq[j]
            need = 0; why = ""
            vw = {x for x in p.w if x[0] in "va"}
            sw = {x for x in p.w if x[0] == "s"}
            cv_r = {x for x in c.r if x[0] in "va"}
            cv_w = {x for x in c.w if x[0] in "va"}
            if p.kind in ("valu", "trans", "permlane", "valu_rl"):
                if c.kind == "mfma" and (vw & cv_r):
                    need, why = max(need, 2), "VALU write -> MFMA read"
                if c.kind == "permlane" and (vw & cv_r):
                    need, why = max(need, 2), "VALU write -> permlane"
                if c.kind == "valu_rl" and (vw & cv_r):
                    need, why = max(need, 1), "VALU write -> readlane"
                if p.kind == "trans" and c.kind in ("valu", "permlane", "valu_rl") and (vw & cv_r):
                    need, why = max(need, 1), "trans -> VALU"
                if p.kind == "trans" and c.kind in ("mfma",) and (vw & cv_r):
                    need, why = max(need, 2), "trans -> mfma"
                if sw:
                    if c.kind in ("valu", "trans") and (sw & c.r):
                        need, why = max(need, 2), "VALU writes SGPR -> VALU const read"
                    if c.kind.startswith("vmem") and (sw & c.r):
                        need, why = max(need, 5), "VALU writes SGPR -> VMEM"
                    if c.kind == "valu_rl" and (sw & c.r):
                        need, why = max(need, 4), "VALU writes SGPR -> lane select"
            if p.kind == "mfma":
                ps = mfma_passes(p.op)
                big = {4: 8, 8: 12}[ps]; ovl = {4: 6, 8: 10}[ps]; war = {4: 3, 8: 7}[ps]
                if c.kind == "mfma":
                    ab = set()
                    regs = [parse_reg(o) for o in c.ops]
                    ab = regset(regs[1]) | regset(regs[2])
                    if p.w & ab: need, why = max(need, big), "MFMA D -> MFMA A/B"
                    if p.w & c.srcC:
                        if not (p.w == c.srcC and mfma_passes(c.op) == ps):
                            need, why = max(need, ovl), "MFMA D -> MFMA C overlap"
                    elif p.w & c.w:
                        need, why = max(need, ovl), "MFMA D -> MFMA D WAW"
                else:
                    if c.kind in ("valu","trans","permlane","valu_rl","ds_write","vmem_store","ds_read","vmem_load","vmem_lds"):
                        if (p.w & cv_r) or (p.w & cv_w):
                            need, why = max(need, big), "MFMA D -> VALU/mem"
                    if c.kind in ("valu","trans","permlane") and (p.srcC & cv_w):
                        need, why = max(need, war), "MFMA srcC WAR"
            if p.kind == "salu" and (("s",124) in p.w) and c.kind == "vmem_lds":
                need, why = max(need, 1), "M0 write -> LDS DMA"
            if p.kind == "vmem_store" and ("x4" in p.op or "x3" in p.op) and c.kind in ("valu","trans","permlane"):
                data = regset(parse_reg(p.ops[0])) if p.op.startswith("buffer") else regset(parse_reg(p.ops[1]))
                if data & cv_w: need, why = max(need, 2), "wide store data WAR"
            if need > dist:
                out.append(f"{tag} line {c.lineno}: '{c.text}' needs {need} states after line {p.lineno} '{p.text}' ({why}); has {dist}")
            dist += p.states
            if dist >= 20: break

def check_file(lines):
    ins = []; labels = {}
    for k, ln in enumerate(lines, 1):
        s = ln.split(";")[0].strip()
        if s.endswith(":") and not s.startswith("."):
            labels[s[:-1]] = len(ins); continue
        d = decode(ln, k)
        if d is not None: ins.append(d)
    out = []
    seq = []
    for d in ins:
        seq.append(d)
        if d.op in ("s_branch", "s_endpgm", "s_setpc_b64"):
            check_seq(seq, out, "lin"); seq = []
    check_seq(seq, out, "lin")
    for idx, d in enumerate(ins):
        if d.op.startswith("s_cbranch") or d.op == "s_branch":
            tgt = labels.get(d.ops[0])
            if tgt is None: continue
            pre = []
            for j in range(idx, max(-1, idx - 30), -1):
                if j != idx and ins[j].op in ("s_branch", "s_endpgm"): break
                pre.append(ins[j])
            pre.reverse()
            post = []
            for j in range(tgt, min(len(ins), tgt + 30)):
                post.append(ins[j])
                if ins[j].op in ("s_branch", "s_endpgm"): break
            o2 = []
            check_seq(pre + post, o2, "br")
            out += o2
    return sorted(set(out))
```

```python
import struct, math, sys
from asmlib import Asm, vr, sr, check_file

NAME = "concat_heads__mha_block_cached__gqa_block_cached__near_ridge"
K1 = "attn_kernel"
K2 = "reduce_kernel"

def f2u(x): return struct.unpack("<I", struct.pack("<f", x))[0]
CSCALE = math.log2(math.e) / math.sqrt(128.0)

KR = 0; VR = 32768; WR = 65536; QH = 98304; XS = 98304
OS = [122880, 98304, 65536, 0]
STAGE = [24576, 32768, 40960, 49152, 57344, 90112, 147456, 155648]
LDS_BYTES = 163840
PART_BYTES = 32 * 64 * 12288

class Cfg:
    kv_pol = " nt"
    wq_pol = ""
    x_pol = ""
    wo_pol = ""
    part_st_pol = ""
    part_ld_pol = ""
    thresh = 8.0
    debug_dump = False
    prio_a = 0
    stamps = False
    dbgst = False

cfg = Cfg()

S_WAVE = 20; S_XCD = 21; S_SLOT = 22; S_P = 23; S_B = 24; S_HQ = 25; S_HB = 26; S_RHO = 27; S_MJ = 28
P_X = 8; P_K = 10; P_V = 12; P_WQ = 14; P_WO = 16; P_WS = 18

def srd(a, dst, ptr, size):
    a.I(f"s_mov_b32 s{dst}, s{ptr}")
    a.I(f"s_and_b32 s{dst+1}, s{ptr+1}, 0xffff")
    a.I(f"s_mov_b32 s{dst+2}, {hex(size)}")
    a.I(f"s_mov_b32 s{dst+3}, 0x20000")

def setup_common(a):
    a.I("s_cmp_ge_u32 s2, 256")
    a.I("s_cbranch_scc1 L_k1_end")
    a.I(f"s_and_b32 s{S_XCD}, s2, 7")
    a.I(f"s_lshr_b32 s{S_SLOT}, s2, 3")
    a.I(f"s_lshr_b32 s{S_P}, s{S_XCD}, 2")
    a.I(f"s_mul_i32 s3, s{S_P}, 40")
    a.I("s_add_u32 s4, s0, s3")
    a.I("s_addc_u32 s5, s1, 0")
    a.I("s_load_dwordx8 s[8:15], s[4:5], 0")
    a.I(f"s_load_dwordx2 s[{P_WO}:{P_WO+1}], s[4:5], 32")
    a.I(f"s_load_dwordx2 s[{P_WS}:{P_WS+1}], s[0:1], 96")
    a.I("v_lshrrev_b32 v1, 6, v0")
    a.I("v_and_b32 v0, 63, v0")
    a.I(f"v_readfirstlane_b32 s{S_WAVE}, v1")
    a.I(f"s_lshr_b32 s{S_B}, s{S_SLOT}, 1")
    a.I(f"s_and_b32 s{S_HQ}, s{S_SLOT}, 1")
    a.I(f"s_and_b32 s3, s{S_XCD}, 3")
    a.I("s_lshl_b32 s3, s3, 1")
    a.I(f"s_add_u32 s{S_MJ}, s3, s{S_HQ}")
    a.I(f"s_lshl_b32 s{S_HB}, s{S_MJ}, 2")
    a.I(f"s_and_b32 s{S_RHO}, s{S_B}, 3")
    a.I(f"s_lshl_b32 s{S_RHO}, s{S_RHO}, 2")
    a.I("s_waitcnt lgkmcnt(0)")
    dbg_setup(a)
    a.I(f"s_cmp_lt_u32 s{S_WAVE}, 3")
    a.I("s_cbranch_scc1 L_roleA")
    a.I(f"s_cmp_eq_u32 s{S_WAVE}, 3")
    a.I("s_cbranch_scc1 L_roleLK")
    a.I(f"s_cmp_eq_u32 s{S_WAVE}, 7")
    a.I("s_cbranch_scc1 L_roleLV")
    a.I("s_branch L_roleG")

def gen_loader(a, isK):
    tag = "LK" if isK else "LV"
    D = 13 if isK else 14
    a.L(f"L_role{tag}")
    SKV = 32; SW = 36
    srd(a, SKV, P_K if isK else P_V, 0x4000000)
    srd(a, SW, P_WQ, 0x400000)
    sKB = 48; sT = 49; sTau = 50; sN = 51; sA = 52; sBq = 53; sWrow = 54
    a.I(f"s_lshl_b32 s{sKB}, s{S_B}, 5")
    a.I(f"s_add_u32 s{sKB}, s{sKB}, s{S_HB}")
    a.I(f"s_lshl_b32 s{sKB}, s{sKB}, 17")
    a.I("v_and_b32 v1, 15, v0")
    a.I("v_lshrrev_b32 v2, 4, v0")
    if isK:
        for j in range(4):
            a.I(f"v_add_u32 v3, {4*j}, v2")
            a.I("v_xor_b32 v3, v1, v3")
            a.I("v_lshlrev_b32 v3, 4, v3")
            a.I(f"v_lshl_add_u32 v{4+j}, v2, 8, v3")
    else:
        a.I("v_lshlrev_b32 v3, 2, v2")
        a.I("v_xor_b32 v3, v1, v3")
        a.I("v_lshlrev_b32 v3, 4, v3")
        for j in range(4):
            a.I(f"v_lshl_add_u32 v{4+j}, v2, 8, v3")
    a.I("v_lshlrev_b32 v3, 2, v2")
    a.I("v_xor_b32 v3, v1, v3")
    a.I("v_lshlrev_b32 v3, 4, v3")
    a.I("v_lshlrev_b32 v9, 13, v2")
    a.I("v_add_u32 v8, v9, v3")
    i0 = 0 if isK else 4
    LB = KR if isK else VR

    def issue_w():
        a.I(f"s_add_u32 s{sA}, s{S_RHO}, s{sTau}")
        a.I(f"s_and_b32 s{sA}, s{sA}, 15")
        a.I(f"s_lshl_b32 s{sA}, s{sA}, 18")
        a.I(f"s_lshr_b32 s{sBq}, s{sTau}, 4")
        a.I(f"s_add_u32 s{sBq}, s{sBq}, s{S_HB}")
        a.I(f"s_lshl_b32 s{sBq}, s{sBq}, 8")
        a.I(f"s_add_u32 s{sA}, s{sA}, s{sBq}")
        a.I(f"s_add_u32 s{sA}, s{sA}, {i0*4*8192}")
        a.I(f"s_and_b32 s{sBq}, s{sTau}, 3")
        a.I(f"s_lshl_b32 s{sBq}, s{sBq}, 13")
        a.I(f"s_add_u32 s{sBq}, s{sBq}, {WR + i0*1024}")
        for i in range(4):
            a.I(f"s_add_u32 m0, s{sBq}, {i*1024}")
            if i: a.I(f"s_add_u32 s{sA}, s{sA}, 32768")
            else: a.I("s_nop 0")
            a.I(f"buffer_load_dwordx4 v8, s[{SW}:{SW+3}], s{sA} offen{cfg.wq_pol} lds")
        a.I(f"s_add_u32 s{sTau}, s{sTau}, 1")

    def issue_kv():
        a.I(f"s_lshl_b32 s{sA}, s{sT}, 13")
        a.I(f"s_add_u32 s{sA}, s{sA}, s{sKB}")
        a.I(f"s_and_b32 s{sBq}, s{sT}, 3")
        a.I(f"s_lshl_b32 s{sBq}, s{sBq}, 13")
        for half in range(2):
            a.I(f"s_add_u32 m0, s{sBq}, {LB + half*4096}")
            if half: a.I(f"s_add_u32 s{sA}, s{sA}, 4096")
            else: a.I("s_nop 0")
            for j in range(4):
                off = f" offset:{j*1024}" if j else ""
                a.I(f"buffer_load_dwordx4 v{4+j}, s[{SKV}:{SKV+3}], s{sA} offen{off}{cfg.kv_pol} lds")
        a.I(f"s_add_u32 s{sT}, s{sT}, 1")

    stamp_setup(a)
    a.I(f"s_mov_b32 s{sT}, 0")
    a.I(f"s_mov_b32 s{sTau}, 0")
    for _ in range(3): issue_w()
    a.I("s_waitcnt vmcnt(8)")
    def cnt(n):
        if n < 0: return 4
        return (4 if n <= 60 else 0) + (8 if D <= n <= D + 63 else 0)
    phases = []
    for n in range(81):
        key = (D <= n <= D + 63, n <= 60, cnt(n) + cnt(n - 1))
        if phases and phases[-1][0] == key: phases[-1][2] = n
        else: phases.append([key, n, n])
    for pi, (key, n0, n1) in enumerate(phases):
        kv, w, N = key
        cntn = n1 - n0 + 1
        if cntn > 1:
            a.I(f"s_mov_b32 s{sN}, {cntn}")
            a.L(f"L_{tag}_ph{pi}")
        a.I("s_barrier")
        stamp(a, 20)
        if kv: issue_kv()
        if w: issue_w()
        stamp(a, 20)
        a.I(f"s_waitcnt vmcnt({N + (7 if cfg.stamps else 0)})")
        stamp(a, 20)
        if cntn > 1:
            a.I(f"s_sub_u32 s{sN}, s{sN}, 1")
            a.I(f"s_cmp_lg_u32 s{sN}, 0")
            a.I(f"s_cbranch_scc1 L_{tag}_ph{pi}")
    a.I("s_branch L_tail")

STAMP_BASE = 32 << 20
def stamp_setup(a):
    if not cfg.stamps: return
    a.I(f"s_mov_b32 s92, s{P_WS}")
    a.I(f"s_and_b32 s93, s{P_WS+1}, 0xffff")
    a.I(f"s_mov_b32 s94, {hex(STAMP_BASE + (2<<20))}")
    a.I("s_mov_b32 s95, 0x20000")
    a.I("s_lshl_b32 s96, s2, 3")
    a.I(f"s_add_u32 s96, s96, s{S_WAVE}")
    a.I("s_lshl_b32 s96, s96, 10")
    a.I(f"s_add_u32 s96, s96, {STAMP_BASE}")
def stamp(a, vtmp):
    if not cfg.stamps: return
    a.I("s_memrealtime s[98:99]")
    a.I("s_waitcnt lgkmcnt(0)")
    a.I(f"v_mov_b32 v{vtmp}, s98")
    a.I(f"v_mov_b32 v{vtmp+1}, 0")
    a.I(f"buffer_store_dword v{vtmp}, v{vtmp+1}, s[92:95], s96 offen")
    a.I("s_add_u32 s96, s96, 4")

def dbg_setup(a):
    if not cfg.dbgst: return
    a.I(f"s_add_u32 s92, s{P_WS}, {40<<20}")
    a.I(f"s_addc_u32 s93, s{P_WS+1}, 0")
    a.I("s_and_b32 s93, s93, 0xffff")
    a.I("s_mov_b32 s94, 0")
    a.I("s_mov_b32 s96, 0")
    a.I(f"s_cmp_lg_u32 s{S_WAVE}, 0")
    a.I("s_cbranch_scc1 L_dbg_done")
    a.I("s_cmp_eq_u32 s2, 0")
    a.I("s_cselect_b32 s94, 256, 0")
    a.I("s_cmp_eq_u32 s2, 129")
    a.I("s_cselect_b32 s94, 256, s94")
    a.I("s_cselect_b32 s96, 32, 0")
    a.L("L_dbg_done")
    a.I("s_mov_b32 s95, 0x20000")
def dbg_stamp(a, vtmp):
    if not cfg.dbgst: return
    a.I("s_memrealtime s[98:99]")
    a.I("s_waitcnt lgkmcnt(0)")
    a.I(f"v_mov_b32 v{vtmp}, s98")
    a.I(f"v_mov_b32 v{vtmp+1}, 0")
    a.I(f"buffer_store_dword v{vtmp}, v{vtmp+1}, s[92:95], s96 offen")
    a.I("s_add_u32 s96, s96, 4")

def mfma(a, d, A, B, c=None):
    cs = vr(d, 16) if c is None else (c if isinstance(c, str) else vr(c, 16))
    a.I(f"v_mfma_f32_32x32x16_bf16 {vr(d,16)}, {vr(A,4)}, {vr(B,4)}, {cs}")

def kpattern_addr(a, dst, n, base_imm=None):
    a.I("v_and_b32 v1, 31, v0")
    a.I("v_lshrrev_b32 v2, 5, v0")
    a.I("v_and_b32 v3, 15, v0")
    a.I("v_xor_b32 v3, v3, v2")
    a.I("v_lshlrev_b32 v1, 8, v1")
    for k in range(n):
        a.I(f"v_xor_b32 v2, {2*k}, v3")
        a.I(f"v_lshl_add_u32 v{dst+k}, v2, 4, v1")
        if base_imm: a.I(f"v_add_u32 v{dst+k}, {base_imm}, v{dst+k}")

def gen_G(a):
    a.L("L_roleG")
    X = 0; QA = 128; WF = 192; vWA = 224; vXA = 228; vXO = 236; vL16 = 240; vLane = 241
    SX = 32
    sW = 48; sA = 49; sBq = 50; sU = 51; sXb = 52; sC = 56; sPi = 53
    srd(a, SX, P_X, 16*96*512*2)
    a.I(f"s_sub_u32 s{sW}, s{S_WAVE}, 4")
    a.I(f"s_mov_b32 s{sC}, {hex(f2u(CSCALE))}")
    a.I(f"s_mov_b32 s{sC+1}, {hex(f2u(CSCALE))}")
    a.I(f"v_mov_b32 v{vLane}, v0")
    a.I(f"v_lshlrev_b32 v{vL16}, 4, v0")
    kpattern_addr(a, vXA, 8)
    a.I(f"s_lshl_b32 s{sA}, s{sW}, 14")
    a.I(f"s_add_u32 s{sA}, s{sA}, {XS}")
    for k in range(8):
        a.I(f"v_add_u32 v{vXA+k}, s{sA}, v{vXA+k}")
    a.I("v_and_b32 v1, 15, v0")
    a.I("v_lshrrev_b32 v2, 4, v0")
    for j in range(4):
        a.I(f"v_add_u32 v3, {4*j}, v2")
        a.I("v_xor_b32 v3, v1, v3")
        a.I("v_lshlrev_b32 v3, 4, v3")
        a.I(f"v_lshl_add_u32 v{vXO+j}, v2, 10, v3")
    a.I("v_lshrrev_b32 v3, 2, v1")
    a.I("v_lshrrev_b32 v4, 1, v2")
    a.I("v_lshl_add_u32 v5, v4, 3, v3")
    a.I("v_lshlrev_b32 v5, 8, v5")
    a.I("v_and_b32 v6, 1, v2")
    a.I("v_lshlrev_b32 v6, 5, v6")
    a.I("v_add_u32 v5, v5, v6")
    a.I("v_and_b32 v6, 1, v1")
    a.I("v_lshl_add_u32 v5, v6, 4, v5")
    a.I("v_bfe_u32 v6, v1, 1, 1")
    a.I("v_lshl_add_u32 v5, v6, 3, v5")
    a.I(f"v_add_u32 v5, {WR}, v5")
    for i in range(4):
        a.I(f"v_xor_b32 v6, {i}, v3")
        a.I(f"v_lshl_add_u32 v{vWA+i}, v6, 6, v5")
    a.I(f"s_mul_i32 s{sXb}, s{S_B}, 98304")
    a.I(f"s_lshl_b32 s{sA}, s{sW}, 15")
    a.I(f"s_add_u32 s{sXb}, s{sXb}, s{sA}")

    def issue_x(piece):
        a.I(f"s_lshr_b32 s{sPi}, s{S_RHO}, 2")
        a.I(f"s_add_u32 s{sPi}, s{sPi}, {piece}")
        a.I(f"s_and_b32 s{sPi}, s{sPi}, 3")
        a.I(f"s_lshl_b32 s{sPi}, s{sPi}, 8")
        a.I(f"s_add_u32 s{sA}, s{sXb}, s{sPi}")
        a.I(f"s_lshl_b32 s{sBq}, s{sW}, 14")
        a.I(f"s_add_u32 s{sBq}, s{sBq}, {XS + (piece & 1)*8192}")
        for i in range(8):
            a.I(f"s_add_u32 m0, s{sBq}, {i*1024}")
            if i: a.I(f"s_add_u32 s{sA}, s{sA}, 4096")
            else: a.I("s_nop 0")
            a.I(f"buffer_load_dwordx4 v{vXO + (i & 3)}, s[{SX}:{SX+3}], s{sA} offen{cfg.x_pol} lds")
    stamp_setup(a)
    issue_x(0); issue_x(1)

    def task(t, first_unit):
        slot = t & 3
        stamp(a, 246)
        a.I("s_barrier")
        stamp(a, 246)
        if first_unit and t % 4 == 0:
            piece = t // 4
            a.I(f"s_waitcnt vmcnt({8 if piece < 3 else 0})")
            for k in range(8):
                a.I(f"ds_read_b128 {vr(X + piece*32 + k*4, 4)}, v{vXA+k} offset:{(piece&1)*8192}")
            a.I("s_waitcnt lgkmcnt(0)")
            if piece + 2 < 4: issue_x(piece + 2)
        def rd(ks, i, sec):
            dst = WF + ks*16 + i*4 + sec*2
            a.I(f"ds_read_b64_tr_b16 {vr(dst,2)}, v{vWA+i} offset:{slot*8192 + ks*4096 + sec*1024}")
        for i in range(4):
            rd(0, i, 0); rd(0, i, 1)
        for i in range(2):
            rd(1, i, 0); rd(1, i, 1)
        a.I("s_waitcnt lgkmcnt(4)")
        xb = X + t*8
        c0 = "0" if t == 0 else None
        mfma(a, QA + 0, WF + 0, xb, c0)
        rd(1, 2, 0); rd(1, 2, 1)
        mfma(a, QA + 16, WF + 4, xb, c0)
        rd(1, 3, 0); rd(1, 3, 1)
        mfma(a, QA + 32, WF + 8, xb, c0)
        mfma(a, QA + 48, WF + 12, xb, c0)
        a.I("s_waitcnt lgkmcnt(4)")
        mfma(a, QA + 0, WF + 16, xb + 4)
        mfma(a, QA + 16, WF + 20, xb + 4)
        a.I("s_waitcnt lgkmcnt(0)")
        mfma(a, QA + 32, WF + 24, xb + 4)
        mfma(a, QA + 48, WF + 28, xb + 4)

    def handoff():
        a.I(f"s_cmp_lt_u32 s{sU}, 3")
        a.I(f"s_cselect_b32 s{sA}, {QH//8192}, {WR//8192}")
        a.I(f"s_add_u32 s{sA}, s{sA}, s{sW}")
        a.I(f"s_lshl_b32 s{sA}, s{sA}, 13")
        a.I(f"v_add_u32 v242, s{sA}, v{vL16}")
        a.I("s_nop 7")
        for j in range(32):
            if j == 24: a.I("s_nop 1")
            a.I(f"v_pk_mul_f32 {vr(QA+2*j,2)}, {vr(QA+2*j,2)}, s[{sC}:{sC+1}]")
        for j in range(32):
            a.I(f"v_cvt_pk_bf16_f32 v{WF+j}, v{QA+2*j}, v{QA+2*j+1}")
        for k in range(8):
            a.I(f"ds_write_b128 v242, {vr(WF+4*k,4)} offset:{k*1024}")
        a.I("s_waitcnt lgkmcnt(0)")

    a.I(f"s_mov_b32 s{sU}, 0")
    for t in range(16): task(t, True)
    handoff()
    a.I(f"s_mov_b32 s{sU}, 1")
    a.L("L_G_unit")
    for t in range(16): task(t, False)
    handoff()
    a.I(f"s_add_u32 s{sU}, s{sU}, 1")
    a.I(f"s_cmp_lt_u32 s{sU}, 4")
    a.I("s_cbranch_scc1 L_G_unit")
    a.I(f"s_mov_b32 s{sU}, 17")
    a.L("L_G_idle")
    a.I("s_barrier")
    a.I(f"s_sub_u32 s{sU}, s{sU}, 1")
    a.I(f"s_cmp_lg_u32 s{sU}, 0")
    a.I("s_cbranch_scc1 L_G_idle")
    a.I("s_branch L_tail")

def gen_A(a):
    a.L("L_roleA")
    O = 0; Q = 64; S = [96, 112]; NM = 128; P = 144; KF = 152; VF = 184
    vKA = 216; vVA = 224; l0 = 228; l1 = 229; mx = 230; t0 = 231; t1 = 232; inv = 234; vL16 = 240; vAd = 241
    sIt = 48; sU = 49; sA = 50; sBq = 51; sW = S_WAVE
    if cfg.prio_a: a.I(f"s_setprio {cfg.prio_a}")
    stamp_setup(a)
    stamp(a, 246)
    dbg_stamp(a, 246)
    a.I(f"v_lshlrev_b32 v{vL16}, 4, v0")
    a.I("v_mov_b32 v244, v0")
    kpattern_addr(a, vKA, 8)
    a.I("v_and_b32 v1, 15, v0")
    a.I("v_lshrrev_b32 v2, 4, v0")
    a.I("v_lshrrev_b32 v3, 2, v1")
    a.I("v_lshrrev_b32 v4, 1, v2")
    a.I("v_lshl_add_u32 v5, v4, 2, v3")
    a.I("v_lshlrev_b32 v5, 8, v5")
    a.I("v_and_b32 v6, 1, v2")
    a.I("v_lshlrev_b32 v6, 5, v6")
    a.I("v_add_u32 v5, v5, v6")
    a.I("v_bfe_u32 v6, v1, 1, 1")
    a.I("v_lshl_add_u32 v5, v6, 4, v5")
    a.I("v_and_b32 v6, 1, v1")
    a.I("v_lshl_add_u32 v5, v6, 3, v5")
    a.I(f"v_add_u32 v5, {VR}, v5")
    for i in range(4):
        a.I(f"v_xor_b32 v6, {i}, v3")
        a.I(f"v_lshl_add_u32 v{vVA+i}, v6, 6, v5")
    a.I(f"s_mov_b32 s{sIt}, 16")
    a.L("L_A_idle")
    stamp(a, 246)
    a.I("s_barrier")
    stamp(a, 246)
    a.I(f"s_sub_u32 s{sIt}, s{sIt}, 1")
    a.I(f"s_cmp_lg_u32 s{sIt}, 0")
    a.I("s_cbranch_scc1 L_A_idle")

    rare_blocks = []

    def k_reads(slot):
        for k in range(8):
            a.I(f"ds_read_b128 {vr(KF+4*k,4)}, v{vKA+k} offset:{slot*8192}")
    def v_read(slot, idx):
        ks, i, sec = idx // 8, (idx // 2) % 4, idx % 2
        dst = VF + (ks*4 + i)*4 + sec*2
        a.I(f"ds_read_b64_tr_b16 {vr(dst,2)}, v{vVA+i} offset:{slot*8192 + ks*4096 + sec*2048}")

    def softmax_ops(Sc):
        ops = []
        for j in range(8):
            ops.append([f"v_exp_f32 v{Sc+2*j}, v{Sc+2*j}", f"v_exp_f32 v{Sc+2*j+1}, v{Sc+2*j+1}"])
        return ops

    def step(pos, has_qk=True, has_pv=True, boundary=False, tag=""):
        Sn = S[pos % 2]; Sc = S[(pos + 1) % 2]
        vslot = (pos + 3) % 4
        stamp(a, 246)
        a.I("s_barrier")
        stamp(a, 246)
        if boundary: dbg_stamp(a, 246)
        nq = 0
        if boundary and has_qk:
            a.I(f"s_cmp_lt_u32 s{sU}, 3")
            a.I(f"s_cselect_b32 s{sA}, {QH//8192}, {WR//8192}")
            a.I(f"s_add_u32 s{sA}, s{sA}, s{sW}")
            a.I(f"s_lshl_b32 s{sA}, s{sA}, 13")
            a.I(f"v_add_u32 v{vAd}, s{sA}, v{vL16}")
            for k in range(8):
                a.I(f"ds_read_b128 {vr(Q+4*k,4)}, v{vAd} offset:{k*1024}")
            a.I("s_waitcnt lgkmcnt(0)")
        if has_qk: k_reads(pos)
        vissued = 0
        def exp_pair(j):
            a.I(f"v_exp_f32 v{Sc+2*j}, v{Sc+2*j}")
            a.I(f"v_exp_f32 v{Sc+2*j+1}, v{Sc+2*j+1}")
        def fin_pair(j):
            a.I(f"v_add_f32 v{l0}, v{l0}, v{Sc+2*j}")
            a.I(f"v_add_f32 v{l1}, v{l1}, v{Sc+2*j+1}")
            a.I(f"v_cvt_pk_bf16_f32 v{P+j}, v{Sc+2*j}, v{Sc+2*j+1}")
        if has_pv:
            exp_pair(0)
        for k in range(8):
            if has_qk:
                a.I(f"s_waitcnt lgkmcnt({min(15, 7 - k + vissued)})")
                c = ("0" if boundary else vr(NM,16)) if k == 0 else None
                mfma(a, Sn, KF + 4*k, Q + 4*k, c)
            if has_pv:
                v_read(vslot, 2*k); v_read(vslot, 2*k + 1); vissued += 2
                if k < 7: exp_pair(k + 1)
                else: a.I("s_nop 0")
                fin_pair(k)
        if has_pv:
            a.I("s_waitcnt lgkmcnt(8)")
            for i in range(4):
                mfma(a, O + 16*i, VF + 4*i, P)
            a.I("s_waitcnt lgkmcnt(0)")
            for i in range(4):
                mfma(a, O + 16*i, VF + 16 + 4*i, P + 4)
        if has_qk and not boundary:
            a.I(f"v_max3_f32 v{mx}, v{Sn}, v{Sn+1}, v{Sn+2}")
            for j in range(6):
                a.I(f"v_max3_f32 v{mx}, v{mx}, v{Sn+3+2*j}, v{Sn+4+2*j}")
            a.I(f"v_max_f32 v{mx}, v{mx}, v{Sn+15}")
            a.I(f"v_cmp_lt_f32 vcc, {hex(f2u(cfg.thresh))}, v{mx}")
            a.I(f"s_cbranch_vccnz L_A_rare{tag}")
            a.L(f"L_A_ret{tag}")
            rare_blocks.append((tag, Sn))
        if boundary:
            if has_pv:
                a.I(f"v_add_f32 v{l0}, v{l0}, v{l1}")
                a.I(f"s_sub_u32 s{sA}, s{sU}, 1")
                a.I(f"s_lshl_b32 s{sA}, s{sA}, 2")
                a.I(f"s_lshr_b32 s{sA}, 0x08CF, s{sA}")
                a.I(f"s_and_b32 s{sA}, s{sA}, 15")
                a.I(f"s_lshl_b32 s{sA}, s{sA}, 13")
                a.I(f"v_mov_b32 v{t0}, v{l0}")
                a.I(f"s_lshl_b32 s{sBq}, s{sW}, 13")
                a.I(f"s_add_u32 s{sA}, s{sA}, s{sBq}")
                a.I(f"v_permlane32_swap_b32 v{l0}, v{t0}")
                a.I(f"v_add_u32 v{vAd}, s{sA}, v{vL16}")
                a.I(f"v_add_f32 v{l0}, v{l0}, v{t0}")
                a.I(f"v_rcp_f32 v{inv}, v{l0}")
                a.I("s_nop 0")
                a.I(f"v_mov_b32 v{inv+1}, v{inv}")
                a.I("s_nop 7")
                for j in range(32):
                    a.I(f"v_pk_mul_f32 {vr(O+2*j,2)}, {vr(O+2*j,2)}, {vr(inv,2)}")
                for j in range(32):
                    a.I(f"v_cvt_pk_bf16_f32 v{KF+j}, v{O+2*j}, v{O+2*j+1}")
                for k in range(8):
                    a.I(f"ds_write_b128 v{vAd}, {vr(KF+4*k,4)} offset:{k*1024}")
            if has_qk:
                if not has_pv: a.I("s_nop 12")
                a.I(f"v_max3_f32 v{mx}, v{Sn}, v{Sn+1}, v{Sn+2}")
                for j in range(6):
                    a.I(f"v_max3_f32 v{mx}, v{mx}, v{Sn+3+2*j}, v{Sn+4+2*j}")
                a.I(f"v_max_f32 v{mx}, v{mx}, v{Sn+15}")
                a.I(f"v_mov_b32 v{t0}, v{mx}")
                a.I("s_nop 1")
                a.I(f"v_permlane32_swap_b32 v{mx}, v{t0}")
                a.I("s_nop 0")
                a.I(f"v_max_f32 v{mx}, v{mx}, v{t0}")
                for j in range(16):
                    a.I(f"v_sub_f32 v{Sn+j}, v{Sn+j}, v{mx}")
                for j in range(16):
                    a.I(f"v_sub_f32 v{NM+j}, 0, v{mx}")
                for j in range(64):
                    a.I(f"v_mov_b32 v{O+j}, 0")
                a.I(f"v_mov_b32 v{l0}, 0")
                a.I(f"v_mov_b32 v{l1}, 0")
            if has_pv:
                a.I("s_waitcnt lgkmcnt(0)")

    a.I(f"s_mov_b32 s{sU}, 0")
    step(0, has_qk=True, has_pv=False, boundary=True, tag="_b0")
    a.I(f"s_mov_b32 s{sIt}, 0")
    a.I("s_branch L_A_pos1")
    a.L("L_A_loop")
    a.I(f"s_cmp_lg_u32 s{sIt}, 0")
    a.I("s_cbranch_scc1 L_A_pos0reg")
    a.I(f"s_cmp_eq_u32 s{sU}, 4")
    a.I("s_cbranch_scc1 L_A_last")
    step(0, boundary=True, tag="_bm")
    a.I("s_branch L_A_pos1")
    a.L("L_A_pos0reg")
    step(0, tag="_0")
    a.L("L_A_pos1")
    step(1, tag="_1")
    step(2, tag="_2")
    step(3, tag="_3")
    a.I(f"s_add_u32 s{sIt}, s{sIt}, 1")
    a.I(f"s_cmp_eq_u32 s{sIt}, 4")
    a.I("s_cbranch_scc0 L_A_loop")
    a.I(f"s_mov_b32 s{sIt}, 0")
    a.I(f"s_add_u32 s{sU}, s{sU}, 1")
    a.I("s_branch L_A_loop")
    a.L("L_A_last")
    step(0, has_qk=False, has_pv=True, boundary=True, tag="_bl")
    a.I("s_branch L_tail")
    for tag, Sn in rare_blocks:
        a.L(f"L_A_rare{tag}")
        a.I("s_nop 15")
        a.I(f"v_mov_b32 v{t0}, v{mx}")
        a.I("s_nop 1")
        a.I(f"v_permlane32_swap_b32 v{mx}, v{t0}")
        a.I("s_nop 0")
        a.I(f"v_max_f32 v{mx}, v{mx}, v{t0}")
        a.I(f"v_max_f32 v{mx}, 0, v{mx}")
        a.I(f"v_sub_f32 v{t0}, 0, v{mx}")
        a.I(f"v_exp_f32 v{inv}, v{t0}")
        a.I("s_nop 0")
        a.I(f"v_mov_b32 v{inv+1}, v{inv}")
        for j in range(16):
            a.I(f"v_sub_f32 v{Sn+j}, v{Sn+j}, v{mx}")
        for j in range(16):
            a.I(f"v_sub_f32 v{NM+j}, v{NM+j}, v{mx}")
        for j in range(32):
            a.I(f"v_pk_mul_f32 {vr(O+2*j,2)}, {vr(O+2*j,2)}, {vr(inv,2)}")
        a.I(f"v_mul_f32 v{l0}, v{l0}, v{inv}")
        a.I(f"v_mul_f32 v{l1}, v{l1}, v{inv}")
        a.I("s_nop 1")
        a.I(f"s_branch L_A_ret{tag}")

def gen_tail(a):
    a.L("L_tail")
    ACC = 0; AF = 96; BF = 112; vAA = 136; vB = 138; vWO = 139; vB2 = 140; vL = 141; vSt = 142; PK = 144
    SWO = 32; SPT = 36
    sSt = 48; sA = 49; sBq = 50; sStage = 51; sIt = 52; sRow = 53; sC = 54
    a.I("s_setprio 0")
    a.I("s_waitcnt lgkmcnt(0)")
    a.I("s_barrier")
    if cfg.stamps:
        a.I("s_and_b32 s96, s96, 0xfffffc00")
        a.I("s_add_u32 s96, s96, 1000")
    stamp(a, 246)
    dbg_stamp(a, 246)
    srd(a, SWO, P_WO, 0x400000)
    srd(a, SPT, P_WS, PART_BYTES)
    a.I(f"v_mbcnt_lo_u32_b32 v{vL}, -1, 0")
    a.I(f"v_mbcnt_hi_u32_b32 v{vL}, -1, v{vL}")
    a.I(f"s_lshl_b32 s{sStage}, s{S_WAVE}, 13")
    a.I(f"s_add_u32 s{sStage}, s{sStage}, 24576")
    a.I(f"s_cmp_eq_u32 s{S_WAVE}, 5")
    a.I(f"s_cselect_b32 s{sStage}, 90112, s{sStage}")
    a.I(f"s_cmp_eq_u32 s{S_WAVE}, 6")
    a.I(f"s_cselect_b32 s{sStage}, 147456, s{sStage}")
    a.I(f"s_cmp_eq_u32 s{S_WAVE}, 7")
    a.I(f"s_cselect_b32 s{sStage}, 155648, s{sStage}")
    a.I(f"v_lshrrev_b32 v1, 3, v{vL}")
    a.I(f"v_and_b32 v2, 7, v{vL}")
    a.I("v_bfe_u32 v3, v1, 1, 1")
    a.I("v_lshlrev_b32 v3, 2, v3")
    a.I("v_xor_b32 v2, v2, v3")
    a.I("v_lshlrev_b32 v2, 4, v2")
    a.I(f"v_lshl_add_u32 v{vWO}, v1, 10, v2")
    a.I(f"s_lshl_b32 s{sRow}, s{S_HB}, 17")
    a.I(f"s_lshl_b32 s{sA}, s{S_WAVE}, 7")
    a.I(f"s_add_u32 s{sRow}, s{sRow}, s{sA}")
    def issue_wo(slot, delta):
        a.I(f"s_add_u32 s{sA}, s{sSt}, s{S_B}")
        if delta: a.I(f"s_add_u32 s{sA}, s{sA}, {delta}")
        a.I(f"s_and_b32 s{sA}, s{sA}, 15")
        a.I(f"s_lshl_b32 s{sA}, s{sA}, 15")
        a.I(f"s_add_u32 s{sA}, s{sA}, s{sRow}")
        for i in range(4):
            a.I(f"s_add_u32 m0, s{sStage}, {slot*4096 + i*1024}")
            if i: a.I(f"s_add_u32 s{sA}, s{sA}, 8192")
            else: a.I("s_nop 0")
            a.I(f"buffer_load_dwordx4 v{vWO}, s[{SWO}:{SWO+3}], s{sA} offen{cfg.wo_pol} lds")
    a.I(f"s_mov_b32 s{sSt}, 0")
    issue_wo(0, 0); issue_wo(1, 1)
    a.I(f"v_and_b32 v1, 15, v{vL}")
    a.I(f"v_lshrrev_b32 v2, 4, v{vL}")
    a.I("v_lshrrev_b32 v3, 2, v1")
    a.I("v_lshrrev_b32 v4, 1, v2")
    a.I("v_lshl_add_u32 v5, v4, 2, v3")
    a.I("v_lshlrev_b32 v5, 7, v5")
    a.I("v_and_b32 v6, 1, v1")
    a.I("v_lshl_add_u32 v5, v6, 5, v5")
    a.I("v_and_b32 v6, 1, v2")
    a.I("v_lshl_add_u32 v5, v6, 4, v5")
    a.I("v_bfe_u32 v6, v1, 1, 1")
    a.I("v_lshl_add_u32 v5, v6, 3, v5")
    a.I(f"v_add_u32 v5, s{sStage}, v5")
    a.I("v_lshrrev_b32 v3, 1, v3")
    for nt in range(2):
        a.I(f"v_xor_b32 v6, {nt}, v3")
        a.I(f"v_lshl_add_u32 v{vAA+nt}, v6, 6, v5")
    a.I(f"v_lshlrev_b32 v{vB}, 4, v{vL}")
    for j in range(96):
        a.I(f"v_mov_b32 v{ACC+j}, 0")
    def sub(slot, last_pair):
        a.I(f"s_add_u32 s{sA}, s{sSt}, s{S_B}")
        if slot: a.I(f"s_add_u32 s{sA}, s{sA}, {slot}")
        a.I(f"s_and_b32 s{sA}, s{sA}, 15")
        a.I(f"s_lshr_b32 s{sBq}, s{sA}, 2")
        a.I(f"s_lshl_b32 s{sBq}, s{sBq}, 2")
        a.I(f"s_lshr_b32 s{sBq}, 0x08CF, s{sBq}")
        a.I(f"s_and_b32 s{sBq}, s{sBq}, 15")
        a.I(f"s_lshl_b32 s{sBq}, s{sBq}, 13")
        a.I(f"s_and_b32 s{sA}, s{sA}, 3")
        a.I(f"s_lshl_b32 s{sA}, s{sA}, 11")
        a.I(f"s_add_u32 s{sBq}, s{sBq}, s{sA}")
        a.I(f"v_add_u32 v{vB2}, s{sBq}, v{vB}")
        a.I(f"s_waitcnt vmcnt({0 if (last_pair and slot == 1) else 4})")
        for ks in range(2):
            for nt in range(2):
                for sec in range(2):
                    a.I(f"ds_read_b64_tr_b16 {vr(AF + ks*8 + nt*4 + sec*2, 2)}, v{vAA+nt} offset:{slot*4096 + ks*2048 + sec*1024}")
            for qt in range(3):
                a.I(f"ds_read_b128 {vr(BF + ks*12 + qt*4, 4)}, v{vB2} offset:{qt*8192 + ks*1024}")
        a.I("s_waitcnt lgkmcnt(7)")
        for nt in range(2):
            for qt in range(3):
                mfma(a, ACC + (nt*3 + qt)*16, AF + nt*4, BF + qt*4)
        a.I("s_waitcnt lgkmcnt(0)")
        if not last_pair: issue_wo(slot, slot + 2)
        for nt in range(2):
            for qt in range(3):
                mfma(a, ACC + (nt*3 + qt)*16, AF + 8 + nt*4, BF + 12 + qt*4)
    a.I(f"s_mov_b32 s{sIt}, 7")
    a.L("L_T_loop")
    sub(0, False); sub(1, False)
    a.I(f"s_add_u32 s{sSt}, s{sSt}, 2")
    a.I(f"s_sub_u32 s{sIt}, s{sIt}, 1")
    a.I(f"s_cmp_lg_u32 s{sIt}, 0")
    a.I("s_cbranch_scc1 L_T_loop")
    sub(0, True); sub(1, True)
    a.I(f"s_lshl_b32 s{sA}, s{S_P}, 4")
    a.I(f"s_add_u32 s{sA}, s{sA}, s{S_B}")
    a.I(f"s_lshl_b32 s{sA}, s{sA}, 3")
    a.I(f"s_add_u32 s{sA}, s{sA}, s{S_WAVE}")
    a.I(f"s_lshl_b32 s{sA}, s{sA}, 3")
    a.I(f"s_add_u32 s{sA}, s{sA}, s{S_MJ}")
    a.I(f"s_mul_i32 s{sA}, s{sA}, 12288")
    stamp(a, 246)
    dbg_stamp(a, 246)
    a.I("s_nop 7")
    for qt in range(3):
        for nt in range(2):
            base = ACC + (nt*3 + qt)*16
            pk = PK + ((qt*2 + nt) % 2) * 8
            if (qt, nt) == (0, 0): a.I("s_nop 3")
            for j in range(8):
                a.I(f"v_cvt_pk_bf16_f32 v{pk+j}, v{base+2*j}, v{base+2*j+1}")
            ch = (qt*2 + nt)*2
            a.I(f"s_add_u32 s{sBq}, s{sA}, {ch*1024}")
            a.I(f"buffer_store_dwordx4 {vr(pk,4)}, v{vB}, s[{SPT}:{SPT+3}], s{sBq} offen{cfg.part_st_pol}")
            a.I(f"buffer_store_dwordx4 {vr(pk+4,4)}, v{vB}, s[{SPT}:{SPT+3}], s{sBq} offen offset:1024{cfg.part_st_pol}")
    a.I("s_waitcnt vmcnt(0)")
    stamp(a, 246)
    dbg_stamp(a, 246)
    a.I("s_waitcnt vmcnt(0)")
    a.L("L_k1_end")
    a.I("s_endpgm")

def gen_k2(a):
    a.I("s_cmp_ge_u32 s2, 256")
    a.I("s_cbranch_scc1 L_k2_end")
    a.I("s_load_dwordx2 s[4:5], s[0:1], 80")
    a.I("s_load_dwordx2 s[6:7], s[0:1], 96")
    if cfg.dbgst: a.I("s_memrealtime s[34:35]")
    a.I("v_lshrrev_b32 v1, 6, v0")
    a.I("v_and_b32 v0, 63, v0")
    a.I("v_readfirstlane_b32 s20, v1")
    a.I("s_waitcnt lgkmcnt(0)")
    srd(a, 8, 6, PART_BYTES)
    srd(a, 12, 4, 16*96*1024*2)
    a.I("s_mul_i32 s21, s2, 98304")
    a.I("s_lshl_b32 s22, s20, 11")
    a.I("s_add_u32 s21, s21, s22")
    a.I("v_lshlrev_b32 v1, 4, v0")
    for src in range(8):
        a.I(f"s_add_u32 s23, s21, {src*12288}")
        a.I(f"buffer_load_dwordx4 {vr(8+src*8,4)}, v1, s[8:11], s23 offen{cfg.part_ld_pol}")
        a.I(f"buffer_load_dwordx4 {vr(8+src*8+4,4)}, v1, s[8:11], s23 offen offset:1024{cfg.part_ld_pol}")
    a.I("s_lshr_b32 s24, s2, 3")
    a.I("s_and_b32 s25, s2, 7")
    a.I("s_and_b32 s26, s24, 15")
    a.I("s_lshr_b32 s27, s24, 4")
    a.I("s_lshr_b32 s28, s20, 1")
    a.I("s_and_b32 s29, s20, 1")
    a.I("s_mul_i32 s26, s26, 96")
    a.I("s_lshl_b32 s28, s28, 5")
    a.I("s_add_u32 s26, s26, s28")
    a.I("s_lshl_b32 s26, s26, 11")
    a.I("s_lshl_b32 s27, s27, 10")
    a.I("s_lshl_b32 s25, s25, 7")
    a.I("s_lshl_b32 s29, s29, 6")
    a.I("s_add_u32 s26, s26, s27")
    a.I("s_add_u32 s26, s26, s25")
    a.I("s_add_u32 s26, s26, s29")
    a.I("v_and_b32 v2, 31, v0")
    a.I("v_lshlrev_b32 v2, 11, v2")
    a.I("v_lshrrev_b32 v3, 5, v0")
    a.I("v_lshl_add_u32 v2, v3, 5, v2")
    ACC = 80
    for src in range(8):
        a.I(f"s_waitcnt vmcnt({14 - 2*src})")
        for d in range(8):
            r = 8 + src*8 + d
            if src == 0:
                a.I(f"v_lshlrev_b32 v{ACC+2*d}, 16, v{r}")
                a.I(f"v_and_b32 v{ACC+2*d+1}, 0xffff0000, v{r}")
            else:
                a.I(f"v_lshlrev_b32 v4, 16, v{r}")
                a.I(f"v_and_b32 v5, 0xffff0000, v{r}")
                a.I(f"v_add_f32 v{ACC+2*d}, v{ACC+2*d}, v4")
                a.I(f"v_add_f32 v{ACC+2*d+1}, v{ACC+2*d+1}, v5")
    for d in range(8):
        a.I(f"v_cvt_pk_bf16_f32 v{8+d}, v{ACC+2*d}, v{ACC+2*d+1}")
    a.I("buffer_store_dwordx4 v[8:11], v2, s[12:15], s26 offen")
    a.I("buffer_store_dwordx4 v[12:15], v2, s[12:15], s26 offen offset:16")
    a.I("s_waitcnt vmcnt(0)")
    if cfg.dbgst:
        a.I("s_cmp_lg_u32 s2, 0")
        a.I("s_cbranch_scc1 L_k2_end")
        a.I("s_cmp_lg_u32 s20, 0")
        a.I("s_cbranch_scc1 L_k2_end")
        a.I("s_memrealtime s[36:37]")
        a.I("s_load_dwordx2 s[30:31], s[0:1], 88")
        a.I("s_waitcnt lgkmcnt(0)")
        a.I(f"s_add_u32 s8, s6, {40<<20}")
        a.I("s_addc_u32 s9, s7, 0")
        a.I("s_and_b32 s9, s9, 0xffff")
        a.I("s_mov_b32 s10, 256")
        a.I("s_mov_b32 s11, 0x20000")
        a.I("s_mov_b32 s12, s30")
        a.I("s_and_b32 s13, s31, 0xffff")
        a.I("s_mov_b32 s14, 64")
        a.I("s_mov_b32 s15, 0x20000")
        a.I("v_lshlrev_b32 v1, 2, v0")
        a.I("buffer_load_dword v2, v1, s[8:11], 0 offen sc1")
        a.I("s_waitcnt vmcnt(0)")
        a.I("v_mov_b32 v3, s34")
        a.I("v_cmp_eq_u32 vcc, 14, v0")
        a.I("s_nop 1")
        a.I("v_cndmask_b32 v2, v2, v3, vcc")
        a.I("v_mov_b32 v3, s36")
        a.I("v_cmp_eq_u32 vcc, 15, v0")
        a.I("s_nop 1")
        a.I("v_cndmask_b32 v2, v2, v3, vcc")
        a.I("buffer_store_dword v2, v1, s[12:15], 0 offen")
        a.I("s_waitcnt vmcnt(0)")
    a.L("L_k2_end")
    a.I("s_endpgm")

def kd(a, name, vgpr, sgpr):
    a.raw('.section .rodata,"a"')
    a.raw(".p2align 6")
    a.raw(f".amdhsa_kernel {name}")
    a.raw(f"  .amdhsa_next_free_vgpr {vgpr}")
    a.raw(f"  .amdhsa_next_free_sgpr {sgpr}")
    a.raw(f"  .amdhsa_accum_offset {(vgpr+3)//4*4}")
    a.raw("  .amdhsa_group_segment_fixed_size 0")
    a.raw("  .amdhsa_kernarg_size 104")
    a.raw("  .amdhsa_user_sgpr_count 2")
    a.raw("  .amdhsa_user_sgpr_kernarg_segment_ptr 1")
    a.raw("  .amdhsa_system_sgpr_workgroup_id_x 1")
    a.raw(".end_amdhsa_kernel")

def build():
    a = Asm()
    a.raw(f"; @launch kernel={K1} grid=(256,1,1) block=(512,1,1) lds={LDS_BYTES}")
    a.raw(f"; @launch kernel={K2} grid=(256,1,1) block=(384,1,1) lds=0")
    a.raw('.amdgcn_target "amdgcn-amd-amdhsa--gfx950"')
    a.raw(".text")
    a.raw(f".globl {K1}")
    a.raw(".p2align 8")
    a.raw(f".type {K1},@function")
    a.L(K1)
    setup_common(a)
    gen_loader(a, True)
    gen_loader(a, False)
    gen_G(a)
    gen_A(a)
    gen_tail(a)
    a.raw(f".globl {K2}")
    a.raw(".p2align 8")
    a.raw(f".type {K2},@function")
    a.L(K2)
    gen_k2(a)
    kd(a, K1, 256, 102 if (cfg.stamps or cfg.dbgst) else 64)
    a.raw(".text")
    kd(a, K2, 96, 40)
    return a

if __name__ == "__main__":
    for arg in sys.argv[2:]:
        k, v = arg.split("=", 1)
        cur = getattr(cfg, k)
        if isinstance(cur, bool): v = v in ("1", "True", "true")
        elif isinstance(cur, int): v = int(v)
        elif isinstance(cur, float): v = float(v)
        else: v = v.replace("_", " ")
        setattr(cfg, k, v)
    a = build()
    out = sys.argv[1] if len(sys.argv) > 1 else f"cdna_kernels/{NAME}.s"
    open(out, "w").write(a.text())
    probs = check_file(a.lines)
    for p in probs: print("HAZARD", p)
    print("wrote", out, len(a.lines), "lines;", len(probs), "hazard reports")
```

```python
import struct, math, sys
from asmlib import Asm, vr, sr, check_file

NAME = "concat_heads__mha_block_cached__gqa_block_cached__near_ridge"
K1 = "attn_kernel"
K2 = "reduce_kernel"

def f2u(x): return struct.unpack("<I", struct.pack("<f", x))[0]
CSCALE = math.log2(math.e) / math.sqrt(128.0)

KR = 0; VR = 32768; WR = 65536; QH = 98304; XS = 98304
OS = [122880, 98304, 65536, 0]
STAGE = [24576, 32768, 40960, 49152, 57344, 90112, 147456, 155648]
LDS_BYTES = 163840
PART_BYTES = 32 * 64 * 12288

class Cfg:
    kv_pol = " nt"
    wq_pol = " nt"
    x_pol = ""
    wo_pol = ""
    part_st_pol = " sc1"
    part_ld_pol = " sc1"
    thresh = 8.0
    debug_dump = False
    prio_a = 0
    stamps = 0
    nokv = False
    nog = False
    dbgwave = 0
    dbgwg = 0
    part_off = 0
    fused = True
    noa = False
    nogr = False
    nowq = False
    dbgst = False

cfg = Cfg()

S_WAVE = 20; S_XCD = 21; S_SLOT = 22; S_P = 23; S_B = 24; S_HQ = 25; S_HB = 26; S_RHO = 27; S_MJ = 28
P_X = 8; P_K = 10; P_V = 12; P_WQ = 14; P_WO = 16; P_WS = 18

def srd(a, dst, ptr, size):
    a.I(f"s_mov_b32 s{dst}, s{ptr}")
    a.I(f"s_and_b32 s{dst+1}, s{ptr+1}, 0xffff")
    a.I(f"s_mov_b32 s{dst+2}, {hex(size)}")
    a.I(f"s_mov_b32 s{dst+3}, 0x20000")

def setup_common(a):
    a.I("s_cmp_ge_u32 s2, 256")
    a.I("s_cbranch_scc1 L_k1_end")
    a.I(f"s_and_b32 s{S_XCD}, s2, 7")
    a.I(f"s_lshr_b32 s{S_SLOT}, s2, 3")
    a.I(f"s_lshr_b32 s{S_P}, s{S_XCD}, 2")
    a.I(f"s_mul_i32 s3, s{S_P}, 40")
    a.I("s_add_u32 s4, s0, s3")
    a.I("s_addc_u32 s5, s1, 0")
    a.I("s_load_dwordx8 s[8:15], s[4:5], 0")
    a.I(f"s_load_dwordx2 s[{P_WO}:{P_WO+1}], s[4:5], 32")
    a.I(f"s_load_dwordx2 s[{P_WS}:{P_WS+1}], s[0:1], 96")
    a.I("v_lshrrev_b32 v1, 6, v0")
    a.I("v_and_b32 v0, 63, v0")
    a.I(f"v_readfirstlane_b32 s{S_WAVE}, v1")
    a.I(f"s_lshr_b32 s{S_B}, s{S_SLOT}, 1")
    a.I(f"s_and_b32 s{S_HQ}, s{S_SLOT}, 1")
    a.I(f"s_and_b32 s3, s{S_XCD}, 3")
    a.I("s_lshl_b32 s3, s3, 1")
    a.I(f"s_add_u32 s{S_MJ}, s3, s{S_HQ}")
    a.I(f"s_lshl_b32 s{S_HB}, s{S_MJ}, 2")
    a.I(f"s_and_b32 s{S_RHO}, s{S_B}, 3")
    a.I(f"s_lshl_b32 s{S_RHO}, s{S_RHO}, 2")
    a.I("s_waitcnt lgkmcnt(0)")
    dbg_setup(a)
    a.I(f"s_cmp_lt_u32 s{S_WAVE}, 3")
    a.I("s_cbranch_scc1 L_roleA")
    a.I(f"s_cmp_eq_u32 s{S_WAVE}, 3")
    a.I("s_cbranch_scc1 L_roleLK")
    a.I(f"s_cmp_eq_u32 s{S_WAVE}, 7")
    a.I("s_cbranch_scc1 L_roleLV")
    a.I("s_branch L_roleG")

def gen_loader(a, isK):
    tag = "LK" if isK else "LV"
    D = 13 if isK else 14
    a.L(f"L_role{tag}")
    SKV = 32; SW = 36
    srd(a, SKV, P_K if isK else P_V, 0x4000000)
    srd(a, SW, P_WQ, 0x400000)
    sKB = 48; sT = 49; sTau = 50; sN = 51; sA = 52; sBq = 53; sWrow = 54
    a.I(f"s_lshl_b32 s{sKB}, s{S_B}, 5")
    a.I(f"s_add_u32 s{sKB}, s{sKB}, s{S_HB}")
    a.I(f"s_lshl_b32 s{sKB}, s{sKB}, 17")
    a.I("v_and_b32 v1, 15, v0")
    a.I("v_lshrrev_b32 v2, 4, v0")
    if isK:
        for j in range(4):
            a.I(f"v_add_u32 v3, {4*j}, v2")
            a.I("v_xor_b32 v3, v1, v3")
            a.I("v_lshlrev_b32 v3, 4, v3")
            a.I(f"v_lshl_add_u32 v{4+j}, v2, 8, v3")
    else:
        a.I("v_lshlrev_b32 v3, 2, v2")
        a.I("v_xor_b32 v3, v1, v3")
        a.I("v_lshlrev_b32 v3, 4, v3")
        for j in range(4):
            a.I(f"v_lshl_add_u32 v{4+j}, v2, 8, v3")
    a.I("v_lshlrev_b32 v3, 2, v2")
    a.I("v_xor_b32 v3, v1, v3")
    a.I("v_lshlrev_b32 v3, 4, v3")
    a.I("v_lshlrev_b32 v9, 13, v2")
    a.I("v_add_u32 v8, v9, v3")
    i0 = 0 if isK else 4
    LB = KR if isK else VR

    def issue_w():
        a.I(f"s_add_u32 s{sA}, s{S_RHO}, s{sTau}")
        a.I(f"s_and_b32 s{sA}, s{sA}, 15")
        a.I(f"s_lshl_b32 s{sA}, s{sA}, 18")
        a.I(f"s_lshr_b32 s{sBq}, s{sTau}, 4")
        a.I(f"s_add_u32 s{sBq}, s{sBq}, s{S_HB}")
        a.I(f"s_lshl_b32 s{sBq}, s{sBq}, 8")
        a.I(f"s_add_u32 s{sA}, s{sA}, s{sBq}")
        a.I(f"s_add_u32 s{sA}, s{sA}, {i0*4*8192}")
        a.I(f"s_and_b32 s{sBq}, s{sTau}, 3")
        a.I(f"s_lshl_b32 s{sBq}, s{sBq}, 13")
        a.I(f"s_add_u32 s{sBq}, s{sBq}, {WR + i0*1024}")
        for i in range(4):
            a.I(f"s_add_u32 m0, s{sBq}, {i*1024}")
            if i: a.I(f"s_add_u32 s{sA}, s{sA}, 32768")
            else: a.I("s_nop 0")
            a.I(f"buffer_load_dwordx4 v8, s[{SW}:{SW+3}], s{sA} offen{cfg.wq_pol} lds")
        a.I(f"s_add_u32 s{sTau}, s{sTau}, 1")

    def issue_kv():
        a.I(f"s_lshl_b32 s{sA}, s{sT}, 13")
        a.I(f"s_add_u32 s{sA}, s{sA}, s{sKB}")
        a.I(f"s_and_b32 s{sBq}, s{sT}, 3")
        a.I(f"s_lshl_b32 s{sBq}, s{sBq}, 13")
        for half in range(2):
            if cfg.nokv: break
            a.I(f"s_add_u32 m0, s{sBq}, {LB + half*4096}")
            if half: a.I(f"s_add_u32 s{sA}, s{sA}, 4096")
            else: a.I("s_nop 0")
            for j in range(4):
                off = f" offset:{j*1024}" if j else ""
                a.I(f"buffer_load_dwordx4 v{4+j}, s[{SKV}:{SKV+3}], s{sA} offen{off}{cfg.kv_pol} lds")
        a.I(f"s_add_u32 s{sT}, s{sT}, 1")

    stamp_setup(a)
    a.I(f"s_mov_b32 s{sT}, 0")
    a.I(f"s_mov_b32 s{sTau}, 0")
    for _ in range(3): issue_w()
    a.I("s_waitcnt vmcnt(8)")
    WLAST = 16 if cfg.nowq else 60
    def cnt(n):
        if n < 0: return 4
        return (4 if n <= WLAST else 0) + (8 if (D <= n <= D + 63 and not cfg.nokv) else 0)
    phases = []
    for n in range(82):
        key = (D <= n <= D + 63, n <= WLAST, cnt(n) + cnt(n - 1))
        if phases and phases[-1][0] == key: phases[-1][2] = n
        else: phases.append([key, n, n])
    for pi, (key, n0, n1) in enumerate(phases):
        kv, w, N = key
        cntn = n1 - n0 + 1
        if cntn > 1:
            a.I(f"s_mov_b32 s{sN}, {cntn}")
            a.L(f"L_{tag}_ph{pi}")
        a.I("s_barrier")
        stamp(a, 20)
        if kv: issue_kv()
        if w: issue_w()
        stamp(a, 20)
        a.I(f"s_waitcnt vmcnt({N + (7 if cfg.stamps == 2 else 0)})")
        stamp(a, 20)
        if cntn > 1:
            a.I(f"s_sub_u32 s{sN}, s{sN}, 1")
            a.I(f"s_cmp_lg_u32 s{sN}, 0")
            a.I(f"s_cbranch_scc1 L_{tag}_ph{pi}")
    a.I("s_branch L_tail")

STAMP_BASE = 32 << 20
def stamp_setup(a):
    if not cfg.stamps: return
    a.I(f"s_mov_b32 s92, s{P_WS}")
    a.I(f"s_and_b32 s93, s{P_WS+1}, 0xffff")
    a.I(f"s_mov_b32 s94, {hex(STAMP_BASE + (2<<20))}")
    a.I("s_mov_b32 s95, 0x20000")
    a.I("s_lshl_b32 s96, s2, 3")
    a.I(f"s_add_u32 s96, s96, s{S_WAVE}")
    a.I("s_lshl_b32 s96, s96, 10")
    a.I(f"s_add_u32 s96, s96, {STAMP_BASE}")
def stamp(a, vtmp, level=2):
    if cfg.stamps != level: return
    a.I("s_memrealtime s[98:99]")
    if level == 1: a.I("s_memtime s[100:101]")
    a.I("s_waitcnt lgkmcnt(0)")
    a.I(f"v_mov_b32 v{vtmp}, s98")
    a.I(f"v_mov_b32 v{vtmp+1}, 0")
    a.I(f"buffer_store_dword v{vtmp}, v{vtmp+1}, s[92:95], s96 offen")
    if level == 1:
        a.I(f"v_mov_b32 v{vtmp}, s100")
        a.I(f"buffer_store_dword v{vtmp}, v{vtmp+1}, s[92:95], s96 offen offset:4")
        a.I("s_add_u32 s96, s96, 4")
    a.I("s_add_u32 s96, s96, 4")

def dbg_setup(a):
    if not cfg.dbgst: return
    a.I("s_load_dwordx2 s[90:91], s[0:1], 88")
    a.I("s_waitcnt lgkmcnt(0)")
    a.I("s_mov_b32 s92, s90")
    a.I("s_and_b32 s93, s91, 0xffff")
    a.I("s_mov_b32 s94, 0")
    a.I("s_mov_b32 s96, 0")
    a.I(f"s_cmp_lg_u32 s{S_WAVE}, {cfg.dbgwave}")
    a.I("s_cbranch_scc1 L_dbg_done")
    a.I(f"s_cmp_eq_u32 s2, {cfg.dbgwg}")
    a.I("s_cselect_b32 s94, 64, 0")
    a.L("L_dbg_done")
    a.I("s_mov_b32 s95, 0x20000")
def dbg_stamp(a, vtmp):
    if not cfg.dbgst: return
    a.I("s_memrealtime s[98:99]")
    a.I("s_waitcnt lgkmcnt(0)")
    a.I(f"v_mov_b32 v{vtmp}, s98")
    a.I(f"v_mov_b32 v{vtmp+1}, 0")
    a.I(f"buffer_store_dword v{vtmp}, v{vtmp+1}, s[92:95], s96 offen")
    a.I("s_add_u32 s96, s96, 4")

def mfma(a, d, A, B, c=None):
    cs = vr(d, 16) if c is None else (c if isinstance(c, str) else vr(c, 16))
    a.I(f"v_mfma_f32_32x32x16_bf16 {vr(d,16)}, {vr(A,4)}, {vr(B,4)}, {cs}")

def kpattern_addr(a, dst, n, base_imm=None):
    a.I("v_and_b32 v1, 31, v0")
    a.I("v_lshrrev_b32 v2, 5, v0")
    a.I("v_and_b32 v3, 15, v0")
    a.I("v_xor_b32 v3, v3, v2")
    a.I("v_lshlrev_b32 v1, 8, v1")
    for k in range(n):
        a.I(f"v_xor_b32 v2, {2*k}, v3")
        a.I(f"v_lshl_add_u32 v{dst+k}, v2, 4, v1")
        if base_imm: a.I(f"v_add_u32 v{dst+k}, {base_imm}, v{dst+k}")

def gen_G(a):
    a.L("L_roleG")
    X = 0; QA = 128; WF = 192; vWA = 224; vXA = 228; vXO = 236; vL16 = 240; vLane = 241
    SX = 32
    sW = 48; sA = 49; sBq = 50; sU = 51; sXb = 52; sC = 56; sPi = 53
    srd(a, SX, P_X, 16*96*512*2)
    a.I(f"s_sub_u32 s{sW}, s{S_WAVE}, 4")
    a.I(f"s_mov_b32 s{sC}, {hex(f2u(CSCALE))}")
    a.I(f"s_mov_b32 s{sC+1}, {hex(f2u(CSCALE))}")
    a.I(f"v_mov_b32 v{vLane}, v0")
    a.I(f"v_lshlrev_b32 v{vL16}, 4, v0")
    kpattern_addr(a, vXA, 8)
    a.I(f"s_lshl_b32 s{sA}, s{sW}, 14")
    a.I(f"s_add_u32 s{sA}, s{sA}, {XS}")
    for k in range(8):
        a.I(f"v_add_u32 v{vXA+k}, s{sA}, v{vXA+k}")
    a.I("v_and_b32 v1, 15, v0")
    a.I("v_lshrrev_b32 v2, 4, v0")
    for j in range(4):
        a.I(f"v_add_u32 v3, {4*j}, v2")
        a.I("v_xor_b32 v3, v1, v3")
        a.I("v_lshlrev_b32 v3, 4, v3")
        a.I(f"v_lshl_add_u32 v{vXO+j}, v2, 10, v3")
    a.I("v_lshrrev_b32 v3, 2, v1")
    a.I("v_lshrrev_b32 v4, 1, v2")
    a.I("v_lshl_add_u32 v5, v4, 3, v3")
    a.I("v_lshlrev_b32 v5, 8, v5")
    a.I("v_and_b32 v6, 1, v2")
    a.I("v_lshlrev_b32 v6, 5, v6")
    a.I("v_add_u32 v5, v5, v6")
    a.I("v_and_b32 v6, 1, v1")
    a.I("v_lshl_add_u32 v5, v6, 4, v5")
    a.I("v_bfe_u32 v6, v1, 1, 1")
    a.I("v_lshl_add_u32 v5, v6, 3, v5")
    a.I(f"v_add_u32 v5, {WR}, v5")
    for i in range(4):
        a.I(f"v_xor_b32 v6, {i}, v3")
        a.I(f"v_lshl_add_u32 v{vWA+i}, v6, 6, v5")
    a.I(f"s_mul_i32 s{sXb}, s{S_B}, 98304")
    a.I(f"s_lshl_b32 s{sA}, s{sW}, 15")
    a.I(f"s_add_u32 s{sXb}, s{sXb}, s{sA}")

    def issue_x(piece):
        a.I(f"s_lshr_b32 s{sPi}, s{S_RHO}, 2")
        a.I(f"s_add_u32 s{sPi}, s{sPi}, {piece}")
        a.I(f"s_and_b32 s{sPi}, s{sPi}, 3")
        a.I(f"s_lshl_b32 s{sPi}, s{sPi}, 8")
        a.I(f"s_add_u32 s{sA}, s{sXb}, s{sPi}")
        a.I(f"s_lshl_b32 s{sBq}, s{sW}, 14")
        a.I(f"s_add_u32 s{sBq}, s{sBq}, {XS + (piece & 1)*8192}")
        for i in range(8):
            a.I(f"s_add_u32 m0, s{sBq}, {i*1024}")
            if i: a.I(f"s_add_u32 s{sA}, s{sA}, 4096")
            else: a.I("s_nop 0")
            a.I(f"buffer_load_dwordx4 v{vXO + (i & 3)}, s[{SX}:{SX+3}], s{sA} offen{cfg.x_pol} lds")
    stamp_setup(a)
    issue_x(0); issue_x(1)

    def task(t, first_unit):
        slot = t & 3
        stamp(a, 246)
        a.I("s_barrier")
        stamp(a, 246)
        if first_unit and t % 4 == 0:
            piece = t // 4
            a.I(f"s_waitcnt vmcnt({8 if piece < 3 else 0})")
            for k in range(8):
                a.I(f"ds_read_b128 {vr(X + piece*32 + k*4, 4)}, v{vXA+k} offset:{(piece&1)*8192}")
            a.I("s_waitcnt lgkmcnt(0)")
            if piece + 2 < 4: issue_x(piece + 2)
        if cfg.nogr and not first_unit: return
        def rd(ks, i, sec):
            dst = WF + ks*16 + i*4 + sec*2
            a.I(f"ds_read_b64_tr_b16 {vr(dst,2)}, v{vWA+i} offset:{slot*8192 + ks*4096 + sec*1024}")
        for i in range(4):
            rd(0, i, 0); rd(0, i, 1)
        for i in range(2):
            rd(1, i, 0); rd(1, i, 1)
        a.I("s_waitcnt lgkmcnt(4)")
        xb = X + t*8
        c0 = "0" if t == 0 else None
        if cfg.nog and not first_unit:
            a.I("s_waitcnt lgkmcnt(0)")
            return
        mfma(a, QA + 0, WF + 0, xb, c0)
        rd(1, 2, 0); rd(1, 2, 1)
        mfma(a, QA + 16, WF + 4, xb, c0)
        rd(1, 3, 0); rd(1, 3, 1)
        mfma(a, QA + 32, WF + 8, xb, c0)
        mfma(a, QA + 48, WF + 12, xb, c0)
        a.I("s_waitcnt lgkmcnt(4)")
        mfma(a, QA + 0, WF + 16, xb + 4)
        mfma(a, QA + 16, WF + 20, xb + 4)
        a.I("s_waitcnt lgkmcnt(0)")
        mfma(a, QA + 32, WF + 24, xb + 4)
        mfma(a, QA + 48, WF + 28, xb + 4)

    def handoff():
        a.I(f"s_cmp_lt_u32 s{sU}, 3")
        a.I(f"s_cselect_b32 s{sA}, {QH//8192}, {WR//8192}")
        a.I(f"s_add_u32 s{sA}, s{sA}, s{sW}")
        a.I(f"s_lshl_b32 s{sA}, s{sA}, 13")
        a.I(f"v_add_u32 v242, s{sA}, v{vL16}")
        a.I("s_nop 7")
        for j in range(32):
            if j == 24: a.I("s_nop 1")
            a.I(f"v_pk_mul_f32 {vr(QA+2*j,2)}, {vr(QA+2*j,2)}, s[{sC}:{sC+1}]")
        for j in range(32):
            a.I(f"v_cvt_pk_bf16_f32 v{WF+j}, v{QA+2*j}, v{QA+2*j+1}")
        for k in range(8):
            a.I(f"ds_write_b128 v242, {vr(WF+4*k,4)} offset:{k*1024}")
        a.I("s_waitcnt lgkmcnt(0)")

    a.I(f"s_mov_b32 s{sU}, 0")
    for t in range(16): task(t, True)
    handoff()
    a.I(f"s_mov_b32 s{sU}, 1")
    a.L("L_G_unit")
    for t in range(16): task(t, False)
    handoff()
    a.I(f"s_add_u32 s{sU}, s{sU}, 1")
    a.I(f"s_cmp_lt_u32 s{sU}, 4")
    a.I("s_cbranch_scc1 L_G_unit")
    a.I(f"s_mov_b32 s{sU}, 18")
    a.L("L_G_idle")
    a.I("s_barrier")
    a.I(f"s_sub_u32 s{sU}, s{sU}, 1")
    a.I(f"s_cmp_lg_u32 s{sU}, 0")
    a.I("s_cbranch_scc1 L_G_idle")
    a.I("s_branch L_tail")

def gen_A(a):
    a.L("L_roleA")
    O = 0; Q = 64; S = [96, 112]; NM = 128; P = [144, 152]; KF = 160; VF = 192
    vKA = 224; vVA = 232; l0 = 236; l1 = 237; mx = 238; t0 = 239; inv = 240; vL16 = 242; vAd = 243; t1 = 244; t2 = 245
    sIt = 48; sU = 49; sA = 50; sBq = 51; sW = S_WAVE
    if cfg.prio_a: a.I(f"s_setprio {cfg.prio_a}")
    stamp_setup(a)
    stamp(a, 246)
    stamp(a, 246, 1)
    dbg_stamp(a, 246)
    a.I(f"v_lshlrev_b32 v{vL16}, 4, v0")
    kpattern_addr(a, vKA, 8)
    a.I("v_and_b32 v1, 15, v0")
    a.I("v_lshrrev_b32 v2, 4, v0")
    a.I("v_lshrrev_b32 v3, 2, v1")
    a.I("v_lshrrev_b32 v4, 1, v2")
    a.I("v_lshl_add_u32 v5, v4, 2, v3")
    a.I("v_lshlrev_b32 v5, 8, v5")
    a.I("v_and_b32 v6, 1, v2")
    a.I("v_lshlrev_b32 v6, 5, v6")
    a.I("v_add_u32 v5, v5, v6")
    a.I("v_bfe_u32 v6, v1, 1, 1")
    a.I("v_lshl_add_u32 v5, v6, 4, v5")
    a.I("v_and_b32 v6, 1, v1")
    a.I("v_lshl_add_u32 v5, v6, 3, v5")
    a.I(f"v_add_u32 v5, {VR}, v5")
    for i in range(4):
        a.I(f"v_xor_b32 v6, {i}, v3")
        a.I(f"v_lshl_add_u32 v{vVA+i}, v6, 6, v5")
    a.I(f"v_mov_b32 v{l0}, 0")
    a.I(f"v_mov_b32 v{l1}, 0")
    a.I(f"s_mov_b32 s{sIt}, 16")
    a.L("L_A_idle")
    stamp(a, 246)
    a.I("s_barrier")
    stamp(a, 246)
    a.I(f"s_sub_u32 s{sIt}, s{sIt}, 1")
    a.I(f"s_cmp_lg_u32 s{sIt}, 0")
    a.I("s_cbranch_scc1 L_A_idle")

    rare_blocks = []

    def step(pos, tag, pv=True, pv_c0=False, sm=True, qk=True, first=False, fin_l=False, finalize=False, vrd=True, check=True):
        Sn = S[pos % 2]; Sc = S[(pos + 1) % 2]
        Pw = P[(pos + 1) % 2]; Pr = P[pos % 2]
        vslot = (pos + 3) % 4
        stamp(a, 246)
        a.I("s_barrier")
        stamp(a, 246)
        if first: dbg_stamp(a, 246)
        if first or tag == "_l0": stamp(a, 246, 1)
        if cfg.noa: return
        if first:
            a.I(f"s_cmp_lt_u32 s{sU}, 3")
            a.I(f"s_cselect_b32 s{sA}, {QH//8192}, {WR//8192}")
            a.I(f"s_add_u32 s{sA}, s{sA}, s{sW}")
            a.I(f"s_lshl_b32 s{sA}, s{sA}, 13")
            a.I(f"v_add_u32 v{vAd}, s{sA}, v{vL16}")
            for k in range(8):
                a.I(f"ds_read_b128 {vr(Q+4*k,4)}, v{vAd} offset:{k*1024}")
        if qk:
            for k in range(8):
                a.I(f"ds_read_b128 {vr(KF+4*k,4)}, v{vKA+k} offset:{pos*8192}")
        if finalize:
            a.I(f"s_sub_u32 s{sA}, s{sU}, 1")
            a.I(f"s_lshl_b32 s{sA}, s{sA}, 2")
            a.I(f"s_lshr_b32 s{sA}, 0x08CF, s{sA}")
            a.I(f"s_and_b32 s{sA}, s{sA}, 15")
            a.I(f"s_add_u32 s{sA}, s{sA}, s{sW}")
            a.I(f"s_lshl_b32 s{sA}, s{sA}, 13")
            a.I(f"v_add_u32 v{vAd}, s{sA}, v{vL16}")
        def valu_gap(g):
            if not sm: return
            a.I(f"v_exp_f32 v{Sc+g}, v{Sc+g}")
            if g >= 1:
                a.I(f"v_add_f32 v{l0 + ((g-1) & 1)}, v{l0 + ((g-1) & 1)}, v{Sc+g-1}")
            if g >= 2 and g % 2 == 0:
                j = g // 2 - 1
                a.I(f"v_cvt_pk_bf16_f32 v{Pw+j}, v{Sc+2*j}, v{Sc+2*j+1}")
        for g in range(8):
            if pv:
                ks, i = g // 4, g % 4
                c = "0" if (pv_c0 and ks == 0) else None
                mfma(a, O + 16*i, VF + (ks*4 + i)*4, Pr + 4*ks, c)
            valu_gap(g)
        nv = 0; nw = 0
        if not pv and not sm and qk:
            pass
        for k in range(8):
            if qk:
                a.I(f"s_waitcnt lgkmcnt({min(15, 7 - k + nv + nw)})")
                c = ("0" if first else vr(NM, 16)) if k == 0 else None
                mfma(a, Sn, KF + 4*k, Q + 4*k, c)
                qk_mark = a.mark()
            if vrd:
                for sec in range(2):
                    idx = 2*k + sec
                    ks, i, sc = idx // 8, (idx // 2) % 4, idx % 2
                    a.I(f"ds_read_b64_tr_b16 {vr(VF + (ks*4 + i)*4 + sc*2, 2)}, v{vVA+i} offset:{vslot*8192 + ks*4096 + sc*2048}")
                    nv += 1
            valu_gap(8 + k)
            if finalize:
                if k == 0 and not qk: a.I("s_nop 7")
                if k == 0: a.I("s_nop 3")
                for j in range(4):
                    a.I(f"v_pk_mul_f32 {vr(O+8*k+2*j,2)}, {vr(O+8*k+2*j,2)}, {vr(inv,2)}")
                for j in range(4):
                    a.I(f"v_cvt_pk_bf16_f32 v{O+4*k+j}, v{O+8*k+2*j}, v{O+8*k+2*j+1}")
                a.I(f"ds_write_b128 v{vAd}, {vr(O+4*k,4)} offset:{k*1024}")
                nw += 1
        if sm:
            a.I("s_nop 0")
            a.I(f"v_add_f32 v{l1}, v{l1}, v{Sc+15}")
            a.I(f"v_cvt_pk_bf16_f32 v{Pw+7}, v{Sc+14}, v{Sc+15}")
        if fin_l:
            a.I(f"v_add_f32 v{l0}, v{l0}, v{l1}")
            a.I(f"v_mov_b32 v{l1}, 0")
            a.I(f"v_mov_b32 v{t0}, v{l0}")
            a.I("s_nop 1")
            a.I(f"v_permlane32_swap_b32 v{l0}, v{t0}")
            a.I("s_nop 0")
            a.I(f"v_add_f32 v{t0}, v{l0}, v{t0}")
            a.I(f"v_rcp_f32 v{inv}, v{t0}")
            a.I(f"v_mov_b32 v{l0}, 0")
            a.I(f"v_mov_b32 v{inv+1}, v{inv}")
        if qk:
            a.pad_since(qk_mark, 12)
            a.I(f"v_max3_f32 v{mx}, v{Sn}, v{Sn+1}, v{Sn+2}")
            a.I(f"v_max3_f32 v{t1}, v{Sn+3}, v{Sn+4}, v{Sn+5}")
            a.I(f"v_max3_f32 v{mx}, v{mx}, v{Sn+6}, v{Sn+7}")
            a.I(f"v_max3_f32 v{t1}, v{t1}, v{Sn+8}, v{Sn+9}")
            a.I(f"v_max3_f32 v{mx}, v{mx}, v{Sn+10}, v{Sn+11}")
            a.I(f"v_max3_f32 v{t1}, v{t1}, v{Sn+12}, v{Sn+13}")
            a.I(f"v_max3_f32 v{mx}, v{mx}, v{Sn+14}, v{Sn+15}")
            a.I(f"v_max_f32 v{mx}, v{mx}, v{t1}")
            if first:
                a.I(f"v_mov_b32 v{t0}, v{mx}")
                a.I("s_nop 1")
                a.I(f"v_permlane32_swap_b32 v{mx}, v{t0}")
                a.I("s_nop 0")
                a.I(f"v_max_f32 v{mx}, v{mx}, v{t0}")
                for j in range(16):
                    a.I(f"v_sub_f32 v{Sn+j}, v{Sn+j}, v{mx}")
                for j in range(16):
                    a.I(f"v_sub_f32 v{NM+j}, 0, v{mx}")
            elif check:
                a.I(f"v_cmp_lt_f32 vcc, {hex(f2u(cfg.thresh))}, v{mx}")
                a.I(f"s_cbranch_vccnz L_A_rare{tag}")
                a.L(f"L_A_ret{tag}")
                rare_blocks.append((tag, Sn, Pw, sm))
        a.I("s_waitcnt lgkmcnt(0)")

    a.I(f"s_mov_b32 s{sU}, 0")
    step(0, "_f0", pv=False, sm=False, first=True, vrd=False)
    step(1, "_f1", pv=False)
    a.I(f"s_mov_b32 s{sIt}, 0")
    a.I("s_branch L_A_b2")
    a.L("L_A_loop")
    a.I(f"s_cmp_lg_u32 s{sIt}, 0")
    a.I("s_cbranch_scc1 L_A_reg0")
    a.I(f"s_cmp_eq_u32 s{sU}, 4")
    a.I("s_cbranch_scc1 L_A_last")
    step(0, "_b0", first=True, fin_l=True)
    step(1, "_b1", finalize=True)
    a.L("L_A_b2")
    step(2, "_b2", pv_c0=True)
    a.I("s_branch L_A_reg3")
    a.L("L_A_reg0")
    step(0, "_0")
    step(1, "_1")
    step(2, "_2")
    a.L("L_A_reg3")
    step(3, "_3")
    a.I(f"s_add_u32 s{sIt}, s{sIt}, 1")
    a.I(f"s_cmp_eq_u32 s{sIt}, 4")
    a.I("s_cbranch_scc0 L_A_loop")
    a.I(f"s_mov_b32 s{sIt}, 0")
    a.I(f"s_add_u32 s{sU}, s{sU}, 1")
    a.I("s_branch L_A_loop")
    a.L("L_A_last")
    step(0, "_l0", qk=False, fin_l=True)
    step(1, "_l1", qk=False, sm=False, vrd=False, finalize=True)
    a.I("s_branch L_tail")
    for tag, Sn, Pw, sm in rare_blocks:
        a.L(f"L_A_rare{tag}")
        a.I("s_nop 15")
        a.I(f"v_mov_b32 v{t0}, v{mx}")
        a.I("s_nop 1")
        a.I(f"v_permlane32_swap_b32 v{mx}, v{t0}")
        a.I("s_nop 0")
        a.I(f"v_max_f32 v{mx}, v{mx}, v{t0}")
        a.I(f"v_max_f32 v{mx}, 0, v{mx}")
        a.I(f"v_ceil_f32 v{mx}, v{mx}")
        a.I(f"v_min_f32 v{t0}, 0x43480000, v{mx}")
        a.I(f"v_cvt_i32_f32 v{t0}, v{t0}")
        a.I(f"v_sub_u32 v{t0}, 0, v{t0}")
        a.I(f"v_ldexp_f32 v{t1}, 1.0, v{t0}")
        a.I(f"v_mov_b32 v{t2}, v{t1}")
        for j in range(16):
            a.I(f"v_sub_f32 v{Sn+j}, v{Sn+j}, v{mx}")
        for j in range(16):
            a.I(f"v_sub_f32 v{NM+j}, v{NM+j}, v{mx}")
        for j in range(32):
            a.I(f"v_pk_mul_f32 {vr(O+2*j,2)}, {vr(O+2*j,2)}, {vr(t1,2)}")
        a.I(f"v_mul_f32 v{l0}, v{l0}, v{t1}")
        a.I(f"v_mul_f32 v{l1}, v{l1}, v{t1}")
        for j in range(8):
            a.I(f"v_lshlrev_b32 v{mx}, 16, v{Pw+j}")
            a.I(f"v_and_b32 v{t0}, 0xffff0000, v{Pw+j}")
            a.I(f"v_mul_f32 v{mx}, v{mx}, v{t1}")
            a.I(f"v_mul_f32 v{t0}, v{t0}, v{t1}")
            a.I(f"v_cvt_pk_bf16_f32 v{Pw+j}, v{mx}, v{t0}")
        a.I("s_nop 1")
        a.I(f"s_branch L_A_ret{tag}")

def gen_tail(a):
    a.L("L_tail")
    ACC = 0; AF = 96; BF = 112; vAA = 136; vB = 138; vWO = 139; vB2 = 140; vL = 141; vB3 = 142; PK = 144
    SWO = 32; SPT = 36; SDB = 40; SOUT = 44
    sSt = 48; sA = 49; sBq = 50; sStage = 51; sIt = 52; sRow = 53; sC = 54; sG = 55
    a.I("s_setprio 0")
    a.I("s_waitcnt lgkmcnt(0)")
    a.I("s_barrier")
    if cfg.stamps:
        a.I("s_and_b32 s96, s96, 0xfffffc00")
        a.I(f"s_add_u32 s96, s96, {1000 if cfg.stamps == 2 else 512}")
    stamp(a, 246); stamp(a, 246, 1); dbg_stamp(a, 246)
    srd(a, SWO, P_WO, 0x400000)
    a.I(f"s_add_u32 s{SPT}, s{P_WS}, {cfg.part_off}")
    a.I(f"s_addc_u32 s{SPT+1}, s{P_WS+1}, 0")
    a.I(f"s_and_b32 s{SPT+1}, s{SPT+1}, 0xffff")
    a.I(f"s_mov_b32 s{SPT+2}, {hex(PART_BYTES)}")
    a.I(f"s_mov_b32 s{SPT+3}, 0x20000")
    a.I(f"v_mbcnt_lo_u32_b32 v{vL}, -1, 0")
    a.I(f"v_mbcnt_hi_u32_b32 v{vL}, -1, v{vL}")
    a.I(f"s_lshl_b32 s{sStage}, s{S_WAVE}, 13")
    a.I(f"s_add_u32 s{sStage}, s{sStage}, 24576")
    a.I(f"s_cmp_eq_u32 s{S_WAVE}, 5")
    a.I(f"s_cselect_b32 s{sStage}, 90112, s{sStage}")
    a.I(f"s_cmp_eq_u32 s{S_WAVE}, 6")
    a.I(f"s_cselect_b32 s{sStage}, 147456, s{sStage}")
    a.I(f"s_cmp_eq_u32 s{S_WAVE}, 7")
    a.I(f"s_cselect_b32 s{sStage}, 155648, s{sStage}")
    a.I(f"v_lshrrev_b32 v1, 3, v{vL}")
    a.I(f"v_and_b32 v2, 7, v{vL}")
    a.I("v_bfe_u32 v3, v1, 1, 1")
    a.I("v_lshlrev_b32 v3, 2, v3")
    a.I("v_xor_b32 v2, v2, v3")
    a.I("v_lshlrev_b32 v2, 4, v2")
    a.I(f"v_lshl_add_u32 v{vWO}, v1, 10, v2")
    a.I(f"s_lshl_b32 s{sRow}, s{S_HB}, 17")
    a.I(f"s_lshl_b32 s{sA}, s{S_WAVE}, 7")
    a.I(f"s_add_u32 s{sRow}, s{sRow}, s{sA}")
    def issue_wo(slot, delta):
        a.I(f"s_add_u32 s{sA}, s{sSt}, s{S_B}")
        if delta: a.I(f"s_add_u32 s{sA}, s{sA}, {delta}")
        a.I(f"s_and_b32 s{sA}, s{sA}, 15")
        a.I(f"s_lshl_b32 s{sA}, s{sA}, 15")
        a.I(f"s_add_u32 s{sA}, s{sA}, s{sRow}")
        for i in range(4):
            a.I(f"s_add_u32 m0, s{sStage}, {slot*4096 + i*1024}")
            if i: a.I(f"s_add_u32 s{sA}, s{sA}, 8192")
            else: a.I("s_nop 0")
            a.I(f"buffer_load_dwordx4 v{vWO}, s[{SWO}:{SWO+3}], s{sA} offen{cfg.wo_pol} lds")
    a.I(f"s_mov_b32 s{sSt}, 0")
    issue_wo(0, 0); issue_wo(1, 1)
    a.I(f"v_and_b32 v1, 15, v{vL}")
    a.I(f"v_lshrrev_b32 v2, 4, v{vL}")
    a.I("v_lshrrev_b32 v3, 2, v1")
    a.I("v_lshrrev_b32 v4, 1, v2")
    a.I("v_lshl_add_u32 v5, v4, 2, v3")
    a.I("v_lshlrev_b32 v5, 7, v5")
    a.I("v_and_b32 v6, 1, v1")
    a.I("v_lshl_add_u32 v5, v6, 5, v5")
    a.I("v_and_b32 v6, 1, v2")
    a.I("v_lshl_add_u32 v5, v6, 4, v5")
    a.I("v_bfe_u32 v6, v1, 1, 1")
    a.I("v_lshl_add_u32 v5, v6, 3, v5")
    a.I(f"v_add_u32 v5, s{sStage}, v5")
    a.I("v_lshrrev_b32 v3, 1, v3")
    for nt in range(2):
        a.I(f"v_xor_b32 v6, {nt}, v3")
        a.I(f"v_lshl_add_u32 v{vAA+nt}, v6, 6, v5")
    a.I(f"v_lshlrev_b32 v{vB}, 4, v{vL}")

    def bbase(dst, delta):
        a.I(f"s_add_u32 s{sA}, s{sSt}, s{S_B}")
        if delta: a.I(f"s_add_u32 s{sA}, s{sA}, {delta}")
        a.I(f"s_and_b32 s{sA}, s{sA}, 15")
        a.I(f"s_lshr_b32 s{sBq}, s{sA}, 2")
        a.I(f"s_lshl_b32 s{sBq}, s{sBq}, 2")
        a.I(f"s_lshr_b32 s{sBq}, 0x08CF, s{sBq}")
        a.I(f"s_and_b32 s{sBq}, s{sBq}, 15")
        a.I(f"s_lshl_b32 s{sBq}, s{sBq}, 13")
        a.I(f"s_and_b32 s{sA}, s{sA}, 3")
        a.I(f"s_lshl_b32 s{sA}, s{sA}, 11")
        a.I(f"s_add_u32 s{sBq}, s{sBq}, s{sA}")
        a.I(f"v_add_u32 v{dst}, s{sBq}, v{vB}")
    def reads(slot, ks, vb):
        for nt in range(2):
            for sec in range(2):
                a.I(f"ds_read_b64_tr_b16 {vr(AF + ks*8 + nt*4 + sec*2, 2)}, v{vAA+nt} offset:{slot*4096 + ks*2048 + sec*1024}")
        for qt in range(3):
            a.I(f"ds_read_b128 {vr(BF + ks*12 + qt*4, 4)}, v{vb} offset:{qt*8192 + ks*1024}")
    def mm(ks, c0=False):
        for nt in range(2):
            for qt in range(3):
                mfma(a, ACC + (nt*3 + qt)*16, AF + ks*8 + nt*4, BF + ks*12 + qt*4, "0" if c0 else None)
    VB = [vB2, vB3]
    bbase(VB[0], 0)
    a.I("s_waitcnt vmcnt(4)")
    reads(0, 0, VB[0])
    def sub(slot, first, last, more_dma):
        reads(slot, 1, VB[slot])
        if not last: bbase(VB[slot ^ 1], slot + 1)
        a.I("s_waitcnt lgkmcnt(7)")
        mm(0, first)
        if not last:
            a.I("s_waitcnt vmcnt(0)")
            reads(slot ^ 1, 0, VB[slot ^ 1])
            a.I("s_waitcnt lgkmcnt(7)")
        else:
            a.I("s_waitcnt lgkmcnt(0)")
        if more_dma: issue_wo(slot, slot + 2)
        mm(1)
    sub(0, True, False, True)
    sub(1, False, False, True)
    a.I(f"s_add_u32 s{sSt}, s{sSt}, 2")
    a.I(f"s_mov_b32 s{sIt}, 6")
    a.L("L_T_loop")
    sub(0, False, False, True); sub(1, False, False, True)
    a.I(f"s_add_u32 s{sSt}, s{sSt}, 2")
    a.I(f"s_sub_u32 s{sIt}, s{sIt}, 1")
    a.I(f"s_cmp_lg_u32 s{sIt}, 0")
    a.I("s_cbranch_scc1 L_T_loop")
    sub(0, False, False, False); sub(1, False, True, False)
    mk = a.mark()
    a.I(f"s_lshl_b32 s{sG}, s{S_P}, 4")
    a.I(f"s_add_u32 s{sG}, s{sG}, s{S_B}")
    a.I(f"s_lshl_b32 s{sA}, s{sG}, 3")
    a.I(f"s_add_u32 s{sA}, s{sA}, s{S_WAVE}")
    a.I(f"s_lshl_b32 s{sA}, s{sA}, 3")
    a.I(f"s_add_u32 s{sA}, s{sA}, s{S_MJ}")
    a.I(f"s_mul_i32 s{sA}, s{sA}, 12288")
    stamp(a, 246); stamp(a, 246, 1); dbg_stamp(a, 246)
    a.pad_since(mk, 12)
    n = 0
    for nt in range(2):
        for qt in range(3):
            base = ACC + (nt*3 + qt)*16
            pk = PK + (n % 3) * 8
            n += 1
            for j in range(8):
                a.I(f"v_cvt_pk_bf16_f32 v{pk+j}, v{base+2*j}, v{base+2*j+1}")
            ch = (qt*2 + nt)*2
            a.I(f"s_add_u32 s{sBq}, s{sA}, {ch*1024}")
            a.I(f"buffer_store_dwordx4 {vr(pk,4)}, v{vB}, s[{SPT}:{SPT+3}], s{sBq} offen{cfg.part_st_pol}")
            a.I(f"buffer_store_dwordx4 {vr(pk+4,4)}, v{vB}, s[{SPT}:{SPT+3}], s{sBq} offen offset:1024{cfg.part_st_pol}")
    if not cfg.fused:
        a.I("s_waitcnt vmcnt(0)")
        stamp(a, 246); stamp(a, 246, 1); dbg_stamp(a, 246)
        a.I("s_waitcnt vmcnt(0)")
        a.L("L_k1_end")
        a.I("s_endpgm")
        return
    a.I("s_load_dwordx2 s[56:57], s[0:1], 88")
    a.I("s_load_dwordx2 s[58:59], s[0:1], 80")
    a.I("s_waitcnt vmcnt(0) lgkmcnt(0)")
    stamp(a, 246, 1); dbg_stamp(a, 246)
    a.I("s_barrier")
    stamp(a, 246, 1); dbg_stamp(a, 246)
    srd(a, SDB, 56, 256)
    srd(a, SOUT, 58, 16*96*1024*2)
    a.I(f"s_cmp_lg_u32 s{S_WAVE}, 0")
    a.I("s_cbranch_scc1 L_T_wait")
    a.I(f"s_lshl_b32 s{sA}, s{sG}, 2")
    a.I(f"s_add_u32 s{sA}, s{sA}, 128")
    a.I("v_mov_b32 v1, 1")
    a.I("v_mov_b32 v2, 0")
    a.I("s_mov_b64 s[60:61], exec")
    a.I("s_mov_b64 exec, 1")
    a.I(f"buffer_atomic_add v1, v2, s[{SDB}:{SDB+3}], s{sA} offen")
    a.I(f"s_mov_b32 s{sIt}, 0")
    a.L("L_T_poll")
    a.I(f"buffer_load_dword v3, v2, s[{SDB}:{SDB+3}], s{sA} offen sc1")
    a.I("s_waitcnt vmcnt(0)")
    a.I("v_readfirstlane_b32 s62, v3")
    a.I(f"s_add_u32 s{sIt}, s{sIt}, 1")
    a.I("s_cmp_ge_u32 s62, 8")
    a.I("s_cbranch_scc1 L_T_polled")
    a.I(f"s_cmp_lt_u32 s{sIt}, 0x40000")
    a.I("s_cbranch_scc0 L_T_polled")
    a.I("s_sleep 2")
    a.I("s_branch L_T_poll")
    a.L("L_T_polled")
    a.I("s_mov_b64 exec, s[60:61]")
    a.L("L_T_wait")
    a.I("s_barrier")
    stamp(a, 246); stamp(a, 246, 1); dbg_stamp(a, 246)
    a.I(f"s_cmp_ge_u32 s{S_WAVE}, 6")
    a.I("s_cbranch_scc1 L_k1_end")
    a.I(f"s_lshl_b32 s{sA}, s{sG}, 3")
    a.I(f"s_add_u32 s{sA}, s{sA}, s{S_MJ}")
    a.I(f"s_mul_i32 s{sA}, s{sA}, 98304")
    a.I(f"s_lshl_b32 s{sBq}, s{S_WAVE}, 11")
    a.I(f"s_add_u32 s{sA}, s{sA}, s{sBq}")
    for src in range(8):
        a.I(f"s_add_u32 s{sBq}, s{sA}, {src*12288}")
        a.I(f"buffer_load_dwordx4 {vr(8+src*8,4)}, v{vB}, s[{SPT}:{SPT+3}], s{sBq} offen{cfg.part_ld_pol}")
        a.I(f"buffer_load_dwordx4 {vr(8+src*8+4,4)}, v{vB}, s[{SPT}:{SPT+3}], s{sBq} offen offset:1024{cfg.part_ld_pol}")
    a.I(f"s_lshr_b32 s{sBq}, s{S_WAVE}, 1")
    a.I(f"s_lshl_b32 s{sBq}, s{sBq}, 5")
    a.I(f"s_mul_i32 s{sA}, s{S_B}, 96")
    a.I(f"s_add_u32 s{sA}, s{sA}, s{sBq}")
    a.I(f"s_lshl_b32 s{sA}, s{sA}, 11")
    a.I(f"s_lshl_b32 s{sBq}, s{S_P}, 10")
    a.I(f"s_add_u32 s{sA}, s{sA}, s{sBq}")
    a.I(f"s_lshl_b32 s{sBq}, s{S_MJ}, 7")
    a.I(f"s_add_u32 s{sA}, s{sA}, s{sBq}")
    a.I(f"s_and_b32 s{sBq}, s{S_WAVE}, 1")
    a.I(f"s_lshl_b32 s{sBq}, s{sBq}, 6")
    a.I(f"s_add_u32 s{sA}, s{sA}, s{sBq}")
    a.I(f"v_and_b32 v2, 31, v{vL}")
    a.I("v_lshlrev_b32 v2, 11, v2")
    a.I(f"v_lshrrev_b32 v3, 5, v{vL}")
    a.I("v_lshl_add_u32 v2, v3, 5, v2")
    RA = 80
    for src in range(8):
        a.I(f"s_waitcnt vmcnt({14 - 2*src})")
        for d in range(8):
            r = 8 + src*8 + d
            if src == 0:
                a.I(f"v_lshlrev_b32 v{RA+2*d}, 16, v{r}")
                a.I(f"v_and_b32 v{RA+2*d+1}, 0xffff0000, v{r}")
            else:
                a.I(f"v_lshlrev_b32 v4, 16, v{r}")
                a.I(f"v_and_b32 v5, 0xffff0000, v{r}")
                a.I(f"v_add_f32 v{RA+2*d}, v{RA+2*d}, v4")
                a.I(f"v_add_f32 v{RA+2*d+1}, v{RA+2*d+1}, v5")
    for d in range(8):
        a.I(f"v_cvt_pk_bf16_f32 v{8+d}, v{RA+2*d}, v{RA+2*d+1}")
    a.I(f"buffer_store_dwordx4 v[8:11], v2, s[{SOUT}:{SOUT+3}], s{sA} offen")
    a.I(f"buffer_store_dwordx4 v[12:15], v2, s[{SOUT}:{SOUT+3}], s{sA} offen offset:16")
    a.I("s_waitcnt vmcnt(0)")
    stamp(a, 246); stamp(a, 246, 1); dbg_stamp(a, 246)
    a.I("s_waitcnt vmcnt(0)")
    a.L("L_k1_end")
    a.I("s_endpgm")

def gen_k2(a):
    a.I("s_cmp_ge_u32 s2, 256")
    a.I("s_cbranch_scc1 L_k2_end")
    a.I("s_load_dwordx2 s[4:5], s[0:1], 80")
    a.I("s_load_dwordx2 s[6:7], s[0:1], 96")
    if cfg.dbgst: a.I("s_memrealtime s[34:35]")
    a.I("v_lshrrev_b32 v1, 6, v0")
    a.I("v_and_b32 v0, 63, v0")
    a.I("v_readfirstlane_b32 s20, v1")
    a.I("s_waitcnt lgkmcnt(0)")
    srd(a, 8, 6, PART_BYTES)
    srd(a, 12, 4, 16*96*1024*2)
    a.I("s_mul_i32 s21, s2, 98304")
    a.I("s_lshl_b32 s22, s20, 11")
    a.I("s_add_u32 s21, s21, s22")
    a.I("v_lshlrev_b32 v1, 4, v0")
    for src in range(8):
        a.I(f"s_add_u32 s23, s21, {src*12288}")
        a.I(f"buffer_load_dwordx4 {vr(8+src*8,4)}, v1, s[8:11], s23 offen{cfg.part_ld_pol}")
        a.I(f"buffer_load_dwordx4 {vr(8+src*8+4,4)}, v1, s[8:11], s23 offen offset:1024{cfg.part_ld_pol}")
    a.I("s_lshr_b32 s24, s2, 3")
    a.I("s_and_b32 s25, s2, 7")
    a.I("s_and_b32 s26, s24, 15")
    a.I("s_lshr_b32 s27, s24, 4")
    a.I("s_lshr_b32 s28, s20, 1")
    a.I("s_and_b32 s29, s20, 1")
    a.I("s_mul_i32 s26, s26, 96")
    a.I("s_lshl_b32 s28, s28, 5")
    a.I("s_add_u32 s26, s26, s28")
    a.I("s_lshl_b32 s26, s26, 11")
    a.I("s_lshl_b32 s27, s27, 10")
    a.I("s_lshl_b32 s25, s25, 7")
    a.I("s_lshl_b32 s29, s29, 6")
    a.I("s_add_u32 s26, s26, s27")
    a.I("s_add_u32 s26, s26, s25")
    a.I("s_add_u32 s26, s26, s29")
    a.I("v_and_b32 v2, 31, v0")
    a.I("v_lshlrev_b32 v2, 11, v2")
    a.I("v_lshrrev_b32 v3, 5, v0")
    a.I("v_lshl_add_u32 v2, v3, 5, v2")
    ACC = 80
    for src in range(8):
        a.I(f"s_waitcnt vmcnt({14 - 2*src})")
        for d in range(8):
            r = 8 + src*8 + d
            if src == 0:
                a.I(f"v_lshlrev_b32 v{ACC+2*d}, 16, v{r}")
                a.I(f"v_and_b32 v{ACC+2*d+1}, 0xffff0000, v{r}")
            else:
                a.I(f"v_lshlrev_b32 v4, 16, v{r}")
                a.I(f"v_and_b32 v5, 0xffff0000, v{r}")
                a.I(f"v_add_f32 v{ACC+2*d}, v{ACC+2*d}, v4")
                a.I(f"v_add_f32 v{ACC+2*d+1}, v{ACC+2*d+1}, v5")
    for d in range(8):
        a.I(f"v_cvt_pk_bf16_f32 v{8+d}, v{ACC+2*d}, v{ACC+2*d+1}")
    a.I("buffer_store_dwordx4 v[8:11], v2, s[12:15], s26 offen")
    a.I("buffer_store_dwordx4 v[12:15], v2, s[12:15], s26 offen offset:16")
    a.I("s_waitcnt vmcnt(0)")
    if cfg.dbgst:
        a.I("s_cmp_lg_u32 s2, 0")
        a.I("s_cbranch_scc1 L_k2_end")
        a.I("s_cmp_lg_u32 s20, 0")
        a.I("s_cbranch_scc1 L_k2_end")
        a.I("s_memrealtime s[36:37]")
        a.I("s_load_dwordx2 s[30:31], s[0:1], 88")
        a.I("s_waitcnt lgkmcnt(0)")
        a.I(f"s_add_u32 s8, s6, {40<<20}")
        a.I("s_addc_u32 s9, s7, 0")
        a.I("s_and_b32 s9, s9, 0xffff")
        a.I("s_mov_b32 s10, 256")
        a.I("s_mov_b32 s11, 0x20000")
        a.I("s_mov_b32 s12, s30")
        a.I("s_and_b32 s13, s31, 0xffff")
        a.I("s_mov_b32 s14, 64")
        a.I("s_mov_b32 s15, 0x20000")
        a.I("v_lshlrev_b32 v1, 2, v0")
        a.I("buffer_load_dword v2, v1, s[8:11], 0 offen sc1")
        a.I("s_waitcnt vmcnt(0)")
        a.I("v_mov_b32 v3, s34")
        a.I("v_cmp_eq_u32 vcc, 14, v0")
        a.I("s_nop 1")
        a.I("v_cndmask_b32 v2, v2, v3, vcc")
        a.I("v_mov_b32 v3, s36")
        a.I("v_cmp_eq_u32 vcc, 15, v0")
        a.I("s_nop 1")
        a.I("v_cndmask_b32 v2, v2, v3, vcc")
        a.I("buffer_store_dword v2, v1, s[12:15], 0 offen")
        a.I("s_waitcnt vmcnt(0)")
    a.L("L_k2_end")
    a.I("s_endpgm")

def kd(a, name, vgpr, sgpr):
    a.raw('.section .rodata,"a"')
    a.raw(".p2align 6")
    a.raw(f".amdhsa_kernel {name}")
    a.raw(f"  .amdhsa_next_free_vgpr {vgpr}")
    a.raw(f"  .amdhsa_next_free_sgpr {sgpr}")
    a.raw(f"  .amdhsa_accum_offset {(vgpr+3)//4*4}")
    a.raw("  .amdhsa_group_segment_fixed_size 0")
    a.raw("  .amdhsa_kernarg_size 104")
    a.raw("  .amdhsa_user_sgpr_count 2")
    a.raw("  .amdhsa_user_sgpr_kernarg_segment_ptr 1")
    a.raw("  .amdhsa_system_sgpr_workgroup_id_x 1")
    a.raw(".end_amdhsa_kernel")

def build():
    a = Asm()
    global K1
    if cfg.fused:
        K1 = NAME + "_kernel"
        a.raw(f"; @launch grid=(256,1,1) block=(512,1,1) lds={LDS_BYTES}")
    else:
        a.raw(f"; @launch kernel={K1} grid=(256,1,1) block=(512,1,1) lds={LDS_BYTES}")
        a.raw(f"; @launch kernel={K2} grid=(256,1,1) block=(384,1,1) lds=0")
    a.raw('.amdgcn_target "amdgcn-amd-amdhsa--gfx950"')
    a.raw(".text")
    a.raw(f".globl {K1}")
    a.raw(".p2align 8")
    a.raw(f".type {K1},@function")
    a.L(K1)
    setup_common(a)
    gen_loader(a, True)
    gen_loader(a, False)
    gen_G(a)
    gen_A(a)
    gen_tail(a)
    if not cfg.fused:
        a.raw(f".globl {K2}")
        a.raw(".p2align 8")
        a.raw(f".type {K2},@function")
        a.L(K2)
        gen_k2(a)
    kd(a, K1, 256, 102 if (cfg.stamps or cfg.dbgst) else 72)
    if not cfg.fused:
        a.raw(".text")
        kd(a, K2, 96, 40)
    return a

if __name__ == "__main__":
    for arg in sys.argv[2:]:
        k, v = arg.split("=", 1)
        cur = getattr(cfg, k)
        if isinstance(cur, bool): v = v in ("1", "True", "true")
        elif isinstance(cur, int): v = int(v)
        elif isinstance(cur, float): v = float(v)
        else: v = v.replace("_", " ")
        setattr(cfg, k, v)
    a = build()
    out = sys.argv[1] if len(sys.argv) > 1 else f"cdna_kernels/{NAME}.s"
    open(out, "w").write(a.text())
    probs = check_file(a.lines)
    for p in probs: print("HAZARD", p)
    print("wrote", out, len(a.lines), "lines;", len(probs), "hazard reports")
```

```python
import struct, math, sys
from asmlib import Asm, vr, sr, check_file

NAME = "concat_heads__mha_block_cached__gqa_block_cached__near_ridge"
K1 = "attn_kernel"
K2 = "reduce_kernel"

def f2u(x): return struct.unpack("<I", struct.pack("<f", x))[0]
CSCALE = math.log2(math.e) / math.sqrt(128.0)

KR = 0; VR = 32768; WR = 65536; QH = 98304; XS = 98304
OS = [122880, 98304, 65536, 0]
STAGE = [24576, 32768, 40960, 49152, 57344, 90112, 147456, 155648]
LDS_BYTES = 163840
PART_BYTES = 32 * 64 * 12288

class Cfg:
    kv_pol = " nt"
    wq_pol = " nt"
    x_pol = ""
    wo_pol = ""
    part_st_pol = " sc1"
    part_ld_pol = " sc1"
    thresh = 8.0
    debug_dump = False
    prio_a = 0
    stamps = 0
    nokv = False
    nog = False
    t_nowait = False
    t_contig = False
    t_nodma = False
    t_nord = False
    t_early = False
    wo_fake = False
    dbgwave = 0
    dbgwg = 0
    part_off = 0
    fused = True
    noa = False
    nogr = False
    nowq = False
    dbgst = False

cfg = Cfg()

S_WAVE = 20; S_XCD = 21; S_SLOT = 22; S_P = 23; S_B = 24; S_HQ = 25; S_HB = 26; S_RHO = 27; S_MJ = 28
P_X = 8; P_K = 10; P_V = 12; P_WQ = 14; P_WO = 16; P_WS = 18

def srd(a, dst, ptr, size):
    a.I(f"s_mov_b32 s{dst}, s{ptr}")
    a.I(f"s_and_b32 s{dst+1}, s{ptr+1}, 0xffff")
    a.I(f"s_mov_b32 s{dst+2}, {hex(size)}")
    a.I(f"s_mov_b32 s{dst+3}, 0x20000")

def setup_common(a):
    a.I("s_cmp_ge_u32 s2, 256")
    a.I("s_cbranch_scc1 L_k1_end")
    a.I(f"s_and_b32 s{S_XCD}, s2, 7")
    a.I(f"s_lshr_b32 s{S_SLOT}, s2, 3")
    a.I(f"s_lshr_b32 s{S_P}, s{S_XCD}, 2")
    a.I(f"s_mul_i32 s3, s{S_P}, 40")
    a.I("s_add_u32 s4, s0, s3")
    a.I("s_addc_u32 s5, s1, 0")
    a.I("s_load_dwordx8 s[8:15], s[4:5], 0")
    a.I(f"s_load_dwordx2 s[{P_WO}:{P_WO+1}], s[4:5], 32")
    a.I(f"s_load_dwordx2 s[{P_WS}:{P_WS+1}], s[0:1], 96")
    a.I("v_lshrrev_b32 v1, 6, v0")
    a.I("v_and_b32 v0, 63, v0")
    a.I(f"v_readfirstlane_b32 s{S_WAVE}, v1")
    a.I(f"s_lshr_b32 s{S_B}, s{S_SLOT}, 1")
    a.I(f"s_and_b32 s{S_HQ}, s{S_SLOT}, 1")
    a.I(f"s_and_b32 s3, s{S_XCD}, 3")
    a.I("s_lshl_b32 s3, s3, 1")
    a.I(f"s_add_u32 s{S_MJ}, s3, s{S_HQ}")
    a.I(f"s_lshl_b32 s{S_HB}, s{S_MJ}, 2")
    a.I(f"s_and_b32 s{S_RHO}, s{S_B}, 3")
    a.I(f"s_lshl_b32 s{S_RHO}, s{S_RHO}, 2")
    a.I("s_waitcnt lgkmcnt(0)")
    dbg_setup(a)
    a.I(f"s_cmp_lt_u32 s{S_WAVE}, 3")
    a.I("s_cbranch_scc1 L_roleA")
    a.I(f"s_cmp_eq_u32 s{S_WAVE}, 3")
    a.I("s_cbranch_scc1 L_roleLK")
    a.I(f"s_cmp_eq_u32 s{S_WAVE}, 7")
    a.I("s_cbranch_scc1 L_roleLV")
    a.I("s_branch L_roleG")

def gen_loader(a, isK):
    tag = "LK" if isK else "LV"
    D = 13 if isK else 14
    a.L(f"L_role{tag}")
    SKV = 32; SW = 36
    srd(a, SKV, P_K if isK else P_V, 0x4000000)
    srd(a, SW, P_WQ, 0x400000)
    sKB = 48; sT = 49; sTau = 50; sN = 51; sA = 52; sBq = 53; sWrow = 54
    a.I(f"s_lshl_b32 s{sKB}, s{S_B}, 5")
    a.I(f"s_add_u32 s{sKB}, s{sKB}, s{S_HB}")
    a.I(f"s_lshl_b32 s{sKB}, s{sKB}, 17")
    a.I("v_and_b32 v1, 15, v0")
    a.I("v_lshrrev_b32 v2, 4, v0")
    if isK:
        for j in range(4):
            a.I(f"v_add_u32 v3, {4*j}, v2")
            a.I("v_xor_b32 v3, v1, v3")
            a.I("v_lshlrev_b32 v3, 4, v3")
            a.I(f"v_lshl_add_u32 v{4+j}, v2, 8, v3")
    else:
        a.I("v_lshlrev_b32 v3, 2, v2")
        a.I("v_xor_b32 v3, v1, v3")
        a.I("v_lshlrev_b32 v3, 4, v3")
        for j in range(4):
            a.I(f"v_lshl_add_u32 v{4+j}, v2, 8, v3")
    a.I("v_lshlrev_b32 v3, 2, v2")
    a.I("v_xor_b32 v3, v1, v3")
    a.I("v_lshlrev_b32 v3, 4, v3")
    a.I("v_lshlrev_b32 v9, 13, v2")
    a.I("v_add_u32 v8, v9, v3")
    i0 = 0 if isK else 4
    LB = KR if isK else VR

    def issue_w():
        a.I(f"s_add_u32 s{sA}, s{S_RHO}, s{sTau}")
        a.I(f"s_and_b32 s{sA}, s{sA}, 15")
        a.I(f"s_lshl_b32 s{sA}, s{sA}, 18")
        a.I(f"s_lshr_b32 s{sBq}, s{sTau}, 4")
        a.I(f"s_add_u32 s{sBq}, s{sBq}, s{S_HB}")
        a.I(f"s_lshl_b32 s{sBq}, s{sBq}, 8")
        a.I(f"s_add_u32 s{sA}, s{sA}, s{sBq}")
        a.I(f"s_add_u32 s{sA}, s{sA}, {i0*4*8192}")
        a.I(f"s_and_b32 s{sBq}, s{sTau}, 3")
        a.I(f"s_lshl_b32 s{sBq}, s{sBq}, 13")
        a.I(f"s_add_u32 s{sBq}, s{sBq}, {WR + i0*1024}")
        for i in range(4):
            a.I(f"s_add_u32 m0, s{sBq}, {i*1024}")
            if i: a.I(f"s_add_u32 s{sA}, s{sA}, 32768")
            else: a.I("s_nop 0")
            a.I(f"buffer_load_dwordx4 v8, s[{SW}:{SW+3}], s{sA} offen{cfg.wq_pol} lds")
        a.I(f"s_add_u32 s{sTau}, s{sTau}, 1")

    def issue_kv():
        a.I(f"s_lshl_b32 s{sA}, s{sT}, 13")
        a.I(f"s_add_u32 s{sA}, s{sA}, s{sKB}")
        a.I(f"s_and_b32 s{sBq}, s{sT}, 3")
        a.I(f"s_lshl_b32 s{sBq}, s{sBq}, 13")
        for half in range(2):
            if cfg.nokv: break
            a.I(f"s_add_u32 m0, s{sBq}, {LB + half*4096}")
            if half: a.I(f"s_add_u32 s{sA}, s{sA}, 4096")
            else: a.I("s_nop 0")
            for j in range(4):
                off = f" offset:{j*1024}" if j else ""
                a.I(f"buffer_load_dwordx4 v{4+j}, s[{SKV}:{SKV+3}], s{sA} offen{off}{cfg.kv_pol} lds")
        a.I(f"s_add_u32 s{sT}, s{sT}, 1")

    stamp_setup(a)
    a.I(f"s_mov_b32 s{sT}, 0")
    a.I(f"s_mov_b32 s{sTau}, 0")
    for _ in range(4): issue_w()
    a.I("s_waitcnt vmcnt(12)")
    a.I("s_barrier")
    a.I("s_waitcnt vmcnt(8)")
    WLAST = 16 if cfg.nowq else 59
    def cnt(n):
        if n < 0: return 4
        return (4 if n <= WLAST else 0) + (8 if (D <= n <= D + 63 and not cfg.nokv) else 0)
    phases = []
    for n in range(82 if isK else 79):
        key = (D <= n <= D + 63, n <= WLAST, cnt(n) + cnt(n - 1))
        if phases and phases[-1][0] == key: phases[-1][2] = n
        else: phases.append([key, n, n])
    for pi, (key, n0, n1) in enumerate(phases):
        kv, w, N = key
        cntn = n1 - n0 + 1
        if cntn > 1:
            a.I(f"s_mov_b32 s{sN}, {cntn}")
            a.L(f"L_{tag}_ph{pi}")
        a.I("s_barrier")
        stamp(a, 20)
        if kv: issue_kv()
        if w: issue_w()
        stamp(a, 20)
        a.I(f"s_waitcnt vmcnt({N + (7 if cfg.stamps == 2 else 0)})")
        stamp(a, 20)
        if cntn > 1:
            a.I(f"s_sub_u32 s{sN}, s{sN}, 1")
            a.I(f"s_cmp_lg_u32 s{sN}, 0")
            a.I(f"s_cbranch_scc1 L_{tag}_ph{pi}")
    a.I("s_branch L_tail_mm" if isK else "s_branch L_tail_ld")

STAMP_BASE = 32 << 20
def stamp_setup(a):
    if not cfg.stamps: return
    a.I(f"s_mov_b32 s92, s{P_WS}")
    a.I(f"s_and_b32 s93, s{P_WS+1}, 0xffff")
    a.I(f"s_mov_b32 s94, {hex(STAMP_BASE + (2<<20))}")
    a.I("s_mov_b32 s95, 0x20000")
    a.I("s_lshl_b32 s96, s2, 3")
    a.I(f"s_add_u32 s96, s96, s{S_WAVE}")
    a.I("s_lshl_b32 s96, s96, 10")
    a.I(f"s_add_u32 s96, s96, {STAMP_BASE}")
def stamp(a, vtmp, level=2):
    if cfg.stamps != level: return
    a.I("s_memrealtime s[98:99]")
    if level == 1: a.I("s_memtime s[100:101]")
    a.I("s_waitcnt lgkmcnt(0)")
    a.I(f"v_mov_b32 v{vtmp}, s98")
    a.I(f"v_mov_b32 v{vtmp+1}, 0")
    a.I(f"buffer_store_dword v{vtmp}, v{vtmp+1}, s[92:95], s96 offen")
    if level == 1:
        a.I(f"v_mov_b32 v{vtmp}, s100")
        a.I(f"buffer_store_dword v{vtmp}, v{vtmp+1}, s[92:95], s96 offen offset:4")
        a.I("s_add_u32 s96, s96, 4")
    a.I("s_add_u32 s96, s96, 4")

def dbg_setup(a):
    if not cfg.dbgst: return
    a.I("s_load_dwordx2 s[90:91], s[0:1], 88")
    a.I("s_waitcnt lgkmcnt(0)")
    a.I("s_mov_b32 s92, s90")
    a.I("s_and_b32 s93, s91, 0xffff")
    a.I("s_mov_b32 s94, 0")
    a.I("s_mov_b32 s96, 0")
    a.I(f"s_cmp_lg_u32 s{S_WAVE}, {cfg.dbgwave}")
    a.I("s_cbranch_scc1 L_dbg_done")
    a.I(f"s_cmp_eq_u32 s2, {cfg.dbgwg}")
    a.I("s_cselect_b32 s94, 64, 0")
    a.L("L_dbg_done")
    a.I("s_mov_b32 s95, 0x20000")
def dbg_stamp(a, vtmp):
    if not cfg.dbgst: return
    a.I("s_memrealtime s[98:99]")
    a.I("s_waitcnt lgkmcnt(0)")
    a.I(f"v_mov_b32 v{vtmp}, s98")
    a.I(f"v_mov_b32 v{vtmp+1}, 0")
    a.I(f"buffer_store_dword v{vtmp}, v{vtmp+1}, s[92:95], s96 offen")
    a.I("s_add_u32 s96, s96, 4")

GO_OFF = 26 << 20
def go_srd(a, dst):
    a.I(f"s_add_u32 s{dst}, s{P_WS}, {GO_OFF}")
    a.I(f"s_addc_u32 s{dst+1}, s{P_WS+1}, 0")
    a.I(f"s_and_b32 s{dst+1}, s{dst+1}, 0xffff")
    a.I(f"s_mov_b32 s{dst+2}, {256*128}")
    a.I(f"s_mov_b32 s{dst+3}, 0x20000")

def mfma(a, d, A, B, c=None):
    cs = vr(d, 16) if c is None else (c if isinstance(c, str) else vr(c, 16))
    a.I(f"v_mfma_f32_32x32x16_bf16 {vr(d,16)}, {vr(A,4)}, {vr(B,4)}, {cs}")

def kpattern_addr(a, dst, n, base_imm=None):
    a.I("v_and_b32 v1, 31, v0")
    a.I("v_lshrrev_b32 v2, 5, v0")
    a.I("v_and_b32 v3, 15, v0")
    a.I("v_xor_b32 v3, v3, v2")
    a.I("v_lshlrev_b32 v1, 8, v1")
    for k in range(n):
        a.I(f"v_xor_b32 v2, {2*k}, v3")
        a.I(f"v_lshl_add_u32 v{dst+k}, v2, 4, v1")
        if base_imm: a.I(f"v_add_u32 v{dst+k}, {base_imm}, v{dst+k}")

def gen_G(a):
    a.L("L_roleG")
    X = 0; QA = 128; WF = 192; vWA = 224; vXA = 228; vXO = 236; vL16 = 240; vLane = 241
    SX = 32
    sW = 48; sA = 49; sBq = 50; sU = 51; sXb = 52; sC = 56; sPi = 53
    srd(a, SX, P_X, 16*96*512*2)
    a.I(f"s_sub_u32 s{sW}, s{S_WAVE}, 4")
    a.I(f"s_mov_b32 s{sC}, {hex(f2u(CSCALE))}")
    a.I(f"s_mov_b32 s{sC+1}, {hex(f2u(CSCALE))}")
    a.I(f"v_mov_b32 v{vLane}, v0")
    a.I(f"v_lshlrev_b32 v{vL16}, 4, v0")
    kpattern_addr(a, vXA, 8)
    a.I(f"s_lshl_b32 s{sA}, s{sW}, 14")
    a.I(f"s_add_u32 s{sA}, s{sA}, {XS}")
    for k in range(8):
        a.I(f"v_add_u32 v{vXA+k}, s{sA}, v{vXA+k}")
    a.I("v_and_b32 v1, 15, v0")
    a.I("v_lshrrev_b32 v2, 4, v0")
    for j in range(4):
        a.I(f"v_add_u32 v3, {4*j}, v2")
        a.I("v_xor_b32 v3, v1, v3")
        a.I("v_lshlrev_b32 v3, 4, v3")
        a.I(f"v_lshl_add_u32 v{vXO+j}, v2, 10, v3")
    a.I("v_lshrrev_b32 v3, 2, v1")
    a.I("v_lshrrev_b32 v4, 1, v2")
    a.I("v_lshl_add_u32 v5, v4, 3, v3")
    a.I("v_lshlrev_b32 v5, 8, v5")
    a.I("v_and_b32 v6, 1, v2")
    a.I("v_lshlrev_b32 v6, 5, v6")
    a.I("v_add_u32 v5, v5, v6")
    a.I("v_and_b32 v6, 1, v1")
    a.I("v_lshl_add_u32 v5, v6, 4, v5")
    a.I("v_bfe_u32 v6, v1, 1, 1")
    a.I("v_lshl_add_u32 v5, v6, 3, v5")
    a.I(f"v_add_u32 v5, {WR}, v5")
    for i in range(4):
        a.I(f"v_xor_b32 v6, {i}, v3")
        a.I(f"v_lshl_add_u32 v{vWA+i}, v6, 6, v5")
    a.I(f"s_mul_i32 s{sXb}, s{S_B}, 98304")
    a.I(f"s_lshl_b32 s{sA}, s{sW}, 15")
    a.I(f"s_add_u32 s{sXb}, s{sXb}, s{sA}")

    def issue_x(piece):
        a.I(f"s_lshr_b32 s{sPi}, s{S_RHO}, 2")
        a.I(f"s_add_u32 s{sPi}, s{sPi}, {piece}")
        a.I(f"s_and_b32 s{sPi}, s{sPi}, 3")
        a.I(f"s_lshl_b32 s{sPi}, s{sPi}, 8")
        a.I(f"s_add_u32 s{sA}, s{sXb}, s{sPi}")
        a.I(f"s_lshl_b32 s{sBq}, s{sW}, 14")
        a.I(f"s_add_u32 s{sBq}, s{sBq}, {(XS if piece < 2 else 0) + (piece & 1)*8192}")
        for i in range(8):
            a.I(f"s_add_u32 m0, s{sBq}, {i*1024}")
            if i: a.I(f"s_add_u32 s{sA}, s{sA}, 4096")
            else: a.I("s_nop 0")
            a.I(f"buffer_load_dwordx4 v{vXO + (i & 3)}, s[{SX}:{SX+3}], s{sA} offen{cfg.x_pol} lds")
    stamp_setup(a)
    for pc in range(4): issue_x(pc)

    def x_reads(piece):
        a.I(f"s_waitcnt vmcnt({8*(3 - piece)})")
        if piece == 2:
            for k in range(8): a.I(f"v_subrev_u32 v{vXA+k}, {XS}, v{vXA+k}")
        for k in range(8):
            a.I(f"ds_read_b128 {vr(X + piece*32 + k*4, 4)}, v{vXA+k} offset:{(piece&1)*8192}")
    def rd(slot, f):
        ks, i = f // 4, f % 4
        return [f"ds_read_b64_tr_b16 {vr(WF + f*4 + sec*2, 2)}, v{vWA+i} offset:{slot*8192 + ks*4096 + sec*1024}" for sec in range(2)]

    def task(t, first_unit, nxt=True):
        stamp(a, 246)
        a.I("s_barrier")
        stamp(a, 246)
        if cfg.nogr and not first_unit: return
        ns = (t + 1) & 3
        xb = X + t*8
        for f in range(8):
            ks, i = f // 4, f % 4
            if not (cfg.nog and not first_unit):
                mfma(a, QA + 16*i, WF + f*4, xb + 4*ks, "0" if (t == 0 and ks == 0) else None)
            if nxt:
                for o in rd(ns, f): a.I(o)
        if first_unit and t % 4 == 3 and t < 15:
            x_reads(t // 4 + 1)
        a.I("s_waitcnt lgkmcnt(0)")

    def handoff():
        a.I(f"s_cmp_lt_u32 s{sU}, 3")
        a.I(f"s_cselect_b32 s{sA}, {QH//8192}, {WR//8192}")
        a.I(f"s_add_u32 s{sA}, s{sA}, s{sW}")
        a.I(f"s_lshl_b32 s{sA}, s{sA}, 13")
        a.I(f"v_add_u32 v242, s{sA}, v{vL16}")
        a.I("s_nop 3")
        for k in range(8):
            for j in range(4):
                a.I(f"v_pk_mul_f32 {vr(QA+8*k+2*j,2)}, {vr(QA+8*k+2*j,2)}, s[{sC}:{sC+1}]")
            for j in range(4):
                a.I(f"v_cvt_pk_bf16_f32 v{QA+4*k+j}, v{QA+8*k+2*j}, v{QA+8*k+2*j+1}")
            a.I(f"ds_write_b128 v242, {vr(QA+4*k,4)} offset:{k*1024}")
        a.I("s_waitcnt lgkmcnt(0)")

    a.I("s_barrier")
    x_reads(0)
    for f in range(8):
        for o in rd(0, f): a.I(o)
    a.I("s_waitcnt lgkmcnt(0)")
    a.I(f"s_mov_b32 s{sU}, 0")
    for t in range(16): task(t, True)
    handoff()
    a.I(f"s_mov_b32 s{sU}, 1")
    a.L("L_G_unit")
    for t in range(15): task(t, False)
    task(15, False)
    handoff()
    a.I(f"s_add_u32 s{sU}, s{sU}, 1")
    a.I(f"s_cmp_lt_u32 s{sU}, 4")
    a.I("s_cbranch_scc1 L_G_unit")
    a.I(f"s_mov_b32 s{sU}, 15")
    a.L("L_G_idle")
    a.I("s_barrier")
    a.I(f"s_sub_u32 s{sU}, s{sU}, 1")
    a.I(f"s_cmp_lg_u32 s{sU}, 0")
    a.I("s_cbranch_scc1 L_G_idle")
    a.I("s_branch L_tail_ld")

def gen_A(a):
    a.L("L_roleA")
    O = 0; Q = 64; S = [96, 112]; NM = 128; P = [144, 152]; KF = 160; VF = 192
    vKA = 224; vVA = 232; l0 = 236; l1 = 237; mx = 238; t0 = 239; inv = 240; vL16 = 242; vAd = 243; t1 = 244; t2 = 245
    sIt = 48; sU = 49; sA = 50; sBq = 51; sW = S_WAVE
    if cfg.prio_a: a.I(f"s_setprio {cfg.prio_a}")
    stamp_setup(a)
    stamp(a, 246)
    stamp(a, 246, 1)
    dbg_stamp(a, 246)
    sG = 55; sTrig = 54; vRdy = 245
    a.I(f"s_lshl_b32 s{sG}, s{S_P}, 4")
    a.I(f"s_add_u32 s{sG}, s{sG}, s{S_B}")
    a.I(f"s_mov_b32 s{sTrig}, 0xffff")
    a.I("s_load_dwordx2 s[56:57], s[0:1], 88")
    a.I("s_waitcnt lgkmcnt(0)")
    srd(a, 40, 56, 256)
    a.I(f"s_cmp_lg_u32 s{S_WAVE}, 0")
    a.I("s_cbranch_scc1 L_A_noreset")
    go_srd(a, 64)
    a.I(f"s_lshl_b32 s{sA}, s{sG}, 3")
    a.I(f"s_add_u32 s{sA}, s{sA}, s{S_MJ}")
    a.I(f"s_lshl_b32 s{sA}, s{sA}, 7")
    a.I("v_mov_b32 v1, 0")
    a.I("v_lshlrev_b32 v2, 2, v0")
    a.I("s_mov_b64 s[60:61], exec")
    a.I("s_mov_b64 exec, 0xff")
    a.I(f"buffer_store_dword v1, v2, s[64:67], s{sA} offen sc1")
    a.I("s_waitcnt vmcnt(0)")
    a.I("s_mov_b64 exec, 1")
    a.I("v_mov_b32 v2, 1")
    a.I(f"s_lshl_b32 s{sA}, s{sG}, 2")
    a.I(f"s_add_u32 s{sA}, s{sA}, 128")
    a.I(f"buffer_atomic_add v2, v1, s[40:43], s{sA} offen")
    a.I("s_mov_b64 exec, s[60:61]")
    a.I("s_lshr_b32 s3, s2, 3")
    a.I("s_mul_i32 s3, s3, 3")
    a.I("s_lshr_b32 s3, s3, 3")
    a.I(f"s_add_u32 s{sTrig}, s3, 4")
    a.L("L_A_noreset")
    a.I(f"v_lshlrev_b32 v{vL16}, 4, v0")
    kpattern_addr(a, vKA, 8)
    a.I("v_and_b32 v1, 15, v0")
    a.I("v_lshrrev_b32 v2, 4, v0")
    a.I("v_lshrrev_b32 v3, 2, v1")
    a.I("v_lshrrev_b32 v4, 1, v2")
    a.I("v_lshl_add_u32 v5, v4, 2, v3")
    a.I("v_lshlrev_b32 v5, 8, v5")
    a.I("v_and_b32 v6, 1, v2")
    a.I("v_lshlrev_b32 v6, 5, v6")
    a.I("v_add_u32 v5, v5, v6")
    a.I("v_bfe_u32 v6, v1, 1, 1")
    a.I("v_lshl_add_u32 v5, v6, 4, v5")
    a.I("v_and_b32 v6, 1, v1")
    a.I("v_lshl_add_u32 v5, v6, 3, v5")
    a.I(f"v_add_u32 v5, {VR}, v5")
    for i in range(4):
        a.I(f"v_xor_b32 v6, {i}, v3")
        a.I(f"v_lshl_add_u32 v{vVA+i}, v6, 6, v5")
    a.I(f"v_mov_b32 v{l0}, 0")
    a.I(f"v_mov_b32 v{l1}, 0")
    a.I(f"s_mov_b32 s{sIt}, 17")
    a.L("L_A_idle")
    stamp(a, 246)
    a.I("s_barrier")
    stamp(a, 246)
    a.I(f"s_sub_u32 s{sIt}, s{sIt}, 1")
    a.I(f"s_cmp_lg_u32 s{sIt}, 0")
    a.I("s_cbranch_scc1 L_A_idle")

    rare_blocks = []

    def step(pos, tag, pv=True, pv_c0=False, sm=True, qk=True, first=False, fin_l=False, finalize=False, vrd=True, check=True):
        Sn = S[pos % 2]; Sc = S[(pos + 1) % 2]
        Pw = P[(pos + 1) % 2]; Pr = P[pos % 2]
        vslot = (pos + 3) % 4
        stamp(a, 246)
        a.I("s_barrier")
        stamp(a, 246)
        if first: dbg_stamp(a, 246)
        if first or tag == "_l0": stamp(a, 246, 1)
        if cfg.noa: return
        if first:
            a.I(f"s_cmp_lt_u32 s{sU}, 3")
            a.I(f"s_cselect_b32 s{sA}, {QH//8192}, {WR//8192}")
            a.I(f"s_add_u32 s{sA}, s{sA}, s{sW}")
            a.I(f"s_lshl_b32 s{sA}, s{sA}, 13")
            a.I(f"v_add_u32 v{vAd}, s{sA}, v{vL16}")
            for k in range(8):
                a.I(f"ds_read_b128 {vr(Q+4*k,4)}, v{vAd} offset:{k*1024}")
        if qk:
            for k in range(8):
                a.I(f"ds_read_b128 {vr(KF+4*k,4)}, v{vKA+k} offset:{pos*8192}")
        if finalize:
            if tag == "_l1":
                a.I(f"s_lshl_b32 s{sA}, s{sW}, 3")
                a.I(f"s_lshr_b32 s{sA}, 0x13120B, s{sA}")
                a.I(f"s_and_b32 s{sA}, s{sA}, 0xff")
            else:
                a.I(f"s_sub_u32 s{sA}, s{sU}, 1")
                a.I(f"s_lshl_b32 s{sA}, s{sA}, 2")
                a.I(f"s_lshr_b32 s{sA}, 0x8CF, s{sA}")
                a.I(f"s_and_b32 s{sA}, s{sA}, 15")
                a.I(f"s_add_u32 s{sA}, s{sA}, s{sW}")
            a.I(f"s_lshl_b32 s{sA}, s{sA}, 13")
            a.I(f"v_add_u32 v{vAd}, s{sA}, v{vL16}")
        def valu_gap(g):
            if not sm: return
            a.I(f"v_exp_f32 v{Sc+g}, v{Sc+g}")
            if g >= 1:
                a.I(f"v_add_f32 v{l0 + ((g-1) & 1)}, v{l0 + ((g-1) & 1)}, v{Sc+g-1}")
            if g >= 2 and g % 2 == 0:
                j = g // 2 - 1
                a.I(f"v_cvt_pk_bf16_f32 v{Pw+j}, v{Sc+2*j}, v{Sc+2*j+1}")
        for g in range(8):
            if pv:
                ks, i = g // 4, g % 4
                c = "0" if (pv_c0 and ks == 0) else None
                mfma(a, O + 16*i, VF + (ks*4 + i)*4, Pr + 4*ks, c)
            valu_gap(g)
        nv = 0; nw = 0
        if not pv and not sm and qk:
            pass
        for k in range(8):
            if qk:
                a.I(f"s_waitcnt lgkmcnt({min(15, 7 - k + nv + nw)})")
                c = ("0" if first else vr(NM, 16)) if k == 0 else None
                mfma(a, Sn, KF + 4*k, Q + 4*k, c)
                qk_mark = a.mark()
            if vrd:
                for sec in range(2):
                    idx = 2*k + sec
                    ks, i, sc = idx // 8, (idx // 2) % 4, idx % 2
                    a.I(f"ds_read_b64_tr_b16 {vr(VF + (ks*4 + i)*4 + sc*2, 2)}, v{vVA+i} offset:{vslot*8192 + ks*4096 + sc*2048}")
                    nv += 1
            valu_gap(8 + k)
            if finalize:
                if k == 0 and not qk: a.I("s_nop 7")
                if k == 0: a.I("s_nop 3")
                for j in range(4):
                    a.I(f"v_pk_mul_f32 {vr(O+8*k+2*j,2)}, {vr(O+8*k+2*j,2)}, {vr(inv,2)}")
                for j in range(4):
                    a.I(f"v_cvt_pk_bf16_f32 v{O+4*k+j}, v{O+8*k+2*j}, v{O+8*k+2*j+1}")
                a.I(f"ds_write_b128 v{vAd}, {vr(O+4*k,4)} offset:{k*1024}")
                nw += 1
        if sm:
            a.I("s_nop 0")
            a.I(f"v_add_f32 v{l1}, v{l1}, v{Sc+15}")
            a.I(f"v_cvt_pk_bf16_f32 v{Pw+7}, v{Sc+14}, v{Sc+15}")
        if fin_l:
            a.I(f"v_add_f32 v{l0}, v{l0}, v{l1}")
            a.I(f"v_mov_b32 v{l1}, 0")
            a.I(f"v_mov_b32 v{t0}, v{l0}")
            a.I("s_nop 1")
            a.I(f"v_permlane32_swap_b32 v{l0}, v{t0}")
            a.I("s_nop 0")
            a.I(f"v_add_f32 v{t0}, v{l0}, v{t0}")
            a.I(f"v_rcp_f32 v{inv}, v{t0}")
            a.I(f"v_mov_b32 v{l0}, 0")
            a.I(f"v_mov_b32 v{inv+1}, v{inv}")
        if qk:
            a.pad_since(qk_mark, 12)
            a.I(f"v_max3_f32 v{mx}, v{Sn}, v{Sn+1}, v{Sn+2}")
            a.I(f"v_max3_f32 v{t1}, v{Sn+3}, v{Sn+4}, v{Sn+5}")
            a.I(f"v_max3_f32 v{mx}, v{mx}, v{Sn+6}, v{Sn+7}")
            a.I(f"v_max3_f32 v{t1}, v{t1}, v{Sn+8}, v{Sn+9}")
            a.I(f"v_max3_f32 v{mx}, v{mx}, v{Sn+10}, v{Sn+11}")
            a.I(f"v_max3_f32 v{t1}, v{t1}, v{Sn+12}, v{Sn+13}")
            a.I(f"v_max3_f32 v{mx}, v{mx}, v{Sn+14}, v{Sn+15}")
            a.I(f"v_max_f32 v{mx}, v{mx}, v{t1}")
            if first:
                a.I(f"v_mov_b32 v{t0}, v{mx}")
                a.I("s_nop 1")
                a.I(f"v_permlane32_swap_b32 v{mx}, v{t0}")
                a.I("s_nop 0")
                a.I(f"v_max_f32 v{mx}, v{mx}, v{t0}")
                for j in range(16):
                    a.I(f"v_sub_f32 v{Sn+j}, v{Sn+j}, v{mx}")
                for j in range(16):
                    a.I(f"v_sub_f32 v{NM+j}, 0, v{mx}")
            elif check:
                a.I(f"v_cmp_lt_f32 vcc, {hex(f2u(cfg.thresh))}, v{mx}")
                a.I(f"s_cbranch_vccnz L_A_rare{tag}")
                a.L(f"L_A_ret{tag}")
                rare_blocks.append((tag, Sn, Pw, sm))
        a.I("s_waitcnt lgkmcnt(0)")

    a.I(f"s_mov_b32 s{sU}, 0")
    step(0, "_f0", pv=False, sm=False, first=True, vrd=False)
    step(1, "_f1", pv=False)
    a.I(f"s_mov_b32 s{sIt}, 0")
    a.I("s_branch L_A_b2")
    a.L("L_A_loop")
    a.I(f"s_lshl_b32 s{sA}, s{sU}, 2")
    a.I(f"s_add_u32 s{sA}, s{sA}, s{sIt}")
    a.I(f"s_cmp_lg_u32 s{sA}, s{sTrig}")
    a.I("s_cbranch_scc1 L_A_notrig")
    a.I(f"s_lshl_b32 s{sA}, s{sG}, 2")
    a.I(f"s_add_u32 s{sA}, s{sA}, 128")
    a.I("v_mov_b32 v252, 0")
    a.I(f"buffer_load_dword v253, v252, s[40:43], s{sA} offen sc1")
    a.L("L_A_notrig")
    a.I(f"s_cmp_lg_u32 s{sIt}, 0")
    a.I("s_cbranch_scc1 L_A_reg0")
    a.I(f"s_cmp_eq_u32 s{sU}, 4")
    a.I("s_cbranch_scc1 L_A_last")
    step(0, "_b0", first=True, fin_l=True)
    step(1, "_b1", finalize=True)
    a.L("L_A_b2")
    step(2, "_b2", pv_c0=True)
    a.I("s_branch L_A_reg3")
    a.L("L_A_reg0")
    step(0, "_0")
    step(1, "_1")
    step(2, "_2")
    a.L("L_A_reg3")
    step(3, "_3")
    a.I(f"s_add_u32 s{sIt}, s{sIt}, 1")
    a.I(f"s_cmp_eq_u32 s{sIt}, 4")
    a.I("s_cbranch_scc0 L_A_loop")
    a.I(f"s_mov_b32 s{sIt}, 0")
    a.I(f"s_add_u32 s{sU}, s{sU}, 1")
    a.I("s_branch L_A_loop")
    a.L("L_A_last")
    step(0, "_l0", qk=False, fin_l=True)
    step(1, "_l1", qk=False, sm=False, vrd=False, finalize=True)
    a.I("s_branch L_tail_mm")
    for tag, Sn, Pw, sm in rare_blocks:
        a.L(f"L_A_rare{tag}")
        a.I("s_nop 15")
        a.I(f"v_mov_b32 v{t0}, v{mx}")
        a.I("s_nop 1")
        a.I(f"v_permlane32_swap_b32 v{mx}, v{t0}")
        a.I("s_nop 0")
        a.I(f"v_max_f32 v{mx}, v{mx}, v{t0}")
        a.I(f"v_max_f32 v{mx}, 0, v{mx}")
        a.I(f"v_ceil_f32 v{mx}, v{mx}")
        a.I(f"v_min_f32 v{t0}, 0x43480000, v{mx}")
        a.I(f"v_cvt_i32_f32 v{t0}, v{t0}")
        a.I(f"v_sub_u32 v{t0}, 0, v{t0}")
        a.I(f"v_ldexp_f32 v{t1}, 1.0, v{t0}")
        a.I(f"v_mov_b32 v{t2}, v{t1}")
        for j in range(16):
            a.I(f"v_sub_f32 v{Sn+j}, v{Sn+j}, v{mx}")
        for j in range(16):
            a.I(f"v_sub_f32 v{NM+j}, v{NM+j}, v{mx}")
        for j in range(32):
            a.I(f"v_pk_mul_f32 {vr(O+2*j,2)}, {vr(O+2*j,2)}, {vr(t1,2)}")
        a.I(f"v_mul_f32 v{l0}, v{l0}, v{t1}")
        a.I(f"v_mul_f32 v{l1}, v{l1}, v{t1}")
        for j in range(8):
            a.I(f"v_lshlrev_b32 v{mx}, 16, v{Pw+j}")
            a.I(f"v_and_b32 v{t0}, 0xffff0000, v{Pw+j}")
            a.I(f"v_mul_f32 v{mx}, v{mx}, v{t1}")
            a.I(f"v_mul_f32 v{t0}, v{t0}, v{t1}")
            a.I(f"v_cvt_pk_bf16_f32 v{Pw+j}, v{mx}, v{t0}")
        a.I("s_nop 1")
        a.I(f"s_branch L_A_ret{tag}")

def gen_tail(a):
    SWO = 32; SPT = 36; SDB = 40; SOUT = 44
    sSt = 48; sA = 49; sBq = 50; sIt = 52; sRow = 53; sG = 55; sJ = 63
    vL = 255
    def tail_stamp_reset():
        if cfg.stamps:
            a.I("s_and_b32 s96, s96, 0xfffffc00")
            a.I(f"s_add_u32 s96, s96, {1000 if cfg.stamps == 2 else 512}")
    def part_srd():
        a.I(f"s_add_u32 s{SPT}, s{P_WS}, {cfg.part_off}")
        a.I(f"s_addc_u32 s{SPT+1}, s{P_WS+1}, 0")
        a.I(f"s_and_b32 s{SPT+1}, s{SPT+1}, 0xffff")
        a.I(f"s_mov_b32 s{SPT+2}, {hex(PART_BYTES)}")
        a.I(f"s_mov_b32 s{SPT+3}, 0x20000")
    a.L("L_tail_ld")
    a.I("s_setprio 0")
    srd(a, SWO, P_WO, 0x400000)
    part_srd()
    a.I(f"v_mbcnt_lo_u32_b32 v{vL}, -1, 0")
    a.I(f"v_mbcnt_hi_u32_b32 v{vL}, -1, v{vL}")
    for i in range(4):
        a.I(f"v_xor_b32 v{4+i}, {i << 2}, v{vL}")
        a.I(f"v_lshlrev_b32 v{4+i}, 4, v{4+i}")
    a.I(f"s_sub_u32 s{sIt}, s{S_WAVE}, 4")
    a.I(f"s_lshl_b32 s{sIt}, s{sIt}, 12")
    a.I(f"s_lshl_b32 s{sRow}, s{S_HB}, 17")
    a.I(f"s_add_u32 s{sRow}, s{sRow}, s{sIt}")
    a.I(f"s_mov_b32 s{sJ}, 0")
    def ld_kstep():
        a.I(f"s_lshr_b32 s{sA}, s{sJ}, 1")
        a.I(f"s_add_u32 s{sA}, s{sA}, s{S_B}")
        a.I(f"s_and_b32 s{sA}, s{sA}, 15")
        a.I(f"s_lshl_b32 s{sA}, s{sA}, 15")
        if cfg.wo_fake: a.I(f"s_mov_b32 s{sA}, 0")
        a.I(f"s_and_b32 s{sBq}, s{sJ}, 1")
        a.I(f"s_lshl_b32 s{sBq}, s{sBq}, 14")
        a.I(f"s_add_u32 s{sA}, s{sA}, s{sBq}")
        a.I(f"s_add_u32 s{sA}, s{sA}, s{sRow}")
        a.I(f"s_and_b32 s{sBq}, s{sJ}, 3")
        a.I(f"s_lshl_b32 s{sBq}, s{sBq}, 14")
        a.I(f"s_add_u32 s{sBq}, s{sBq}, s{sIt}")
        for i in range(4):
            a.I(f"s_add_u32 m0, s{sBq}, {i*1024}")
            if i: a.I(f"s_add_u32 s{sA}, s{sA}, 1024")
            else: a.I("s_nop 0")
            a.I(f"buffer_load_dwordx4 v{4+i}, s[{SWO}:{SWO+3}], s{sA} offen{cfg.wo_pol} lds")
        a.I(f"s_add_u32 s{sJ}, s{sJ}, 1")
    for n in (79, 80, 81):
        stamp(a, 246)
        a.I("s_barrier")
        stamp(a, 246)
        ld_kstep()
        if n == 79: a.I("s_waitcnt vmcnt(4)")
    a.I("s_waitcnt vmcnt(4)")
    a.I("s_barrier")
    tail_stamp_reset()
    stamp(a, 246); stamp(a, 246, 1); dbg_stamp(a, 246)
    a.I(f"s_mov_b32 s{sSt}, 29")
    a.L("L_TL_loop")
    ld_kstep()
    a.I("s_waitcnt vmcnt(4)")
    a.I("s_barrier")
    a.I(f"s_sub_u32 s{sSt}, s{sSt}, 1")
    a.I(f"s_cmp_lg_u32 s{sSt}, 0")
    a.I("s_cbranch_scc1 L_TL_loop")
    a.I("s_waitcnt vmcnt(0)")
    a.I("s_barrier")
    a.I("s_barrier")
    stamp(a, 246); stamp(a, 246, 1); dbg_stamp(a, 246)
    a.I(f"s_lshl_b32 s{sG}, s{S_P}, 4")
    a.I(f"s_add_u32 s{sG}, s{sG}, s{S_B}")
    a.I("s_branch L_T_handoff")

    a.L("L_tail_mm")
    ACC = 0; AF = 192; BF = 208; vAA = 232; vB = 236; vL16 = 242; PK = 192
    a.I("s_setprio 0")
    part_srd()
    a.I(f"v_mbcnt_lo_u32_b32 v{vL}, -1, 0")
    a.I(f"v_mbcnt_hi_u32_b32 v{vL}, -1, v{vL}")
    T0 = 244
    a.I(f"v_and_b32 v{T0}, 15, v{vL}")
    a.I(f"v_lshrrev_b32 v{T0+1}, 4, v{vL}")
    a.I(f"v_lshrrev_b32 v{T0+2}, 2, v{T0}")
    a.I(f"v_lshrrev_b32 v{T0+3}, 1, v{T0+1}")
    a.I(f"v_lshl_add_u32 v{T0+4}, v{T0+3}, 2, v{T0+2}")
    a.I(f"v_lshlrev_b32 v{T0+4}, 10, v{T0+4}")
    a.I(f"v_and_b32 v{T0+5}, 1, v{T0}")
    a.I(f"v_lshl_add_u32 v{T0+4}, v{T0+5}, 5, v{T0+4}")
    a.I(f"v_and_b32 v{T0+5}, 1, v{T0+1}")
    a.I(f"v_lshl_add_u32 v{T0+4}, v{T0+5}, 4, v{T0+4}")
    a.I(f"v_bfe_u32 v{T0+5}, v{T0}, 1, 1")
    a.I(f"v_lshl_add_u32 v{T0+4}, v{T0+5}, 3, v{T0+4}")
    a.I(f"s_lshl_b32 s{sA}, s{S_WAVE}, 8")
    a.I(f"v_add_u32 v{T0+4}, s{sA}, v{T0+4}")
    for nt in range(4):
        a.I(f"v_xor_b32 v{T0+5}, {nt}, v{T0+2}")
        a.I(f"v_lshl_add_u32 v{vAA+nt}, v{T0+5}, 6, v{T0+4}")
    a.I(f"v_lshlrev_b32 v{vL16}, 4, v{vL}")
    a.I(f"s_mov_b32 s{sSt}, 0")
    sB0 = 56; sB1 = 57; sB2 = 58; sBB = 59
    def bbase_ops(par, dsub):
        o = [f"s_add_u32 s{sBB}, s{sSt}, s{S_B}"]
        if dsub: o.append(f"s_add_u32 s{sBB}, s{sBB}, {dsub}")
        o += [f"s_and_b32 s{sBB}, s{sBB}, 15",
              f"s_lshr_b32 s{sB0}, s{sBB}, 2",
              f"s_lshl_b32 s{sB1}, s{sB0}, 2",
              f"s_lshr_b32 s{sB1}, 0x8CF, s{sB1}",
              f"s_and_b32 s{sB1}, s{sB1}, 15",
              f"s_cmp_eq_u32 s{sB0}, 3",
              f"s_cselect_b32 s{sB0}, 11, s{sB1}",
              f"s_cselect_b32 s{sB2}, 17, s{sB1}",
              f"s_lshl_b32 s{sB0}, s{sB0}, 13",
              f"s_lshl_b32 s{sB2}, s{sB2}, 13",
              f"s_and_b32 s{sBB}, s{sBB}, 3",
              f"s_lshl_b32 s{sBB}, s{sBB}, 11",
              f"s_add_u32 s{sB0}, s{sB0}, s{sBB}",
              f"s_add_u32 s{sB2}, s{sB2}, s{sBB}",
              f"v_add_u32 v{vB+2*par}, s{sB0}, v{vL16}",
              f"v_add_u32 v{vB+2*par+1}, s{sB2}, v{vL16}"]
        return o
    def rdA(slot, nt, sec):
        return f"ds_read_b64_tr_b16 {vr(AF + nt*4 + sec*2, 2)}, v{vAA+nt} offset:{slot*16384 + sec*8192}"
    def rdB(buf, qt, par, ks):
        if qt == 0: return f"ds_read_b128 {vr(BF + buf*12, 4)}, v{vB+2*par} offset:{ks*1024}"
        return f"ds_read_b128 {vr(BF + buf*12 + qt*4, 4)}, v{vB+2*par+1} offset:{qt*8192 + ks*1024}"
    for o in bbase_ops(0, 0): a.I(o)
    a.I("s_load_dwordx2 s[60:61], s[0:1], 88")
    a.I(f"s_lshl_b32 s{sG}, s{S_P}, 4")
    a.I(f"s_add_u32 s{sG}, s{sG}, s{S_B}")
    a.I("s_waitcnt lgkmcnt(0)")
    srd(a, 40, 60, 256)
    a.I(f"s_cmp_lg_u32 s{S_WAVE}, 0")
    a.I("s_cbranch_scc1 L_T_rdy")
    a.I("s_waitcnt vmcnt(0)")
    a.I("v_readfirstlane_b32 s62, v253")
    a.I("s_cmp_eq_u32 s62, 8")
    a.I("s_cbranch_scc1 L_T_rdy")
    a.I(f"s_lshl_b32 s{sA}, s55, 2")
    a.I(f"s_add_u32 s{sA}, s{sA}, 128")
    a.I(f"s_mov_b32 s{sIt}, 0")
    a.I("v_mov_b32 v252, 0")
    a.L("L_T_rdypoll")
    a.I(f"buffer_load_dword v253, v252, s[40:43], s{sA} offen sc1")
    a.I("s_waitcnt vmcnt(0)")
    a.I("v_readfirstlane_b32 s62, v253")
    a.I(f"s_add_u32 s{sIt}, s{sIt}, 1")
    a.I("s_cmp_eq_u32 s62, 8")
    a.I("s_cbranch_scc1 L_T_rdy")
    a.I(f"s_cmp_lt_u32 s{sIt}, 0x100000")
    a.I("s_cbranch_scc0 L_T_rdy")
    a.I("s_sleep 8")
    a.I("s_branch L_T_rdypoll")
    a.L("L_T_rdy")
    a.I("s_waitcnt lgkmcnt(0)")
    a.I("s_barrier")
    tail_stamp_reset()
    stamp(a, 246); stamp(a, 246, 1); dbg_stamp(a, 246)
    for qt in range(3): a.I(rdB(0, qt, 0, 0))
    for nt in range(4):
        for sec in range(2): a.I(rdA(0, nt, sec))
    def stage(jj, first=False, nxt=True, bar=True):
        buf = jj & 1; nb = buf ^ 1; ns = (jj + 1) & 3
        nks = (jj + 1) & 1; npar = ((jj + 1) >> 1) & 1
        idx = 0
        for nt in range(4):
            if nxt or True:
                if first: w = [6, 7, 7, 7][nt] if False else None
            if first:
                cnt = [6, 4 + 3 + 2, 2 + 3 + 2 + 2, 0 + 3 + 2 + 2 + 2][nt] if nxt else [6, 4, 2, 0][nt]
            else:
                cnt = [6, 9, 9, 9][nt] if nxt else [6, 4, 2, 0][nt]
            a.I(f"s_waitcnt lgkmcnt({cnt})")
            for qt in range(3):
                mfma(a, ACC + (nt*3 + qt)*16, AF + nt*4, BF + buf*12 + qt*4, "0" if first else None)
                if nxt and nt == 0: a.I(rdB(nb, qt, npar, nks))
                if nxt and qt == 2:
                    a.I(rdA(ns, nt, 0)); a.I(rdA(ns, nt, 1))
                if nt == 1 and qt == 0 and (jj & 1) == 0 and nxt:
                    ops = bbase_ops(((jj >> 1) + 1) & 1, (jj >> 1) + 1)
                    for o in ops[:6]: a.I(o)
                if nt == 1 and qt == 1 and (jj & 1) == 0 and nxt:
                    for o in ops[6:12]: a.I(o)
                if nt == 2 and qt == 0 and (jj & 1) == 0 and nxt:
                    for o in ops[12:]: a.I(o)
                idx += 1
        if bar: a.I("s_barrier")
    stage(0, first=True); stage(1); stage(2); stage(3)
    a.I(f"s_add_u32 s{sSt}, s{sSt}, 2")
    a.I(f"s_mov_b32 s{sIt}, 6")
    a.L("L_T_loop")
    stage(0); stage(1); stage(2); stage(3)
    a.I(f"s_add_u32 s{sSt}, s{sSt}, 2")
    a.I(f"s_sub_u32 s{sIt}, s{sIt}, 1")
    a.I(f"s_cmp_lg_u32 s{sIt}, 0")
    a.I("s_cbranch_scc1 L_T_loop")
    stage(0); stage(1); stage(2); stage(3, nxt=False, bar=False)
    mk = a.mark()
    a.I(f"s_lshl_b32 s{sG}, s{S_P}, 4")
    a.I(f"s_add_u32 s{sG}, s{sG}, s{S_B}")
    a.I(f"s_lshl_b32 s{sA}, s{sG}, 2")
    a.I(f"s_add_u32 s{sA}, s{sA}, s{S_WAVE}")
    a.I(f"s_lshl_b32 s{sA}, s{sA}, 4")
    a.I(f"s_add_u32 s{sA}, s{sA}, s{S_MJ}")
    a.I(f"s_mul_i32 s{sA}, s{sA}, 12288")
    stamp(a, 246); stamp(a, 246, 1); dbg_stamp(a, 246)
    a.pad_since(mk, 12)
    n = 0
    for nt in range(4):
        for qt in range(3):
            base = ACC + (nt*3 + qt)*16
            pk = PK + (n % 4) * 8
            n += 1
            for j in range(8):
                a.I(f"v_cvt_pk_bf16_f32 v{pk+j}, v{base+2*j}, v{base+2*j+1}")
            ch = (qt*2 + (nt & 1))*2
            a.I(f"s_add_u32 s{sBq}, s{sA}, {ch*1024 + (nt >> 1)*8*12288}")
            a.I(f"buffer_store_dwordx4 {vr(pk,4)}, v{vL16}, s[{SPT}:{SPT+3}], s{sBq} offen{cfg.part_st_pol}")
            a.I(f"buffer_store_dwordx4 {vr(pk+4,4)}, v{vL16}, s[{SPT}:{SPT+3}], s{sBq} offen offset:1024{cfg.part_st_pol}")
    SGO = 64
    go_srd(a, SGO)
    a.I("s_waitcnt vmcnt(0)")
    stamp(a, 246, 1); dbg_stamp(a, 246)
    a.I(f"s_lshl_b32 s{sA}, s{sG}, 2")
    a.I(f"s_add_u32 s{sA}, s{sA}, s{S_WAVE}")
    a.I(f"s_lshl_b32 s{sA}, s{sA}, 8")
    a.I(f"s_lshl_b32 s{sBq}, s{S_MJ}, 2")
    a.I(f"s_add_u32 s{sA}, s{sA}, s{sBq}")
    a.I(f"v_lshlrev_b32 v4, 7, v{vL}")
    a.I("v_mov_b32 v1, 1")
    a.I("s_mov_b64 s[60:61], exec")
    a.I("s_mov_b64 exec, 3")
    a.I(f"buffer_store_dword v1, v4, s[{SGO}:{SGO+3}], s{sA} offen sc1")
    a.I("s_mov_b64 exec, s[60:61]")
    a.I(f"s_cmp_ge_u32 s{S_WAVE}, 2")
    a.I("s_cbranch_scc1 L_k1_end")
    a.I(f"s_add_u32 s{sJ}, s{S_WAVE}, 4")
    a.I("s_branch L_T_reduce")
    a.L("L_T_handoff")
    go_srd(a, SGO)
    a.I(f"s_sub_u32 s{sJ}, s{S_WAVE}, 4")
    a.L("L_T_reduce")
    vB = 242
    a.I(f"v_lshlrev_b32 v{vB}, 4, v{vL}")
    a.I("s_load_dwordx2 s[58:59], s[0:1], 80")
    a.I(f"s_lshl_b32 s{sA}, s{sG}, 3")
    a.I(f"s_add_u32 s{sA}, s{sA}, s{S_MJ}")
    a.I(f"s_lshl_b32 s{sA}, s{sA}, 7")
    a.I(f"v_lshlrev_b32 v2, 2, v{vL}")
    a.I("s_mov_b64 s[60:61], exec")
    a.I("s_mov_b64 exec, 0xff")
    a.I(f"s_mov_b32 s{sIt}, 0")
    a.L("L_T_poll")
    a.I(f"buffer_load_dword v3, v2, s[{SGO}:{SGO+3}], s{sA} offen sc1")
    a.I("s_waitcnt vmcnt(0)")
    a.I("v_cmp_ne_u32 vcc, 1, v3")
    a.I(f"s_add_u32 s{sIt}, s{sIt}, 1")
    a.I("s_cbranch_vccz L_T_polled")
    a.I(f"s_cmp_lt_u32 s{sIt}, 0x100000")
    a.I("s_cbranch_scc0 L_T_polled")
    a.I("s_sleep 1")
    a.I("s_branch L_T_poll")
    a.L("L_T_polled")
    a.I("s_mov_b64 exec, s[60:61]")
    stamp(a, 246); stamp(a, 246, 1); dbg_stamp(a, 246)
    a.I("s_waitcnt lgkmcnt(0)")
    srd(a, SOUT, 58, 16*96*1024*2)
    a.I(f"s_lshl_b32 s{sA}, s{sG}, 3")
    a.I(f"s_add_u32 s{sA}, s{sA}, s{S_MJ}")
    a.I(f"s_mul_i32 s{sA}, s{sA}, 98304")
    a.I(f"s_lshl_b32 s{sBq}, s{sJ}, 11")
    a.I(f"s_add_u32 s{sA}, s{sA}, s{sBq}")
    for src in range(8):
        a.I(f"s_add_u32 s{sBq}, s{sA}, {src*12288}")
        a.I(f"buffer_load_dwordx4 {vr(8+src*8,4)}, v{vB}, s[{SPT}:{SPT+3}], s{sBq} offen{cfg.part_ld_pol}")
        a.I(f"buffer_load_dwordx4 {vr(8+src*8+4,4)}, v{vB}, s[{SPT}:{SPT+3}], s{sBq} offen offset:1024{cfg.part_ld_pol}")
    a.I(f"s_lshr_b32 s{sBq}, s{sJ}, 1")
    a.I(f"s_lshl_b32 s{sBq}, s{sBq}, 5")
    a.I(f"s_mul_i32 s{sA}, s{S_B}, 96")
    a.I(f"s_add_u32 s{sA}, s{sA}, s{sBq}")
    a.I(f"s_lshl_b32 s{sA}, s{sA}, 11")
    a.I(f"s_lshl_b32 s{sBq}, s{S_P}, 10")
    a.I(f"s_add_u32 s{sA}, s{sA}, s{sBq}")
    a.I(f"s_lshl_b32 s{sBq}, s{S_MJ}, 7")
    a.I(f"s_add_u32 s{sA}, s{sA}, s{sBq}")
    a.I(f"s_and_b32 s{sBq}, s{sJ}, 1")
    a.I(f"s_lshl_b32 s{sBq}, s{sBq}, 6")
    a.I(f"s_add_u32 s{sA}, s{sA}, s{sBq}")
    a.I(f"v_and_b32 v2, 31, v{vL}")
    a.I("v_lshlrev_b32 v2, 11, v2")
    a.I(f"v_lshrrev_b32 v3, 5, v{vL}")
    a.I("v_lshl_add_u32 v2, v3, 5, v2")
    RA = 80
    for src in range(8):
        a.I(f"s_waitcnt vmcnt({14 - 2*src})")
        for d in range(8):
            r = 8 + src*8 + d
            if src == 0:
                a.I(f"v_lshlrev_b32 v{RA+2*d}, 16, v{r}")
                a.I(f"v_and_b32 v{RA+2*d+1}, 0xffff0000, v{r}")
            else:
                a.I(f"v_lshlrev_b32 v4, 16, v{r}")
                a.I(f"v_and_b32 v5, 0xffff0000, v{r}")
                a.I(f"v_add_f32 v{RA+2*d}, v{RA+2*d}, v4")
                a.I(f"v_add_f32 v{RA+2*d+1}, v{RA+2*d+1}, v5")
    for d in range(8):
        a.I(f"v_cvt_pk_bf16_f32 v{8+d}, v{RA+2*d}, v{RA+2*d+1}")
    a.I(f"buffer_store_dwordx4 v[8:11], v2, s[{SOUT}:{SOUT+3}], s{sA} offen")
    a.I(f"buffer_store_dwordx4 v[12:15], v2, s[{SOUT}:{SOUT+3}], s{sA} offen offset:16")
    a.I("s_waitcnt vmcnt(0)")
    stamp(a, 246); stamp(a, 246, 1); dbg_stamp(a, 246)
    a.I("s_waitcnt vmcnt(0)")
    a.L("L_k1_end")
    a.I("s_endpgm")

def gen_k2(a):
    a.I("s_cmp_ge_u32 s2, 256")
    a.I("s_cbranch_scc1 L_k2_end")
    a.I("s_load_dwordx2 s[4:5], s[0:1], 80")
    a.I("s_load_dwordx2 s[6:7], s[0:1], 96")
    if cfg.dbgst: a.I("s_memrealtime s[34:35]")
    a.I("v_lshrrev_b32 v1, 6, v0")
    a.I("v_and_b32 v0, 63, v0")
    a.I("v_readfirstlane_b32 s20, v1")
    a.I("s_waitcnt lgkmcnt(0)")
    srd(a, 8, 6, PART_BYTES)
    srd(a, 12, 4, 16*96*1024*2)
    a.I("s_mul_i32 s21, s2, 98304")
    a.I("s_lshl_b32 s22, s20, 11")
    a.I("s_add_u32 s21, s21, s22")
    a.I("v_lshlrev_b32 v1, 4, v0")
    for src in range(8):
        a.I(f"s_add_u32 s23, s21, {src*12288}")
        a.I(f"buffer_load_dwordx4 {vr(8+src*8,4)}, v1, s[8:11], s23 offen{cfg.part_ld_pol}")
        a.I(f"buffer_load_dwordx4 {vr(8+src*8+4,4)}, v1, s[8:11], s23 offen offset:1024{cfg.part_ld_pol}")
    a.I("s_lshr_b32 s24, s2, 3")
    a.I("s_and_b32 s25, s2, 7")
    a.I("s_and_b32 s26, s24, 15")
    a.I("s_lshr_b32 s27, s24, 4")
    a.I("s_lshr_b32 s28, s20, 1")
    a.I("s_and_b32 s29, s20, 1")
    a.I("s_mul_i32 s26, s26, 96")
    a.I("s_lshl_b32 s28, s28, 5")
    a.I("s_add_u32 s26, s26, s28")
    a.I("s_lshl_b32 s26, s26, 11")
    a.I("s_lshl_b32 s27, s27, 10")
    a.I("s_lshl_b32 s25, s25, 7")
    a.I("s_lshl_b32 s29, s29, 6")
    a.I("s_add_u32 s26, s26, s27")
    a.I("s_add_u32 s26, s26, s25")
    a.I("s_add_u32 s26, s26, s29")
    a.I("v_and_b32 v2, 31, v0")
    a.I("v_lshlrev_b32 v2, 11, v2")
    a.I("v_lshrrev_b32 v3, 5, v0")
    a.I("v_lshl_add_u32 v2, v3, 5, v2")
    ACC = 80
    for src in range(8):
        a.I(f"s_waitcnt vmcnt({14 - 2*src})")
        for d in range(8):
            r = 8 + src*8 + d
            if src == 0:
                a.I(f"v_lshlrev_b32 v{ACC+2*d}, 16, v{r}")
                a.I(f"v_and_b32 v{ACC+2*d+1}, 0xffff0000, v{r}")
            else:
                a.I(f"v_lshlrev_b32 v4, 16, v{r}")
                a.I(f"v_and_b32 v5, 0xffff0000, v{r}")
                a.I(f"v_add_f32 v{ACC+2*d}, v{ACC+2*d}, v4")
                a.I(f"v_add_f32 v{ACC+2*d+1}, v{ACC+2*d+1}, v5")
    for d in range(8):
        a.I(f"v_cvt_pk_bf16_f32 v{8+d}, v{ACC+2*d}, v{ACC+2*d+1}")
    a.I("buffer_store_dwordx4 v[8:11], v2, s[12:15], s26 offen")
    a.I("buffer_store_dwordx4 v[12:15], v2, s[12:15], s26 offen offset:16")
    a.I("s_waitcnt vmcnt(0)")
    if cfg.dbgst:
        a.I("s_cmp_lg_u32 s2, 0")
        a.I("s_cbranch_scc1 L_k2_end")
        a.I("s_cmp_lg_u32 s20, 0")
        a.I("s_cbranch_scc1 L_k2_end")
        a.I("s_memrealtime s[36:37]")
        a.I("s_load_dwordx2 s[30:31], s[0:1], 88")
        a.I("s_waitcnt lgkmcnt(0)")
        a.I(f"s_add_u32 s8, s6, {40<<20}")
        a.I("s_addc_u32 s9, s7, 0")
        a.I("s_and_b32 s9, s9, 0xffff")
        a.I("s_mov_b32 s10, 256")
        a.I("s_mov_b32 s11, 0x20000")
        a.I("s_mov_b32 s12, s30")
        a.I("s_and_b32 s13, s31, 0xffff")
        a.I("s_mov_b32 s14, 64")
        a.I("s_mov_b32 s15, 0x20000")
        a.I("v_lshlrev_b32 v1, 2, v0")
        a.I("buffer_load_dword v2, v1, s[8:11], 0 offen sc1")
        a.I("s_waitcnt vmcnt(0)")
        a.I("v_mov_b32 v3, s34")
        a.I("v_cmp_eq_u32 vcc, 14, v0")
        a.I("s_nop 1")
        a.I("v_cndmask_b32 v2, v2, v3, vcc")
        a.I("v_mov_b32 v3, s36")
        a.I("v_cmp_eq_u32 vcc, 15, v0")
        a.I("s_nop 1")
        a.I("v_cndmask_b32 v2, v2, v3, vcc")
        a.I("buffer_store_dword v2, v1, s[12:15], 0 offen")
        a.I("s_waitcnt vmcnt(0)")
    a.L("L_k2_end")
    a.I("s_endpgm")

def kd(a, name, vgpr, sgpr):
    a.raw('.section .rodata,"a"')
    a.raw(".p2align 6")
    a.raw(f".amdhsa_kernel {name}")
    a.raw(f"  .amdhsa_next_free_vgpr {vgpr}")
    a.raw(f"  .amdhsa_next_free_sgpr {sgpr}")
    a.raw(f"  .amdhsa_accum_offset {(vgpr+3)//4*4}")
    a.raw("  .amdhsa_group_segment_fixed_size 0")
    a.raw("  .amdhsa_kernarg_size 104")
    a.raw("  .amdhsa_user_sgpr_count 2")
    a.raw("  .amdhsa_user_sgpr_kernarg_segment_ptr 1")
    a.raw("  .amdhsa_system_sgpr_workgroup_id_x 1")
    a.raw(".end_amdhsa_kernel")

def build():
    a = Asm()
    global K1
    if cfg.fused:
        K1 = NAME + "_kernel"
        a.raw(f"; @launch grid=(256,1,1) block=(512,1,1) lds={LDS_BYTES}")
    else:
        a.raw(f"; @launch kernel={K1} grid=(256,1,1) block=(512,1,1) lds={LDS_BYTES}")
        a.raw(f"; @launch kernel={K2} grid=(256,1,1) block=(384,1,1) lds=0")
    a.raw('.amdgcn_target "amdgcn-amd-amdhsa--gfx950"')
    a.raw(".text")
    a.raw(f".globl {K1}")
    a.raw(".p2align 8")
    a.raw(f".type {K1},@function")
    a.L(K1)
    setup_common(a)
    gen_loader(a, True)
    gen_loader(a, False)
    gen_G(a)
    gen_A(a)
    gen_tail(a)
    if not cfg.fused:
        a.raw(f".globl {K2}")
        a.raw(".p2align 8")
        a.raw(f".type {K2},@function")
        a.L(K2)
        gen_k2(a)
    kd(a, K1, 256, 102 if (cfg.stamps or cfg.dbgst) else 72)
    if not cfg.fused:
        a.raw(".text")
        kd(a, K2, 96, 40)
    return a

if __name__ == "__main__":
    for arg in sys.argv[2:]:
        k, v = arg.split("=", 1)
        cur = getattr(cfg, k)
        if isinstance(cur, bool): v = v in ("1", "True", "true")
        elif isinstance(cur, int): v = int(v)
        elif isinstance(cur, float): v = float(v)
        else: v = v.replace("_", " ")
        setattr(cfg, k, v)
    a = build()
    out = sys.argv[1] if len(sys.argv) > 1 else f"cdna_kernels/{NAME}.s"
    open(out, "w").write(a.text())
    probs = check_file(a.lines)
    for p in probs: print("HAZARD", p)
    print("wrote", out, len(a.lines), "lines;", len(probs), "hazard reports")
```

```python
import struct, math, sys
from asmlib import Asm, vr, sr, check_file

NAME = "concat_heads__mha_block_cached__gqa_block_cached__near_ridge"
K1 = "attn_kernel"
K2 = "reduce_kernel"

def f2u(x): return struct.unpack("<I", struct.pack("<f", x))[0]
CSCALE = math.log2(math.e) / math.sqrt(128.0)

KR = 0; VR = 32768; WR = 65536; QH = 98304; XS = 98304
OS = [122880, 98304, 65536, 0]
STAGE = [24576, 32768, 40960, 49152, 57344, 90112, 147456, 155648]
LDS_BYTES = 163840
PART_BYTES = 32 * 64 * 12288

class Cfg:
    kv_pol = " nt"
    wq_pol = " nt"
    x_pol = ""
    wo_pol = ""
    part_st_pol = " sc1"
    part_ld_pol = " sc1"
    thresh = 8.0
    debug_dump = False
    prio_a = 0
    stamps = 0
    nokv = False
    nog = False
    wfirst = True
    ldprio = 0
    tailst = False
    ghalf = 0
    t_nowait = False
    t_contig = False
    t_nodma = False
    t_nord = False
    t_early = False
    wo_fake = False
    dbgwave = 0
    dbgwg = 0
    part_off = 0
    fused = True
    noa = False
    nogr = False
    nowq = False
    dbgst = False

cfg = Cfg()

S_WAVE = 20; S_XCD = 21; S_SLOT = 22; S_P = 23; S_B = 24; S_HQ = 25; S_HB = 26; S_RHO = 27; S_MJ = 28
P_X = 8; P_K = 10; P_V = 12; P_WQ = 14; P_WO = 16; P_WS = 18

def srd(a, dst, ptr, size):
    a.I(f"s_mov_b32 s{dst}, s{ptr}")
    a.I(f"s_and_b32 s{dst+1}, s{ptr+1}, 0xffff")
    a.I(f"s_mov_b32 s{dst+2}, {hex(size)}")
    a.I(f"s_mov_b32 s{dst+3}, 0x20000")

def setup_common(a):
    a.I("s_cmp_ge_u32 s2, 256")
    a.I("s_cbranch_scc1 L_k1_end")
    a.I(f"s_and_b32 s{S_XCD}, s2, 7")
    a.I(f"s_lshr_b32 s{S_SLOT}, s2, 3")
    a.I(f"s_lshr_b32 s{S_P}, s{S_XCD}, 2")
    a.I(f"s_mul_i32 s3, s{S_P}, 40")
    a.I("s_add_u32 s4, s0, s3")
    a.I("s_addc_u32 s5, s1, 0")
    a.I("s_load_dwordx8 s[8:15], s[4:5], 0")
    a.I(f"s_load_dwordx2 s[{P_WO}:{P_WO+1}], s[4:5], 32")
    a.I(f"s_load_dwordx2 s[{P_WS}:{P_WS+1}], s[0:1], 96")
    a.I("v_lshrrev_b32 v1, 6, v0")
    a.I("v_and_b32 v0, 63, v0")
    a.I(f"v_readfirstlane_b32 s{S_WAVE}, v1")
    a.I(f"s_lshr_b32 s{S_B}, s{S_SLOT}, 1")
    a.I(f"s_and_b32 s{S_HQ}, s{S_SLOT}, 1")
    a.I(f"s_and_b32 s3, s{S_XCD}, 3")
    a.I("s_lshl_b32 s3, s3, 1")
    a.I(f"s_add_u32 s{S_MJ}, s3, s{S_HQ}")
    a.I(f"s_lshl_b32 s{S_HB}, s{S_MJ}, 2")
    a.I(f"s_and_b32 s{S_RHO}, s{S_B}, 3")
    a.I(f"s_lshl_b32 s{S_RHO}, s{S_RHO}, 2")
    a.I("s_waitcnt lgkmcnt(0)")
    dbg_setup(a)
    a.I(f"s_cmp_lt_u32 s{S_WAVE}, 3")
    a.I("s_cbranch_scc1 L_roleA")
    a.I(f"s_cmp_eq_u32 s{S_WAVE}, 3")
    a.I("s_cbranch_scc1 L_roleLK")
    a.I(f"s_cmp_eq_u32 s{S_WAVE}, 7")
    a.I("s_cbranch_scc1 L_roleLV")
    a.I("s_branch L_roleG")

def gen_loader(a, isK):
    tag = "LK" if isK else "LV"
    D = 13 if isK else 14
    a.L(f"L_role{tag}")
    if cfg.ldprio: a.I(f"s_setprio {cfg.ldprio}")
    SKV = 32; SW = 36
    srd(a, SKV, P_K if isK else P_V, 0x4000000)
    srd(a, SW, P_WQ, 0x400000)
    sKB = 48; sT = 49; sTau = 50; sN = 51; sA = 52; sBq = 53; sWrow = 54
    a.I(f"s_lshl_b32 s{sKB}, s{S_B}, 5")
    a.I(f"s_add_u32 s{sKB}, s{sKB}, s{S_HB}")
    a.I(f"s_lshl_b32 s{sKB}, s{sKB}, 17")
    a.I("v_and_b32 v1, 15, v0")
    a.I("v_lshrrev_b32 v2, 4, v0")
    if isK:
        for j in range(4):
            a.I(f"v_add_u32 v3, {4*j}, v2")
            a.I("v_xor_b32 v3, v1, v3")
            a.I("v_lshlrev_b32 v3, 4, v3")
            a.I(f"v_lshl_add_u32 v{4+j}, v2, 8, v3")
    else:
        for j in range(4):
            a.I(f"v_add_u32 v3, {4*(j & 1)}, v2")
            a.I("v_lshlrev_b32 v3, 1, v3")
            a.I("v_xor_b32 v3, v1, v3")
            a.I("v_lshlrev_b32 v3, 4, v3")
            a.I(f"v_lshl_add_u32 v{4+j}, v2, 8, v3")
    a.I("v_lshlrev_b32 v3, 2, v2")
    a.I("v_xor_b32 v3, v1, v3")
    a.I("v_lshlrev_b32 v3, 4, v3")
    a.I("v_lshlrev_b32 v9, 13, v2")
    a.I("v_add_u32 v8, v9, v3")
    i0 = 0 if isK else 4
    LB = KR if isK else VR

    def issue_w():
        a.I(f"s_add_u32 s{sA}, s{S_RHO}, s{sTau}")
        a.I(f"s_and_b32 s{sA}, s{sA}, 15")
        a.I(f"s_lshl_b32 s{sA}, s{sA}, 18")
        a.I(f"s_lshr_b32 s{sBq}, s{sTau}, 4")
        a.I(f"s_add_u32 s{sBq}, s{sBq}, s{S_HB}")
        a.I(f"s_lshl_b32 s{sBq}, s{sBq}, 8")
        a.I(f"s_add_u32 s{sA}, s{sA}, s{sBq}")
        a.I(f"s_add_u32 s{sA}, s{sA}, {i0*4*8192}")
        a.I(f"s_and_b32 s{sBq}, s{sTau}, 3")
        a.I(f"s_lshl_b32 s{sBq}, s{sBq}, 13")
        a.I(f"s_add_u32 s{sBq}, s{sBq}, {WR + i0*1024}")
        for i in range(4):
            a.I(f"s_add_u32 m0, s{sBq}, {i*1024}")
            if i: a.I(f"s_add_u32 s{sA}, s{sA}, 32768")
            else: a.I("s_nop 0")
            a.I(f"buffer_load_dwordx4 v8, s[{SW}:{SW+3}], s{sA} offen{cfg.wq_pol} lds")
        a.I(f"s_add_u32 s{sTau}, s{sTau}, 1")

    def issue_kv():
        a.I(f"s_lshl_b32 s{sA}, s{sT}, 13")
        a.I(f"s_add_u32 s{sA}, s{sA}, s{sKB}")
        a.I(f"s_and_b32 s{sBq}, s{sT}, 3")
        a.I(f"s_lshl_b32 s{sBq}, s{sBq}, 13")
        for half in range(2):
            if cfg.nokv: break
            a.I(f"s_add_u32 m0, s{sBq}, {LB + half*4096}")
            if half: a.I(f"s_add_u32 s{sA}, s{sA}, 4096")
            else: a.I("s_nop 0")
            for j in range(4):
                off = f" offset:{j*1024}" if j else ""
                a.I(f"buffer_load_dwordx4 v{4+j}, s[{SKV}:{SKV+3}], s{sA} offen{off}{cfg.kv_pol} lds")
        a.I(f"s_add_u32 s{sT}, s{sT}, 1")

    stamp_setup(a)
    a.I(f"s_mov_b32 s{sT}, 0")
    a.I(f"s_mov_b32 s{sTau}, 0")
    for _ in range(4): issue_w()
    a.I("s_waitcnt vmcnt(12)")
    a.I("s_barrier")
    a.I("s_waitcnt vmcnt(8)")
    WLAST = 16 if cfg.nowq else 59
    def cnt(n):
        if n < 0: return 4
        return (4 if n <= WLAST else 0) + (8 if (D <= n <= D + 63 and not cfg.nokv) else 0)
    phases = []
    for n in range(79 if isK else 82):
        key = (D <= n <= D + 63, n <= WLAST, cnt(n) + cnt(n - 1))
        if phases and phases[-1][0] == key: phases[-1][2] = n
        else: phases.append([key, n, n])
    for pi, (key, n0, n1) in enumerate(phases):
        kv, w, N = key
        cntn = n1 - n0 + 1
        if cntn > 1:
            a.I(f"s_mov_b32 s{sN}, {cntn}")
            a.L(f"L_{tag}_ph{pi}")
        a.I("s_barrier")
        stamp(a, 20)
        if cfg.wfirst:
            if w: issue_w()
            if kv: issue_kv()
        else:
            if kv: issue_kv()
            if w: issue_w()
        stamp(a, 20)
        a.I(f"s_waitcnt vmcnt({N + (7 if cfg.stamps == 2 else 0)})")
        stamp(a, 20)
        if cntn > 1:
            a.I(f"s_sub_u32 s{sN}, s{sN}, 1")
            a.I(f"s_cmp_lg_u32 s{sN}, 0")
            a.I(f"s_cbranch_scc1 L_{tag}_ph{pi}")
    a.I("s_branch L_tail_pre" if isK else "s_branch L_tail_mm")

STAMP_BASE = 32 << 20
def stamp_setup(a):
    if not cfg.stamps: return
    a.I(f"s_mov_b32 s92, s{P_WS}")
    a.I(f"s_and_b32 s93, s{P_WS+1}, 0xffff")
    a.I(f"s_mov_b32 s94, {hex(STAMP_BASE + (2<<20))}")
    a.I("s_mov_b32 s95, 0x20000")
    a.I("s_lshl_b32 s96, s2, 3")
    a.I(f"s_add_u32 s96, s96, s{S_WAVE}")
    a.I("s_lshl_b32 s96, s96, 10")
    a.I(f"s_add_u32 s96, s96, {STAMP_BASE}")
def stamp(a, vtmp, level=2):
    if cfg.stamps != level: return
    a.I("s_memrealtime s[98:99]")
    if level == 1: a.I("s_memtime s[100:101]")
    a.I("s_waitcnt lgkmcnt(0)")
    a.I(f"v_mov_b32 v{vtmp}, s98")
    a.I(f"v_mov_b32 v{vtmp+1}, 0")
    a.I(f"buffer_store_dword v{vtmp}, v{vtmp+1}, s[92:95], s96 offen")
    if level == 1:
        a.I(f"v_mov_b32 v{vtmp}, s100")
        a.I(f"buffer_store_dword v{vtmp}, v{vtmp+1}, s[92:95], s96 offen offset:4")
        a.I("s_add_u32 s96, s96, 4")
    a.I("s_add_u32 s96, s96, 4")

def dbg_setup(a):
    if not cfg.dbgst: return
    a.I("s_load_dwordx2 s[90:91], s[0:1], 88")
    a.I("s_waitcnt lgkmcnt(0)")
    a.I("s_mov_b32 s92, s90")
    a.I("s_and_b32 s93, s91, 0xffff")
    a.I("s_mov_b32 s94, 0")
    a.I("s_mov_b32 s96, 0")
    a.I(f"s_cmp_lg_u32 s{S_WAVE}, {cfg.dbgwave}")
    a.I("s_cbranch_scc1 L_dbg_done")
    a.I(f"s_cmp_eq_u32 s2, {cfg.dbgwg}")
    a.I("s_cselect_b32 s94, 64, 0")
    a.L("L_dbg_done")
    a.I("s_mov_b32 s95, 0x20000")
def dbg_stamp(a, vtmp):
    if not cfg.dbgst: return
    a.I("s_memrealtime s[98:99]")
    a.I("s_waitcnt lgkmcnt(0)")
    a.I(f"v_mov_b32 v{vtmp}, s98")
    a.I(f"v_mov_b32 v{vtmp+1}, 0")
    a.I(f"buffer_store_dword v{vtmp}, v{vtmp+1}, s[92:95], s96 offen")
    a.I("s_add_u32 s96, s96, 4")

GO_OFF = 26 << 20
def go_srd(a, dst):
    a.I(f"s_add_u32 s{dst}, s{P_WS}, {GO_OFF}")
    a.I(f"s_addc_u32 s{dst+1}, s{P_WS+1}, 0")
    a.I(f"s_and_b32 s{dst+1}, s{dst+1}, 0xffff")
    a.I(f"s_mov_b32 s{dst+2}, {256*128}")
    a.I(f"s_mov_b32 s{dst+3}, 0x20000")

def mfma(a, d, A, B, c=None):
    cs = vr(d, 4) if c is None else (c if isinstance(c, str) else vr(c, 4))
    a.I(f"v_mfma_f32_16x16x32_bf16 {vr(d,4)}, {vr(A,4)}, {vr(B,4)}, {cs}")

def kpattern_addr(a, dst, n):
    a.I("v_and_b32 v1, 15, v0")
    a.I("v_lshrrev_b32 v2, 4, v0")
    a.I("v_xor_b32 v3, v1, v2")
    a.I("v_lshlrev_b32 v1, 8, v1")
    for k in range(n):
        a.I(f"v_xor_b32 v2, {4*k}, v3")
        a.I(f"v_lshl_add_u32 v{dst+k}, v2, 4, v1")

def gen_G(a):
    a.L("L_roleG")
    X = 0; QA = 128; WF = 192; vWA = 224; vXA = 228; vXO = 236; vL16 = 240; vLane = 241
    SX = 32
    sW = 48; sA = 49; sBq = 50; sU = 51; sXb = 52; sC = 56; sPi = 53
    srd(a, SX, P_X, 16*96*512*2)
    a.I(f"s_sub_u32 s{sW}, s{S_WAVE}, 4")
    a.I(f"s_mov_b32 s{sC}, {hex(f2u(CSCALE))}")
    a.I(f"s_mov_b32 s{sC+1}, {hex(f2u(CSCALE))}")
    a.I(f"v_mov_b32 v{vLane}, v0")
    a.I(f"v_lshlrev_b32 v{vL16}, 4, v0")
    kpattern_addr(a, vXA, 4)
    a.I(f"s_lshl_b32 s{sA}, s{sW}, 14")
    a.I(f"s_add_u32 s{sA}, s{sA}, {XS}")
    for k in range(4):
        a.I(f"v_add_u32 v{vXA+k}, s{sA}, v{vXA+k}")
    a.I("v_and_b32 v1, 15, v0")
    a.I("v_lshrrev_b32 v2, 4, v0")
    for j in range(4):
        a.I(f"v_add_u32 v3, {4*j}, v2")
        a.I("v_xor_b32 v3, v1, v3")
        a.I("v_lshlrev_b32 v3, 4, v3")
        a.I(f"v_lshl_add_u32 v{vXO+j}, v2, 10, v3")
    a.I("v_lshrrev_b32 v3, 2, v1")
    a.I("v_lshl_add_u32 v5, v2, 3, v3")
    a.I("v_lshlrev_b32 v5, 8, v5")
    a.I("v_and_b32 v6, 3, v1")
    a.I("v_lshl_add_u32 v5, v6, 4, v5")
    a.I(f"v_add_u32 v5, {WR}, v5")
    for i in range(4):
        a.I(f"v_xor_b32 v6, {i}, v3")
        a.I(f"v_lshl_add_u32 v{vWA+i}, v6, 6, v5")
    a.I(f"s_mul_i32 s{sXb}, s{S_B}, 98304")
    a.I(f"s_lshl_b32 s{sA}, s{sW}, 15")
    a.I(f"s_add_u32 s{sXb}, s{sXb}, s{sA}")

    def issue_x(piece):
        a.I(f"s_lshr_b32 s{sPi}, s{S_RHO}, 2")
        a.I(f"s_add_u32 s{sPi}, s{sPi}, {piece}")
        a.I(f"s_and_b32 s{sPi}, s{sPi}, 3")
        a.I(f"s_lshl_b32 s{sPi}, s{sPi}, 8")
        a.I(f"s_add_u32 s{sA}, s{sXb}, s{sPi}")
        a.I(f"s_lshl_b32 s{sBq}, s{sW}, 14")
        a.I(f"s_add_u32 s{sBq}, s{sBq}, {(XS if piece < 2 else 0) + (piece & 1)*8192}")
        for i in range(8):
            a.I(f"s_add_u32 m0, s{sBq}, {i*1024}")
            if i: a.I(f"s_add_u32 s{sA}, s{sA}, 4096")
            else: a.I("s_nop 0")
            a.I(f"buffer_load_dwordx4 v{vXO + (i & 3)}, s[{SX}:{SX+3}], s{sA} offen{cfg.x_pol} lds")
    stamp_setup(a)
    for pc in range(4): issue_x(pc)

    def x_reads(piece):
        a.I(f"s_waitcnt vmcnt({8*(3 - piece)})")
        if piece == 2:
            for k in range(4): a.I(f"v_subrev_u32 v{vXA+k}, {XS}, v{vXA+k}")
        for t in range(4):
            for sb in range(2):
                a.I(f"ds_read_b128 {vr(X + piece*32 + t*8 + sb*4, 4)}, v{vXA+t} offset:{(piece&1)*8192 + sb*4096}")
    def rd(slot, i):
        return [f"ds_read_b64_tr_b16 {vr(WF + i*4 + sec*2, 2)}, v{vWA + (i >> 1)} offset:{slot*8192 + sec*1024 + (i & 1)*8}" for sec in range(2)]
    def qa(i, sb):
        return QA + (((i >> 1)*2 + sb)*2 + (i & 1))*4

    def task(t, first_unit, nxt=True):
        stamp(a, 246)
        a.I("s_barrier")
        stamp(a, 246)
        if cfg.nogr and not first_unit: return
        ns = (t + 1) & 3
        xb = X + t*8
        for i in range(8):
            if not (cfg.nog and not first_unit) and not (cfg.ghalf and not first_unit and i >= 8 - cfg.ghalf):
                for sb in range(2):
                    mfma(a, qa(i, sb), WF + i*4, xb + 4*sb, "0" if t == 0 else None)
            if nxt:
                for o in rd(ns, i): a.I(o)
        if first_unit and t % 4 == 3 and t < 15:
            x_reads(t // 4 + 1)
        a.I("s_waitcnt lgkmcnt(0)")

    def handoff():
        a.I(f"s_cmp_lt_u32 s{sU}, 3")
        a.I(f"s_cselect_b32 s{sA}, {QH//8192}, {WR//8192}")
        a.I(f"s_add_u32 s{sA}, s{sA}, s{sW}")
        a.I(f"s_lshl_b32 s{sA}, s{sA}, 13")
        a.I(f"v_add_u32 v242, s{sA}, v{vL16}")
        a.I("s_nop 3")
        for k in range(8):
            for j in range(4):
                a.I(f"v_pk_mul_f32 {vr(QA+8*k+2*j,2)}, {vr(QA+8*k+2*j,2)}, s[{sC}:{sC+1}]")
            for j in range(4):
                a.I(f"v_cvt_pk_bf16_f32 v{QA+4*k+j}, v{QA+8*k+2*j}, v{QA+8*k+2*j+1}")
            a.I(f"ds_write_b128 v242, {vr(QA+4*k,4)} offset:{k*1024}")
        a.I("s_waitcnt lgkmcnt(0)")

    a.I("s_barrier")
    x_reads(0)
    for i in range(8):
        for o in rd(0, i): a.I(o)
    a.I("s_waitcnt lgkmcnt(0)")
    a.I(f"s_mov_b32 s{sU}, 0")
    for t in range(16): task(t, True)
    handoff()
    a.I(f"s_mov_b32 s{sU}, 1")
    a.L("L_G_unit")
    for t in range(15): task(t, False)
    task(15, False)
    handoff()
    a.I(f"s_add_u32 s{sU}, s{sU}, 1")
    a.I(f"s_cmp_lt_u32 s{sU}, 4")
    a.I("s_cbranch_scc1 L_G_unit")
    a.I(f"s_mov_b32 s{sU}, 18")
    a.L("L_G_idle")
    a.I("s_barrier")
    a.I(f"s_sub_u32 s{sU}, s{sU}, 1")
    a.I(f"s_cmp_lg_u32 s{sU}, 0")
    a.I("s_cbranch_scc1 L_G_idle")
    a.I("s_branch L_tail_mm")

def gen_A(a):
    a.L("L_roleA")
    O = 0; Q = 64; S = [96, 112]; NM = 128; P = [136, 144]; KF = 152; VF = 184
    vKA = 216; vVA = 220; l0 = 228; mx = 232; t0 = 233; inv = 234; vL16 = 242; vAd = 243; t1 = 238; t2 = 239; t3 = 240
    sIt = 48; sU = 49; sA = 50; sBq = 51; sW = S_WAVE
    if cfg.prio_a: a.I(f"s_setprio {cfg.prio_a}")
    stamp_setup(a)
    stamp(a, 246)
    stamp(a, 246, 1)
    dbg_stamp(a, 246)
    sG = 55; sTrig = 54; vRdy = 245
    a.I(f"s_lshl_b32 s{sG}, s{S_P}, 4")
    a.I(f"s_add_u32 s{sG}, s{sG}, s{S_B}")
    a.I(f"s_mov_b32 s{sTrig}, 0xffff")
    a.I("s_load_dwordx2 s[56:57], s[0:1], 88")
    a.I("s_waitcnt lgkmcnt(0)")
    srd(a, 40, 56, 256)
    a.I(f"s_cmp_lg_u32 s{S_WAVE}, 0")
    a.I("s_cbranch_scc1 L_A_noreset")
    go_srd(a, 64)
    a.I(f"s_lshl_b32 s{sA}, s{sG}, 3")
    a.I(f"s_add_u32 s{sA}, s{sA}, s{S_MJ}")
    a.I(f"s_lshl_b32 s{sA}, s{sA}, 7")
    a.I("v_mov_b32 v1, 0")
    a.I("v_lshlrev_b32 v2, 2, v0")
    a.I("s_mov_b64 s[60:61], exec")
    a.I("s_mov_b64 exec, 0xff")
    a.I(f"buffer_store_dword v1, v2, s[64:67], s{sA} offen sc1")
    a.I("s_waitcnt vmcnt(0)")
    a.I("s_mov_b64 exec, 1")
    a.I("v_mov_b32 v2, 1")
    a.I(f"s_lshl_b32 s{sA}, s{sG}, 2")
    a.I(f"s_add_u32 s{sA}, s{sA}, 128")
    a.I(f"buffer_atomic_add v2, v1, s[40:43], s{sA} offen")
    a.I("s_mov_b64 exec, s[60:61]")
    a.I("s_lshr_b32 s3, s2, 3")
    a.I("s_mul_i32 s3, s3, 3")
    a.I("s_lshr_b32 s3, s3, 3")
    a.I(f"s_add_u32 s{sTrig}, s3, 4")
    a.L("L_A_noreset")
    a.I(f"v_lshlrev_b32 v{vL16}, 4, v0")
    kpattern_addr(a, vKA, 4)
    a.I("v_and_b32 v1, 15, v0")
    a.I("v_lshrrev_b32 v2, 4, v0")
    a.I("v_lshrrev_b32 v3, 2, v1")
    a.I("v_lshl_add_u32 v4, v2, 2, v3")
    a.I("v_lshlrev_b32 v5, 8, v4")
    a.I("v_and_b32 v6, 3, v1")
    a.I("v_lshl_add_u32 v5, v6, 3, v5")
    a.I(f"v_add_u32 v5, {VR}, v5")
    a.I("v_and_b32 v4, 7, v4")
    for i in range(8):
        a.I(f"v_xor_b32 v6, {i}, v4")
        a.I(f"v_lshl_add_u32 v{vVA+i}, v6, 5, v5")
    for j in range(4): a.I(f"v_mov_b32 v{l0+j}, 0")
    a.I(f"s_mov_b32 s{sIt}, 17")
    a.L("L_A_idle")
    stamp(a, 246)
    a.I("s_barrier")
    stamp(a, 246)
    a.I(f"s_sub_u32 s{sIt}, s{sIt}, 1")
    a.I(f"s_cmp_lg_u32 s{sIt}, 0")
    a.I("s_cbranch_scc1 L_A_idle")

    rare_blocks = []

    def oacc(i, sb):
        return O + (((i >> 1)*2 + sb)*2 + (i & 1))*4
    def xreduce(v, op, tmp):
        a.I(f"v_mov_b32 v{tmp}, v{v}")
        a.I("s_nop 1")
        a.I(f"v_permlane16_swap_b32 v{v}, v{tmp}")
        a.I("s_nop 0")
        a.I(f"{op} v{v}, v{v}, v{tmp}")
        a.I(f"v_mov_b32 v{tmp}, v{v}")
        a.I("s_nop 1")
        a.I(f"v_permlane32_swap_b32 v{v}, v{tmp}")
        a.I("s_nop 0")
        a.I(f"{op} v{v}, v{v}, v{tmp}")

    def step(pos, tag, pv=True, pv_c0=False, sm=True, qk=True, first=False, fin_l=False, finalize=False, vrd=True, check=True):
        Sn = S[pos % 2]; Sc = S[(pos + 1) % 2]
        Pw = P[(pos + 1) % 2]; Pr = P[pos % 2]
        vslot = (pos + 3) % 4
        stamp(a, 246)
        a.I("s_barrier")
        stamp(a, 246)
        if first: dbg_stamp(a, 246)
        if first or tag == "_l0": stamp(a, 246, 1)
        if cfg.noa: return
        if first:
            a.I(f"s_cmp_lt_u32 s{sU}, 3")
            a.I(f"s_cselect_b32 s{sA}, {QH//8192}, {WR//8192}")
            a.I(f"s_add_u32 s{sA}, s{sA}, s{sW}")
            a.I(f"s_lshl_b32 s{sA}, s{sA}, 13")
            a.I(f"v_add_u32 v{vAd}, s{sA}, v{vL16}")
            for k in range(8):
                a.I(f"ds_read_b128 {vr(Q+4*k,4)}, v{vAd} offset:{k*1024}")
        if qk:
            for k in range(4):
                for kt in range(2):
                    a.I(f"ds_read_b128 {vr(KF+(k*2+kt)*4,4)}, v{vKA+k} offset:{pos*8192 + kt*4096}")
        if finalize:
            a.I(f"s_sub_u32 s{sA}, s{sU}, 1")
            a.I(f"s_lshl_b32 s{sA}, s{sA}, 3")
            a.I(f"s_lshr_b32 s{sA}, 0x80C11, s{sA}")
            a.I(f"s_and_b32 s{sA}, s{sA}, 0xff")
            a.I(f"s_add_u32 s{sA}, s{sA}, s{sW}")
            a.I(f"s_lshl_b32 s{sA}, s{sA}, 13")
            a.I(f"v_add_u32 v{vAd}, s{sA}, v{vL16}")
        def valu_gap(g):
            if not sm: return
            a.I(f"v_exp_f32 v{Sc+g}, v{Sc+g}")
            if g >= 1:
                e = g - 1
                lr = l0 + 2*(e >> 3) + (e & 1)
                a.I(f"v_add_f32 v{lr}, v{lr}, v{Sc+e}")
            if g >= 2 and g % 2 == 0:
                j = g // 2 - 1
                a.I(f"v_cvt_pk_bf16_f32 v{Pw+j}, v{Sc+2*j}, v{Sc+2*j+1}")
        pv_mark = None
        for i in range(8):
            if pv:
                for sb in range(2):
                    mfma(a, oacc(i, sb), VF + i*4, Pr + 4*sb, "0" if pv_c0 else None)
                pv_mark = a.mark()
            valu_gap(i)
        nv = 0; nw = 0
        for k in range(8):
            kap, kt = k // 2, k % 2
            if qk:
                a.I(f"s_waitcnt lgkmcnt({min(15, 7 - k + nv + nw)})")
                for sb in range(2):
                    c = ("0" if first else vr(NM + 4*sb, 4)) if kap == 0 else None
                    mfma(a, Sn + (sb*2 + kt)*4, KF + k*4, Q + (kap*2 + sb)*4, c)
                qk_mark = a.mark()
            if vrd:
                for sec in range(2):
                    a.I(f"ds_read_b64_tr_b16 {vr(VF + k*4 + sec*2, 2)}, v{vVA+k} offset:{vslot*8192 + sec*4096}")
                    nv += 1
            valu_gap(8 + k)
            if finalize:
                if k == 0 and pv_mark is not None: a.pad_since(pv_mark, 8)
                sb = k & 1
                for j in range(4):
                    a.I(f"v_pk_mul_f32 {vr(O+8*k+2*j,2)}, {vr(O+8*k+2*j,2)}, {vr(inv+2*sb,2)}")
                for j in range(4):
                    a.I(f"v_cvt_pk_bf16_f32 v{O+4*k+j}, v{O+8*k+2*j}, v{O+8*k+2*j+1}")
                a.I(f"ds_write_b128 v{vAd}, {vr(O+4*k,4)} offset:{k*1024}")
                nw += 1
        if sm:
            a.I("s_nop 0")
            a.I(f"v_add_f32 v{l0+3}, v{l0+3}, v{Sc+15}")
            a.I(f"v_cvt_pk_bf16_f32 v{Pw+7}, v{Sc+14}, v{Sc+15}")
        if fin_l:
            for sb in range(2):
                a.I(f"v_add_f32 v{t0}, v{l0+2*sb}, v{l0+2*sb+1}")
                xreduce(t0, "v_add_f32", t1)
                a.I(f"v_rcp_f32 v{inv+2*sb}, v{t0}")
                a.I(f"v_mov_b32 v{l0+2*sb}, 0")
                a.I(f"v_mov_b32 v{inv+2*sb+1}, v{inv+2*sb}")
                a.I(f"v_mov_b32 v{l0+2*sb+1}, 0")
        if qk:
            a.pad_since(qk_mark, 8)
            if first:
                for sb in range(2):
                    b8 = Sn + 8*sb
                    a.I(f"v_max3_f32 v{mx}, v{b8}, v{b8+1}, v{b8+2}")
                    a.I(f"v_max3_f32 v{mx}, v{mx}, v{b8+3}, v{b8+4}")
                    a.I(f"v_max3_f32 v{mx}, v{mx}, v{b8+5}, v{b8+6}")
                    a.I(f"v_max_f32 v{mx}, v{mx}, v{b8+7}")
                    xreduce(mx, "v_max_f32", t0)
                    for j in range(8):
                        a.I(f"v_sub_f32 v{b8+j}, v{b8+j}, v{mx}")
                    for j in range(4):
                        a.I(f"v_sub_f32 v{NM+4*sb+j}, 0, v{mx}")
            else:
                a.I(f"v_max3_f32 v{mx}, v{Sn}, v{Sn+1}, v{Sn+2}")
                a.I(f"v_max3_f32 v{t1}, v{Sn+3}, v{Sn+4}, v{Sn+5}")
                a.I(f"v_max3_f32 v{mx}, v{mx}, v{Sn+6}, v{Sn+7}")
                a.I(f"v_max3_f32 v{t1}, v{t1}, v{Sn+8}, v{Sn+9}")
                a.I(f"v_max3_f32 v{mx}, v{mx}, v{Sn+10}, v{Sn+11}")
                a.I(f"v_max3_f32 v{t1}, v{t1}, v{Sn+12}, v{Sn+13}")
                a.I(f"v_max3_f32 v{mx}, v{mx}, v{Sn+14}, v{Sn+15}")
                a.I(f"v_max_f32 v{mx}, v{mx}, v{t1}")
                if check:
                    a.I(f"v_cmp_lt_f32 vcc, {hex(f2u(cfg.thresh))}, v{mx}")
                    a.I(f"s_cbranch_vccnz L_A_rare{tag}")
                    a.L(f"L_A_ret{tag}")
                    rare_blocks.append((tag, Sn, Pw, sm))
        a.I("s_waitcnt lgkmcnt(0)")

    a.I(f"s_mov_b32 s{sU}, 0")
    step(0, "_f0", pv=False, sm=False, first=True, vrd=False)
    step(1, "_f1", pv=False)
    a.I(f"s_mov_b32 s{sIt}, 0")
    a.I("s_branch L_A_b2")
    a.L("L_A_loop")
    a.I(f"s_lshl_b32 s{sA}, s{sU}, 2")
    a.I(f"s_add_u32 s{sA}, s{sA}, s{sIt}")
    a.I(f"s_cmp_lg_u32 s{sA}, s{sTrig}")
    a.I("s_cbranch_scc1 L_A_notrig")
    a.I(f"s_lshl_b32 s{sA}, s{sG}, 2")
    a.I(f"s_add_u32 s{sA}, s{sA}, 128")
    a.I("v_mov_b32 v252, 0")
    a.I(f"buffer_load_dword v253, v252, s[40:43], s{sA} offen sc1")
    a.L("L_A_notrig")
    a.I(f"s_cmp_lg_u32 s{sIt}, 0")
    a.I("s_cbranch_scc1 L_A_reg0")
    a.I(f"s_cmp_eq_u32 s{sU}, 4")
    a.I("s_cbranch_scc1 L_A_last")
    step(0, "_b0", first=True, fin_l=True)
    step(1, "_b1", finalize=True)
    a.L("L_A_b2")
    step(2, "_b2", pv_c0=True)
    a.I("s_branch L_A_reg3")
    a.L("L_A_reg0")
    step(0, "_0")
    step(1, "_1")
    step(2, "_2")
    a.L("L_A_reg3")
    step(3, "_3")
    a.I(f"s_add_u32 s{sIt}, s{sIt}, 1")
    a.I(f"s_cmp_eq_u32 s{sIt}, 4")
    a.I("s_cbranch_scc0 L_A_loop")
    a.I(f"s_mov_b32 s{sIt}, 0")
    a.I(f"s_add_u32 s{sU}, s{sU}, 1")
    a.I("s_branch L_A_loop")
    a.L("L_A_last")
    step(0, "_l0", qk=False, fin_l=True)
    step(1, "_l1", qk=False, sm=False, vrd=False, finalize=True)
    a.I("s_branch L_tail_ld")
    for tag, Sn, Pw, sm in rare_blocks:
        a.L(f"L_A_rare{tag}")
        a.I("s_nop 15")
        for sb in range(2):
            b8 = Sn + 8*sb
            a.I(f"v_max3_f32 v{mx}, v{b8}, v{b8+1}, v{b8+2}")
            a.I(f"v_max3_f32 v{mx}, v{mx}, v{b8+3}, v{b8+4}")
            a.I(f"v_max3_f32 v{mx}, v{mx}, v{b8+5}, v{b8+6}")
            a.I(f"v_max_f32 v{mx}, v{mx}, v{b8+7}")
            xreduce(mx, "v_max_f32", t0)
            a.I(f"v_max_f32 v{mx}, 0, v{mx}")
            a.I(f"v_ceil_f32 v{mx}, v{mx}")
            a.I(f"v_min_f32 v{t0}, 0x43480000, v{mx}")
            a.I(f"v_cvt_i32_f32 v{t0}, v{t0}")
            a.I(f"v_sub_u32 v{t0}, 0, v{t0}")
            a.I(f"v_ldexp_f32 v{t1}, 1.0, v{t0}")
            a.I(f"v_mov_b32 v{t2}, v{t1}")
            for j in range(8):
                a.I(f"v_sub_f32 v{b8+j}, v{b8+j}, v{mx}")
            for j in range(4):
                a.I(f"v_sub_f32 v{NM+4*sb+j}, v{NM+4*sb+j}, v{mx}")
            for kap in range(4):
                ob = O + (kap*2 + sb)*8
                for j in range(4):
                    a.I(f"v_pk_mul_f32 {vr(ob+2*j,2)}, {vr(ob+2*j,2)}, {vr(t1,2)}")
            a.I(f"v_mul_f32 v{l0+2*sb}, v{l0+2*sb}, v{t1}")
            a.I(f"v_mul_f32 v{l0+2*sb+1}, v{l0+2*sb+1}, v{t1}")
            for j in range(4):
                pr = Pw + 4*sb + j
                a.I(f"v_lshlrev_b32 v{mx}, 16, v{pr}")
                a.I(f"v_and_b32 v{t0}, 0xffff0000, v{pr}")
                a.I(f"v_mul_f32 v{mx}, v{mx}, v{t1}")
                a.I(f"v_mul_f32 v{t0}, v{t0}, v{t1}")
                a.I(f"v_cvt_pk_bf16_f32 v{pr}, v{mx}, v{t0}")
        a.I("s_nop 1")
        a.I(f"s_branch L_A_ret{tag}")

class LdsQ:
    def __init__(self): self.ops = []
    def issue(self, key): self.ops.append(key)
    def need(self, keys):
        last = max(len(self.ops) - 1 - self.ops[::-1].index(k) for k in keys)
        return len(self.ops) - 1 - last

SLAB = [[122880, 131072], [40960, 49152], [24576, 32768], [57344, 90112]]
def gen_tail(a):
    SWO = 32; SPT = 36; SDB = 40; SOUT = 44; SGO = 64
    sSt = 48; sA = 49; sBq = 50; sIt = 52; sRow = 53; sG = 55; sJ = 63
    vL = 255
    def tail_stamp_reset():
        if cfg.stamps:
            a.I("s_and_b32 s96, s96, 0xfffffc00")
            a.I(f"s_add_u32 s96, s96, {1000 if cfg.stamps == 2 else 512}")
    def part_srd():
        a.I(f"s_add_u32 s{SPT}, s{P_WS}, {cfg.part_off}")
        a.I(f"s_addc_u32 s{SPT+1}, s{P_WS+1}, 0")
        a.I(f"s_and_b32 s{SPT+1}, s{SPT+1}, 0xffff")
        a.I(f"s_mov_b32 s{SPT+2}, {hex(PART_BYTES)}")
        a.I(f"s_mov_b32 s{SPT+3}, 0x20000")
    def lane_id():
        a.I(f"v_mbcnt_lo_u32_b32 v{vL}, -1, 0")
        a.I(f"v_mbcnt_hi_u32_b32 v{vL}, -1, v{vL}")
    def group_id():
        a.I(f"s_lshl_b32 s{sG}, s{S_P}, 4")
        a.I(f"s_add_u32 s{sG}, s{sG}, s{S_B}")
    VO = 236
    sTab = 56; sG0 = 57
    def ld_setup():
        srd(a, SWO, P_WO, 0x400000)
        lane_id()
        for jp in range(4):
            a.I(f"v_lshrrev_b32 v250, 5, v{vL}")
            a.I(f"v_bfe_u32 v251, v{vL}, 1, 3")
            a.I(f"v_add_u32 v252, {2*jp}, v250")
            a.I("v_xor_b32 v251, v251, v252")
            a.I("v_lshlrev_b32 v250, 10, v250")
            a.I(f"v_bfe_u32 v252, v{vL}, 4, 1")
            a.I("v_lshl_add_u32 v250, v252, 9, v250")
            a.I("v_lshrrev_b32 v252, 2, v251")
            a.I("v_lshl_add_u32 v250, v252, 8, v250")
            a.I("v_and_b32 v252, 3, v251")
            a.I("v_lshl_add_u32 v250, v252, 5, v250")
            a.I(f"v_and_b32 v252, 1, v{vL}")
            a.I(f"v_lshl_add_u32 v{VO+jp}, v252, 4, v250")
        a.I(f"s_lshl_b32 s{sRow}, s{S_HB}, 17")
    def ld_slab(j0, nj, j0_reg=None):
        a.I(f"s_and_b32 s{sA}, s{sJ}, 15")
        a.I(f"s_add_u32 s{sA}, s{sA}, s{S_B}")
        a.I(f"s_and_b32 s{sA}, s{sA}, 15")
        a.I(f"s_lshl_b32 s{sA}, s{sA}, 15")
        if cfg.wo_fake: a.I(f"s_mov_b32 s{sA}, 0")
        a.I(f"s_lshr_b32 s{sBq}, s{sJ}, 4")
        a.I(f"s_xor_b32 s{sBq}, s{sBq}, s{S_B}")
        a.I(f"s_and_b32 s{sBq}, s{sBq}, 1")
        a.I(f"s_lshl_b32 s{sBq}, s{sBq}, 7")
        a.I(f"s_add_u32 s{sA}, s{sA}, s{sBq}")
        a.I(f"s_add_u32 s{sA}, s{sA}, s{sRow}")
        blk = [SLAB[sl][hf] // 8192 for sl in range(4) for hf in range(2)]
        lo = sum(blk[2*sl] << (8*sl) for sl in range(4)); hi = sum(blk[2*sl+1] << (8*sl) for sl in range(4))
        a.I(f"s_and_b32 s{sBq}, s{sJ}, 3")
        a.I(f"s_lshl_b32 s{sBq}, s{sBq}, 3")
        if j0_reg is None:
            for hf, tab in ((0, lo), (1, hi)):
                a.I(f"s_lshr_b32 s{sIt}, {hex(tab)}, s{sBq}")
                a.I(f"s_and_b32 s{sIt}, s{sIt}, 0xff")
                a.I(f"s_lshl_b32 s{sIt}, s{sIt}, 13")
                for j in range(8):
                    a.I(f"s_add_u32 m0, s{sIt}, {j*1024}")
                    if hf or j: a.I(f"s_add_u32 s{sA}, s{sA}, 2048")
                    else: a.I("s_nop 0")
                    a.I(f"buffer_load_dwordx4 v{VO + (j & 3)}, s[{SWO}:{SWO+3}], s{sA} offen{cfg.wo_pol} lds")
        else:
            a.I(f"s_lshr_b32 s{sIt}, s{sTab}, s{sBq}")
            a.I(f"s_and_b32 s{sIt}, s{sIt}, 0xff")
            a.I(f"s_lshl_b32 s{sIt}, s{sIt}, 13")
            a.I(f"s_add_u32 s{sIt}, s{sIt}, s{j0_reg}")
            a.I(f"s_add_u32 s{sA}, s{sA}, s{sG0}")
            for j in range(4):
                a.I(f"s_add_u32 m0, s{sIt}, {j*1024}")
                if j: a.I(f"s_add_u32 s{sA}, s{sA}, 2048")
                else: a.I("s_nop 0")
                a.I(f"buffer_load_dwordx4 v{VO + (j & 3)}, s[{SWO}:{SWO+3}], s{sA} offen{cfg.wo_pol} lds")
        a.I(f"s_add_u32 s{sJ}, s{sJ}, 1")

    a.L("L_tail_pre")
    ld_setup()
    a.I(f"s_mov_b32 s{sJ}, 0")
    for n in (79, 80, 81):
        stamp(a, 246)
        a.I("s_barrier")
        stamp(a, 246)
        ld_slab(0, 16)
        stamp(a, 246)
    a.I("s_waitcnt vmcnt(16)")
    a.I("s_branch L_tail_ld2")
    a.L("L_tail_ld")
    a.I("s_setprio 0")
    ld_setup()
    a.I(f"s_mov_b32 s{sJ}, 3")
    a.L("L_tail_ld2")
    part_srd()
    group_id()
    a.I("s_load_dwordx2 s[60:61], s[0:1], 88")
    a.I("s_waitcnt lgkmcnt(0)")
    srd(a, SDB, 60, 256)
    a.I(f"s_cmp_lg_u32 s{S_WAVE}, 0")
    a.I("s_cbranch_scc1 L_T_rdy")
    a.I("s_waitcnt vmcnt(0)")
    a.I("v_readfirstlane_b32 s62, v253")
    a.I("s_cmp_ge_u32 s62, 8")
    a.I("s_cbranch_scc1 L_T_rdy")
    a.I(f"s_lshl_b32 s{sA}, s{sG}, 2")
    a.I(f"s_add_u32 s{sA}, s{sA}, 128")
    a.I(f"s_mov_b32 s{sIt}, 0")
    a.I("v_mov_b32 v252, 0")
    a.L("L_T_rdypoll")
    a.I(f"buffer_load_dword v253, v252, s[{SDB}:{SDB+3}], s{sA} offen sc1")
    a.I("s_waitcnt vmcnt(0)")
    a.I("v_readfirstlane_b32 s62, v253")
    a.I(f"s_add_u32 s{sIt}, s{sIt}, 1")
    a.I("s_cmp_ge_u32 s62, 8")
    a.I("s_cbranch_scc1 L_T_rdy")
    a.I(f"s_cmp_lt_u32 s{sIt}, 0x4000")
    a.I("s_cbranch_scc0 L_T_rdy")
    a.I("s_sleep 8")
    a.I("s_branch L_T_rdypoll")
    a.L("L_T_rdy")
    sJ0 = 51
    blk = [SLAB[sl][hf] // 8192 for sl in range(4) for hf in range(2)]
    lo = sum(blk[2*sl] << (8*sl) for sl in range(4)); hi = sum(blk[2*sl+1] << (8*sl) for sl in range(4))
    a.I(f"s_mov_b32 s{sTab}, {hex(lo)}")
    a.I(f"s_cmp_ge_u32 s{S_WAVE}, 2")
    a.I(f"s_cselect_b32 s{sTab}, {hex(hi)}, s{sTab}")
    a.I(f"s_and_b32 s{sJ0}, s{S_WAVE}, 1")
    a.I(f"s_lshl_b32 s{sJ0}, s{sJ0}, 12")
    a.I(f"s_lshl_b32 s{sG0}, s{S_WAVE}, 13")
    a.I("s_barrier")
    tail_stamp_reset()
    stamp(a, 246); stamp(a, 246, 1); dbg_stamp(a, 246)
    a.I(f"s_mov_b32 s{sSt}, 29")
    a.L("L_TL_loop")
    ld_slab(0, 4, sJ0)
    a.I("s_waitcnt vmcnt(4)")
    a.I("s_barrier")
    a.I(f"s_sub_u32 s{sSt}, s{sSt}, 1")
    a.I(f"s_cmp_lg_u32 s{sSt}, 0")
    a.I("s_cbranch_scc1 L_TL_loop")
    a.I("s_waitcnt vmcnt(0)")
    a.I("s_barrier")
    a.I("s_barrier")
    stamp(a, 246); stamp(a, 246, 1); dbg_stamp(a, 246)
    go_srd(a, SGO)
    a.I(f"s_mov_b32 s{sJ}, s{S_WAVE}")
    a.I("s_branch L_T_reduce")

    a.L("L_tail_mm")
    ACC = [0, 96]; AF = 192; BF = 208; vAA = 232; vB = 240; vL16 = 242; PK = 244
    sWp = 51
    a.I("s_setprio 0")
    part_srd()
    group_id()
    go_srd(a, SGO)
    lane_id()
    a.I(f"s_sub_u32 s{sWp}, s{S_WAVE}, 4")
    T0 = 244
    a.I(f"v_and_b32 v{T0}, 15, v{vL}")
    a.I(f"v_lshrrev_b32 v{T0+1}, 4, v{vL}")
    a.I(f"v_lshrrev_b32 v{T0+2}, 2, v{T0}")
    a.I(f"v_lshl_add_u32 v{T0+3}, v{T0+1}, 2, v{T0+2}")
    a.I(f"v_lshlrev_b32 v{T0+4}, 9, v{T0+3}")
    a.I(f"v_and_b32 v{T0+5}, 3, v{T0}")
    a.I(f"v_lshl_add_u32 v{T0+4}, v{T0+5}, 3, v{T0+4}")
    a.I(f"s_lshr_b32 s{sA}, s{sWp}, 1")
    a.I(f"s_lshl_b32 s{sA}, s{sA}, 8")
    a.I(f"v_add_u32 v{T0+4}, s{sA}, v{T0+4}")
    a.I(f"v_and_b32 v{T0+3}, 7, v{T0+3}")
    a.I(f"s_and_b32 s{sA}, s{sWp}, 1")
    a.I(f"s_lshl_b32 s{sA}, s{sA}, 2")
    for t in range(4):
        a.I(f"s_add_u32 s{sBq}, s{sA}, {t}")
        a.I(f"v_xor_b32 v{T0+5}, s{sBq}, v{T0+3}")
        a.I(f"v_lshl_add_u32 v{vAA+t}, v{T0+5}, 5, v{T0+4}")
    a.I(f"v_lshlrev_b32 v{vL16}, 4, v{vL}")
    for j in range(192): a.I(f"v_mov_b32 v{j}, 0")
    TB = 68
    for i in range(16):
        a.I(f"s_add_u32 s{sA}, s{S_B}, {i}")
        a.I(f"s_and_b32 s{sA}, s{sA}, 15")
        a.I(f"s_lshr_b32 s{sBq}, s{sA}, 2")
        a.I(f"s_lshl_b32 s{sBq}, s{sBq}, 3")
        a.I(f"s_lshr_b32 s{sBq}, 0x80C11, s{sBq}")
        a.I(f"s_and_b32 s{sBq}, s{sBq}, 0xff")
        a.I(f"s_lshl_b32 s{sBq}, s{sBq}, 13")
        a.I(f"s_and_b32 s{sA}, s{sA}, 3")
        a.I(f"s_lshl_b32 s{sA}, s{sA}, 11")
        a.I(f"s_add_u32 s{TB+i}, s{sBq}, s{sA}")
    vAH = 236
    HI = 90112
    for t in range(4): a.I(f"v_add_u32 v{vAH+t}, {HI}, v{vAA+t}")
    q = LdsQ()
    done = [-1]
    def rdA(slot, t):
        for sec in range(2):
            base = SLAB[slot][sec]
            if base >= 65536: a.I(f"ds_read_b64_tr_b16 {vr(AF + t*4 + sec*2, 2)}, v{vAH+t} offset:{base - HI}")
            else: a.I(f"ds_read_b64_tr_b16 {vr(AF + t*4 + sec*2, 2)}, v{vAA+t} offset:{base}")
            q.issue(("A", t, sec))
    def rdB(par, sub):
        a.I(f"ds_read_b128 {vr(BF + sub*4, 4)}, v{vB+par} offset:{(sub >> 1)*8192 + (sub & 1)*1024}")
        q.issue(("B", sub))
    def acc(P, t, sub):
        return ACC[P] + ((sub*2 + (t >> 1))*2 + (t & 1))*4
    a.I(f"v_add_u32 v{vB}, s{TB}, v{vL16}")
    a.I(f"v_add_u32 v{vB+1}, s{TB+1}, v{vL16}")
    a.I("s_barrier")
    tail_stamp_reset()
    stamp(a, 246); stamp(a, 246, 1); dbg_stamp(a, 246)
    def order():
        return [(hf, t, j) for hf in range(2) for t in range(4) for j in range(3)]
    for (hf, t, j) in order():
        if t == 3: rdB(0, 3*hf + j)
        if hf == 1 and j == 2: rdA(0, t)
    def store_tile(P, ch, first_of_stage):
        base = ACC[P] + ch*16
        ops = [f"v_cvt_pk_bf16_f32 v{PK+j}, v{base+2*j}, v{base+2*j+1}" for j in range(8)]
        ops.append(f"s_add_u32 s{sBq}, s{sJ}, {ch*2048}")
        ops.append(f"buffer_store_dwordx4 {vr(PK,4)}, v{vL16}, s[{SPT}:{SPT+3}], s{sBq} offen{cfg.part_st_pol}")
        ops.append(f"buffer_store_dwordx4 {vr(PK+4,4)}, v{vL16}, s[{SPT}:{SPT+3}], s{sBq} offen offset:1024{cfg.part_st_pol}")
        ops.append("s_nop 1")
        return ops
    def part_base(P):
        a.I(f"s_lshl_b32 s{sJ}, s{sG}, 2")
        a.I(f"s_add_u32 s{sJ}, s{sJ}, s{sWp}")
        a.I(f"s_lshl_b32 s{sJ}, s{sJ}, 1")
        a.I(f"s_and_b32 s{sA}, s{S_B}, 1")
        a.I(f"s_xor_b32 s{sA}, s{sA}, {P}")
        a.I(f"s_add_u32 s{sJ}, s{sJ}, s{sA}")
        a.I(f"s_lshl_b32 s{sJ}, s{sJ}, 3")
        a.I(f"s_add_u32 s{sJ}, s{sJ}, s{S_MJ}")
        a.I(f"s_mul_i32 s{sJ}, s{sJ}, 12288")
    def raise_flag(P):
        a.I("s_waitcnt vmcnt(0)")
        a.I(f"s_lshl_b32 s{sA}, s{sG}, 2")
        a.I(f"s_add_u32 s{sA}, s{sA}, s{sWp}")
        a.I(f"s_lshl_b32 s{sA}, s{sA}, 1")
        a.I(f"s_and_b32 s{sBq}, s{S_B}, 1")
        a.I(f"s_xor_b32 s{sBq}, s{sBq}, {P}")
        a.I(f"s_add_u32 s{sA}, s{sA}, s{sBq}")
        a.I(f"s_lshl_b32 s{sA}, s{sA}, 7")
        a.I(f"s_lshl_b32 s{sBq}, s{S_MJ}, 2")
        a.I(f"s_add_u32 s{sA}, s{sA}, s{sBq}")
        a.I(f"v_mov_b32 v{PK}, 1")
        a.I(f"v_mov_b32 v{PK+1}, 0")
        a.I("s_mov_b64 s[60:61], exec")
        a.I("s_mov_b64 exec, 1")
        a.I(f"buffer_store_dword v{PK}, v{PK+1}, s[{SGO}:{SGO+3}], s{sA} offen sc1")
        a.I("s_mov_b64 exec, s[60:61]")
    def stage(sg, P, nxt=True, bar=True, extra=None, late=None):
        ns = (sg + 1) & 3; npar = (sg + 1) & 1
        extra = list(extra or []); late = list(late or [])
        nm = 0
        for (hf, t, j) in order():
            sub = 3*hf + j
            c = q.need([("B", sub), ("A", t, 0), ("A", t, 1)])
            pos = len(q.ops) - 1 - c
            if pos > done[0]:
                a.I(f"s_waitcnt lgkmcnt({min(15, c)})")
                done[0] = len(q.ops) - 1 - min(15, c)
            mfma(a, acc(P, t, sub), AF + t*4, BF + sub*4)
            nm += 1
            if nxt and t == 3: rdB(npar, sub)
            if nxt and hf == 1 and j == 2: rdA(ns, t)
            if nm == 1 and sg + 2 < 32:
                a.I(f"v_add_u32 v{vB + (sg & 1)}, s{TB + ((sg + 2) & 15)}, v{vL16}")
            if extra and nm >= 3: a.I(extra.pop(0))
            if nm in (20, 22) and late: a.I(late.pop(0))
        for o in extra + late: a.I(o)
        if bar: a.I("s_barrier")
    for sg in range(16): stage(sg, 0)
    if cfg.tailst: stamp(a, 246, 1)
    part_base(0)
    for st in range(16):
        extra = []; late = []
        if st < 6:
            ops = store_tile(0, st, False)
            extra = ops[:9]
            late = ops[9:11]
        stage(16 + st, 1, nxt=(st < 15), bar=(st < 15), extra=extra, late=late)
        if st == 7 and cfg.tailst: stamp(a, 246, 1)
        if st == 11: raise_flag(0)
        if st == 11 and cfg.tailst: stamp(a, 246, 1)
    mk = a.mark()
    part_base(1)
    stamp(a, 246); stamp(a, 246, 1); dbg_stamp(a, 246)
    a.pad_since(mk, 8)
    PKs = [244, 192, 200, 208]
    for t in range(6):
        PK = PKs[t % 4]
        for o in store_tile(1, t, False): a.I(o)
    PK = 244
    raise_flag(1)
    stamp(a, 246, 1); dbg_stamp(a, 246)
    a.I(f"s_cmp_ge_u32 s{S_WAVE}, 6")
    a.I("s_cbranch_scc1 L_k1_end")
    a.I(f"s_mov_b32 s{sJ}, s{S_WAVE}")
    a.L("L_T_reduce")
    vB = 242
    a.I(f"v_lshlrev_b32 v{vB}, 4, v{vL}")
    a.I("s_load_dwordx2 s[58:59], s[0:1], 80")
    a.I(f"s_lshl_b32 s{sA}, s{sG}, 3")
    a.I(f"s_add_u32 s{sA}, s{sA}, s{S_MJ}")
    a.I(f"s_lshl_b32 s{sA}, s{sA}, 7")
    a.I(f"v_lshlrev_b32 v2, 2, v{vL}")
    a.I("s_mov_b64 s[60:61], exec")
    a.I("s_mov_b64 exec, 0xff")
    a.I(f"s_mov_b32 s{sIt}, 0")
    a.L("L_T_poll")
    a.I(f"buffer_load_dword v3, v2, s[{SGO}:{SGO+3}], s{sA} offen sc1")
    a.I("s_waitcnt vmcnt(0)")
    a.I("v_cmp_ne_u32 vcc, 1, v3")
    a.I(f"s_add_u32 s{sIt}, s{sIt}, 1")
    a.I("s_cbranch_vccz L_T_polled")
    a.I(f"s_cmp_lt_u32 s{sIt}, 0x8000")
    a.I("s_cbranch_scc0 L_T_polled")
    a.I("s_sleep 1")
    a.I("s_branch L_T_poll")
    a.L("L_T_polled")
    a.I("s_mov_b64 exec, s[60:61]")
    stamp(a, 246); stamp(a, 246, 1); dbg_stamp(a, 246)
    a.I("s_waitcnt lgkmcnt(0)")
    srd(a, SOUT, 58, 16*96*1024*2)
    a.I(f"s_lshl_b32 s{sA}, s{sG}, 3")
    a.I(f"s_add_u32 s{sA}, s{sA}, s{S_MJ}")
    a.I(f"s_mul_i32 s{sA}, s{sA}, 98304")
    a.I(f"s_lshl_b32 s{sBq}, s{sJ}, 11")
    a.I(f"s_add_u32 s{sA}, s{sA}, s{sBq}")
    for src in range(8):
        a.I(f"s_add_u32 s{sBq}, s{sA}, {src*12288}")
        a.I(f"buffer_load_dwordx4 {vr(8+src*8,4)}, v{vB}, s[{SPT}:{SPT+3}], s{sBq} offen{cfg.part_ld_pol}")
        a.I(f"buffer_load_dwordx4 {vr(8+src*8+4,4)}, v{vB}, s[{SPT}:{SPT+3}], s{sBq} offen offset:1024{cfg.part_ld_pol}")
    a.I(f"s_lshl_b32 s{sBq}, s{sJ}, 4")
    a.I(f"s_mul_i32 s{sA}, s{S_B}, 96")
    a.I(f"s_add_u32 s{sA}, s{sA}, s{sBq}")
    a.I(f"s_lshl_b32 s{sA}, s{sA}, 11")
    a.I(f"s_lshl_b32 s{sBq}, s{S_P}, 10")
    a.I(f"s_add_u32 s{sA}, s{sA}, s{sBq}")
    a.I(f"s_lshl_b32 s{sBq}, s{S_MJ}, 7")
    a.I(f"s_add_u32 s{sA}, s{sA}, s{sBq}")
    a.I(f"v_and_b32 v2, 15, v{vL}")
    a.I("v_lshlrev_b32 v2, 11, v2")
    a.I(f"v_lshrrev_b32 v3, 4, v{vL}")
    a.I("v_lshl_add_u32 v2, v3, 3, v2")
    RA = 80
    for src in range(8):
        a.I(f"s_waitcnt vmcnt({14 - 2*src})")
        for d in range(8):
            r = 8 + src*8 + d
            if src == 0:
                a.I(f"v_lshlrev_b32 v{RA+2*d}, 16, v{r}")
                a.I(f"v_and_b32 v{RA+2*d+1}, 0xffff0000, v{r}")
            else:
                a.I(f"v_lshlrev_b32 v4, 16, v{r}")
                a.I(f"v_and_b32 v5, 0xffff0000, v{r}")
                a.I(f"v_add_f32 v{RA+2*d}, v{RA+2*d}, v4")
                a.I(f"v_add_f32 v{RA+2*d+1}, v{RA+2*d+1}, v5")
    for d in range(8):
        a.I(f"v_cvt_pk_bf16_f32 v{8+d}, v{RA+2*d}, v{RA+2*d+1}")
    for e4 in range(4):
        a.I(f"buffer_store_dwordx2 v[{8+2*e4}:{9+2*e4}], v2, s[{SOUT}:{SOUT+3}], s{sA} offen offset:{e4*32}")
    a.I("s_waitcnt vmcnt(0)")
    stamp(a, 246); stamp(a, 246, 1); dbg_stamp(a, 246)
    a.I("s_waitcnt vmcnt(0)")
    a.L("L_k1_end")
    a.I("s_endpgm")

def gen_k2(a):
    a.I("s_cmp_ge_u32 s2, 256")
    a.I("s_cbranch_scc1 L_k2_end")
    a.I("s_load_dwordx2 s[4:5], s[0:1], 80")
    a.I("s_load_dwordx2 s[6:7], s[0:1], 96")
    if cfg.dbgst: a.I("s_memrealtime s[34:35]")
    a.I("v_lshrrev_b32 v1, 6, v0")
    a.I("v_and_b32 v0, 63, v0")
    a.I("v_readfirstlane_b32 s20, v1")
    a.I("s_waitcnt lgkmcnt(0)")
    srd(a, 8, 6, PART_BYTES)
    srd(a, 12, 4, 16*96*1024*2)
    a.I("s_mul_i32 s21, s2, 98304")
    a.I("s_lshl_b32 s22, s20, 11")
    a.I("s_add_u32 s21, s21, s22")
    a.I("v_lshlrev_b32 v1, 4, v0")
    for src in range(8):
        a.I(f"s_add_u32 s23, s21, {src*12288}")
        a.I(f"buffer_load_dwordx4 {vr(8+src*8,4)}, v1, s[8:11], s23 offen{cfg.part_ld_pol}")
        a.I(f"buffer_load_dwordx4 {vr(8+src*8+4,4)}, v1, s[8:11], s23 offen offset:1024{cfg.part_ld_pol}")
    a.I("s_lshr_b32 s24, s2, 3")
    a.I("s_and_b32 s25, s2, 7")
    a.I("s_and_b32 s26, s24, 15")
    a.I("s_lshr_b32 s27, s24, 4")
    a.I("s_lshr_b32 s28, s20, 1")
    a.I("s_and_b32 s29, s20, 1")
    a.I("s_mul_i32 s26, s26, 96")
    a.I("s_lshl_b32 s28, s28, 5")
    a.I("s_add_u32 s26, s26, s28")
    a.I("s_lshl_b32 s26, s26, 11")
    a.I("s_lshl_b32 s27, s27, 10")
    a.I("s_lshl_b32 s25, s25, 7")
    a.I("s_lshl_b32 s29, s29, 6")
    a.I("s_add_u32 s26, s26, s27")
    a.I("s_add_u32 s26, s26, s25")
    a.I("s_add_u32 s26, s26, s29")
    a.I("v_and_b32 v2, 31, v0")
    a.I("v_lshlrev_b32 v2, 11, v2")
    a.I("v_lshrrev_b32 v3, 5, v0")
    a.I("v_lshl_add_u32 v2, v3, 5, v2")
    ACC = 80
    for src in range(8):
        a.I(f"s_waitcnt vmcnt({14 - 2*src})")
        for d in range(8):
            r = 8 + src*8 + d
            if src == 0:
                a.I(f"v_lshlrev_b32 v{ACC+2*d}, 16, v{r}")
                a.I(f"v_and_b32 v{ACC+2*d+1}, 0xffff0000, v{r}")
            else:
                a.I(f"v_lshlrev_b32 v4, 16, v{r}")
                a.I(f"v_and_b32 v5, 0xffff0000, v{r}")
                a.I(f"v_add_f32 v{ACC+2*d}, v{ACC+2*d}, v4")
                a.I(f"v_add_f32 v{ACC+2*d+1}, v{ACC+2*d+1}, v5")
    for d in range(8):
        a.I(f"v_cvt_pk_bf16_f32 v{8+d}, v{ACC+2*d}, v{ACC+2*d+1}")
    a.I("buffer_store_dwordx4 v[8:11], v2, s[12:15], s26 offen")
    a.I("buffer_store_dwordx4 v[12:15], v2, s[12:15], s26 offen offset:16")
    a.I("s_waitcnt vmcnt(0)")
    if cfg.dbgst:
        a.I("s_cmp_lg_u32 s2, 0")
        a.I("s_cbranch_scc1 L_k2_end")
        a.I("s_cmp_lg_u32 s20, 0")
        a.I("s_cbranch_scc1 L_k2_end")
        a.I("s_memrealtime s[36:37]")
        a.I("s_load_dwordx2 s[30:31], s[0:1], 88")
        a.I("s_waitcnt lgkmcnt(0)")
        a.I(f"s_add_u32 s8, s6, {40<<20}")
        a.I("s_addc_u32 s9, s7, 0")
        a.I("s_and_b32 s9, s9, 0xffff")
        a.I("s_mov_b32 s10, 256")
        a.I("s_mov_b32 s11, 0x20000")
        a.I("s_mov_b32 s12, s30")
        a.I("s_and_b32 s13, s31, 0xffff")
        a.I("s_mov_b32 s14, 64")
        a.I("s_mov_b32 s15, 0x20000")
        a.I("v_lshlrev_b32 v1, 2, v0")
        a.I("buffer_load_dword v2, v1, s[8:11], 0 offen sc1")
        a.I("s_waitcnt vmcnt(0)")
        a.I("v_mov_b32 v3, s34")
        a.I("v_cmp_eq_u32 vcc, 14, v0")
        a.I("s_nop 1")
        a.I("v_cndmask_b32 v2, v2, v3, vcc")
        a.I("v_mov_b32 v3, s36")
        a.I("v_cmp_eq_u32 vcc, 15, v0")
        a.I("s_nop 1")
        a.I("v_cndmask_b32 v2, v2, v3, vcc")
        a.I("buffer_store_dword v2, v1, s[12:15], 0 offen")
        a.I("s_waitcnt vmcnt(0)")
    a.L("L_k2_end")
    a.I("s_endpgm")

def kd(a, name, vgpr, sgpr):
    a.raw('.section .rodata,"a"')
    a.raw(".p2align 6")
    a.raw(f".amdhsa_kernel {name}")
    a.raw(f"  .amdhsa_next_free_vgpr {vgpr}")
    a.raw(f"  .amdhsa_next_free_sgpr {sgpr}")
    a.raw(f"  .amdhsa_accum_offset {(vgpr+3)//4*4}")
    a.raw("  .amdhsa_group_segment_fixed_size 0")
    a.raw("  .amdhsa_kernarg_size 104")
    a.raw("  .amdhsa_user_sgpr_count 2")
    a.raw("  .amdhsa_user_sgpr_kernarg_segment_ptr 1")
    a.raw("  .amdhsa_system_sgpr_workgroup_id_x 1")
    a.raw(".end_amdhsa_kernel")

def build():
    a = Asm()
    global K1
    if cfg.fused:
        K1 = NAME + "_kernel"
        a.raw(f"; @launch grid=(256,1,1) block=(512,1,1) lds={LDS_BYTES}")
    else:
        a.raw(f"; @launch kernel={K1} grid=(256,1,1) block=(512,1,1) lds={LDS_BYTES}")
        a.raw(f"; @launch kernel={K2} grid=(256,1,1) block=(384,1,1) lds=0")
    a.raw('.amdgcn_target "amdgcn-amd-amdhsa--gfx950"')
    a.raw(".text")
    a.raw(f".globl {K1}")
    a.raw(".p2align 8")
    a.raw(f".type {K1},@function")
    a.L(K1)
    setup_common(a)
    gen_loader(a, True)
    gen_loader(a, False)
    gen_G(a)
    gen_A(a)
    gen_tail(a)
    if not cfg.fused:
        a.raw(f".globl {K2}")
        a.raw(".p2align 8")
        a.raw(f".type {K2},@function")
        a.L(K2)
        gen_k2(a)
    kd(a, K1, 256, 102 if (cfg.stamps or cfg.dbgst) else 84)
    if not cfg.fused:
        a.raw(".text")
        kd(a, K2, 96, 40)
    return a

if __name__ == "__main__":
    for arg in sys.argv[2:]:
        k, v = arg.split("=", 1)
        cur = getattr(cfg, k)
        if isinstance(cur, bool): v = v in ("1", "True", "true")
        elif isinstance(cur, int): v = int(v)
        elif isinstance(cur, float): v = float(v)
        else: v = v.replace("_", " ")
        setattr(cfg, k, v)
    a = build()
    out = sys.argv[1] if len(sys.argv) > 1 else f"cdna_kernels/{NAME}.s"
    open(out, "w").write(a.text())
    probs = check_file(a.lines)
    for p in probs: print("HAZARD", p)
    print("wrote", out, len(a.lines), "lines;", len(probs), "hazard reports")
```

```python
import struct, math, sys
from asmlib import Asm, vr, sr, check_file

NAME = "concat_heads__mha_block_cached__gqa_block_cached__near_ridge"
K1 = "attn_kernel"
K2 = "reduce_kernel"

def f2u(x): return struct.unpack("<I", struct.pack("<f", x))[0]
CSCALE = math.log2(math.e) / math.sqrt(128.0)

KR = 0; VR = 32768; WR = 65536; QH = 98304; XS = 98304
OS = [122880, 98304, 65536, 0]
STAGE = [24576, 32768, 40960, 49152, 57344, 90112, 147456, 155648]
LDS_BYTES = 163840
PART_BYTES = 32 * 64 * 12288

class Cfg:
    kv_pol = " nt"
    wq_pol = " nt"
    x_pol = ""
    wo_pol = ""
    part_st_pol = " sc1"
    part_ld_pol = " sc1"
    thresh = 8.0
    debug_dump = False
    prio_a = 0
    stamps = 0
    nokv = False
    nog = False
    k0early = 9
    xsched = 1
    wfirst = True
    ldprio = 0
    tailst = False
    ghalf = 0
    t_nowait = False
    t_contig = False
    t_nodma = False
    t_nord = False
    t_early = False
    wo_fake = False
    dbgwave = 0
    dbgwg = 0
    part_off = 0
    fused = True
    noa = False
    nogr = False
    nowq = False
    dbgst = False

cfg = Cfg()

S_WAVE = 20; S_XCD = 21; S_SLOT = 22; S_P = 23; S_B = 24; S_HQ = 25; S_HB = 26; S_RHO = 27; S_MJ = 28
P_X = 8; P_K = 10; P_V = 12; P_WQ = 14; P_WO = 16; P_WS = 18

def srd(a, dst, ptr, size):
    a.I(f"s_mov_b32 s{dst}, s{ptr}")
    a.I(f"s_and_b32 s{dst+1}, s{ptr+1}, 0xffff")
    a.I(f"s_mov_b32 s{dst+2}, {hex(size)}")
    a.I(f"s_mov_b32 s{dst+3}, 0x20000")

def setup_common(a):
    a.I("s_cmp_ge_u32 s2, 256")
    a.I("s_cbranch_scc1 L_k1_end")
    a.I(f"s_and_b32 s{S_XCD}, s2, 7")
    a.I(f"s_lshr_b32 s{S_SLOT}, s2, 3")
    a.I(f"s_lshr_b32 s{S_P}, s{S_XCD}, 2")
    a.I(f"s_mul_i32 s3, s{S_P}, 40")
    a.I("s_add_u32 s4, s0, s3")
    a.I("s_addc_u32 s5, s1, 0")
    a.I("s_load_dwordx8 s[8:15], s[4:5], 0")
    a.I(f"s_load_dwordx2 s[{P_WO}:{P_WO+1}], s[4:5], 32")
    a.I(f"s_load_dwordx2 s[{P_WS}:{P_WS+1}], s[0:1], 96")
    a.I("v_lshrrev_b32 v1, 6, v0")
    a.I("v_and_b32 v0, 63, v0")
    a.I(f"v_readfirstlane_b32 s{S_WAVE}, v1")
    a.I(f"s_lshr_b32 s{S_B}, s{S_SLOT}, 1")
    a.I(f"s_and_b32 s{S_HQ}, s{S_SLOT}, 1")
    a.I(f"s_and_b32 s3, s{S_XCD}, 3")
    a.I("s_lshl_b32 s3, s3, 1")
    a.I(f"s_add_u32 s{S_MJ}, s3, s{S_HQ}")
    a.I(f"s_lshl_b32 s{S_HB}, s{S_MJ}, 2")
    a.I(f"s_and_b32 s{S_RHO}, s{S_B}, 3")
    a.I(f"s_lshl_b32 s{S_RHO}, s{S_RHO}, 2")
    a.I("s_waitcnt lgkmcnt(0)")
    dbg_setup(a)
    a.I(f"s_cmp_lt_u32 s{S_WAVE}, 3")
    a.I("s_cbranch_scc1 L_roleA")
    a.I(f"s_cmp_eq_u32 s{S_WAVE}, 3")
    a.I("s_cbranch_scc1 L_roleLK")
    a.I(f"s_cmp_eq_u32 s{S_WAVE}, 7")
    a.I("s_cbranch_scc1 L_roleLV")
    a.I("s_branch L_roleG")

def gen_loader(a, isK):
    tag = "LK" if isK else "LV"
    D = 13 if isK else 14
    a.L(f"L_role{tag}")
    if cfg.ldprio: a.I(f"s_setprio {cfg.ldprio}")
    SKV = 32; SW = 36
    srd(a, SKV, P_K if isK else P_V, 0x4000000)
    srd(a, SW, P_WQ, 0x400000)
    sKB = 48; sT = 49; sTau = 50; sN = 51; sA = 52; sBq = 53; sWrow = 54
    a.I(f"s_lshl_b32 s{sKB}, s{S_B}, 5")
    a.I(f"s_add_u32 s{sKB}, s{sKB}, s{S_HB}")
    a.I(f"s_lshl_b32 s{sKB}, s{sKB}, 17")
    a.I("v_and_b32 v1, 15, v0")
    a.I("v_lshrrev_b32 v2, 4, v0")
    if isK:
        for j in range(4):
            a.I(f"v_add_u32 v3, {4*j}, v2")
            a.I("v_xor_b32 v3, v1, v3")
            a.I("v_lshlrev_b32 v3, 4, v3")
            a.I(f"v_lshl_add_u32 v{4+j}, v2, 8, v3")
    else:
        for j in range(4):
            a.I(f"v_add_u32 v3, {4*(j & 1)}, v2")
            a.I("v_lshlrev_b32 v3, 1, v3")
            a.I("v_xor_b32 v3, v1, v3")
            a.I("v_lshlrev_b32 v3, 4, v3")
            a.I(f"v_lshl_add_u32 v{4+j}, v2, 8, v3")
    a.I("v_lshlrev_b32 v3, 2, v2")
    a.I("v_xor_b32 v3, v1, v3")
    a.I("v_lshlrev_b32 v3, 4, v3")
    a.I("v_lshlrev_b32 v9, 13, v2")
    a.I("v_add_u32 v8, v9, v3")
    i0 = 0 if isK else 4
    LB = KR if isK else VR

    def issue_w():
        a.I(f"s_add_u32 s{sA}, s{S_RHO}, s{sTau}")
        a.I(f"s_and_b32 s{sA}, s{sA}, 15")
        a.I(f"s_lshl_b32 s{sA}, s{sA}, 18")
        a.I(f"s_lshr_b32 s{sBq}, s{sTau}, 4")
        a.I(f"s_add_u32 s{sBq}, s{sBq}, s{S_HB}")
        a.I(f"s_lshl_b32 s{sBq}, s{sBq}, 8")
        a.I(f"s_add_u32 s{sA}, s{sA}, s{sBq}")
        a.I(f"s_add_u32 s{sA}, s{sA}, {i0*4*8192}")
        a.I(f"s_and_b32 s{sBq}, s{sTau}, 3")
        a.I(f"s_lshl_b32 s{sBq}, s{sBq}, 13")
        a.I(f"s_add_u32 s{sBq}, s{sBq}, {WR + i0*1024}")
        for i in range(4):
            a.I(f"s_add_u32 m0, s{sBq}, {i*1024}")
            if i: a.I(f"s_add_u32 s{sA}, s{sA}, 32768")
            else: a.I("s_nop 0")
            a.I(f"buffer_load_dwordx4 v8, s[{SW}:{SW+3}], s{sA} offen{cfg.wq_pol} lds")
        a.I(f"s_add_u32 s{sTau}, s{sTau}, 1")

    def issue_kv():
        a.I(f"s_lshl_b32 s{sA}, s{sT}, 13")
        a.I(f"s_add_u32 s{sA}, s{sA}, s{sKB}")
        a.I(f"s_and_b32 s{sBq}, s{sT}, 3")
        a.I(f"s_lshl_b32 s{sBq}, s{sBq}, 13")
        for half in range(2):
            if cfg.nokv: break
            a.I(f"s_add_u32 m0, s{sBq}, {LB + half*4096}")
            if half: a.I(f"s_add_u32 s{sA}, s{sA}, 4096")
            else: a.I("s_nop 0")
            for j in range(4):
                off = f" offset:{j*1024}" if j else ""
                a.I(f"buffer_load_dwordx4 v{4+j}, s[{SKV}:{SKV+3}], s{sA} offen{off}{cfg.kv_pol} lds")
        a.I(f"s_add_u32 s{sT}, s{sT}, 1")

    stamp_setup(a)
    a.I(f"s_mov_b32 s{sT}, 0")
    a.I(f"s_mov_b32 s{sTau}, 0")
    pstamp(a, 20)
    for _ in range(4): issue_w()
    pstamp(a, 20)
    a.I(f"s_waitcnt vmcnt({12 + (1 if cfg.stamps == 3 else 0)})")
    pstamp(a, 20)
    a.I("s_barrier")
    a.I("s_waitcnt vmcnt(8)")
    WLAST = 16 if cfg.nowq else 59
    def has_kv(n):
        if cfg.nokv: return False
        if isK and cfg.k0early:
            return n == cfg.k0early or (D + 1 <= n <= D + 63)
        return D <= n <= D + 63
    def cnt(n):
        if n < 0: return 4
        return (4 if n <= WLAST else 0) + (8 if has_kv(n) else 0)
    phases = []
    for n in range(79 if isK else 80):
        key = (has_kv(n), n <= WLAST, cnt(n) + cnt(n - 1))
        if phases and phases[-1][0] == key: phases[-1][2] = n
        else: phases.append([key, n, n])
    for pi, (key, n0, n1) in enumerate(phases):
        kv, w, N = key
        cntn = n1 - n0 + 1
        if cntn > 1:
            a.I(f"s_mov_b32 s{sN}, {cntn}")
            a.L(f"L_{tag}_ph{pi}")
        a.I("s_barrier")
        stamp(a, 20)
        if cfg.wfirst:
            if w: issue_w()
            if kv: issue_kv()
        else:
            if kv: issue_kv()
            if w: issue_w()
        stamp(a, 20)
        a.I(f"s_waitcnt vmcnt({N + (7 if cfg.stamps == 2 else 0)})")
        stamp(a, 20)
        if cntn > 1:
            a.I(f"s_sub_u32 s{sN}, s{sN}, 1")
            a.I(f"s_cmp_lg_u32 s{sN}, 0")
            a.I(f"s_cbranch_scc1 L_{tag}_ph{pi}")
    if not isK: a.I("s_mov_b32 s54, 2")
    a.I("s_branch L_tail_pre" if isK else "s_branch L_tail_mm")

STAMP_BASE = 32 << 20
def stamp_setup(a):
    if not cfg.stamps: return
    a.I(f"s_mov_b32 s92, s{P_WS}")
    a.I(f"s_and_b32 s93, s{P_WS+1}, 0xffff")
    a.I(f"s_mov_b32 s94, {hex(STAMP_BASE + (2<<20))}")
    a.I("s_mov_b32 s95, 0x20000")
    a.I("s_lshl_b32 s96, s2, 3")
    a.I(f"s_add_u32 s96, s96, s{S_WAVE}")
    a.I("s_lshl_b32 s96, s96, 10")
    a.I(f"s_add_u32 s96, s96, {STAMP_BASE}")
def stamp(a, vtmp, level=2):
    if cfg.stamps != level: return
    a.I("s_memrealtime s[98:99]")
    if level == 1: a.I("s_memtime s[100:101]")
    a.I("s_waitcnt lgkmcnt(0)")
    a.I(f"v_mov_b32 v{vtmp}, s98")
    a.I(f"v_mov_b32 v{vtmp+1}, 0")
    a.I(f"buffer_store_dword v{vtmp}, v{vtmp+1}, s[92:95], s96 offen")
    if level == 1:
        a.I(f"v_mov_b32 v{vtmp}, s100")
        a.I(f"buffer_store_dword v{vtmp}, v{vtmp+1}, s[92:95], s96 offen offset:4")
        a.I("s_add_u32 s96, s96, 4")
    a.I("s_add_u32 s96, s96, 4")

def pstamp(a, v):
    stamp(a, v, 3)
def dbg_setup(a):
    if not cfg.dbgst: return
    a.I("s_load_dwordx2 s[90:91], s[0:1], 88")
    a.I("s_waitcnt lgkmcnt(0)")
    a.I("s_mov_b32 s92, s90")
    a.I("s_and_b32 s93, s91, 0xffff")
    a.I("s_mov_b32 s94, 0")
    a.I("s_mov_b32 s96, 0")
    a.I(f"s_cmp_lg_u32 s{S_WAVE}, {cfg.dbgwave}")
    a.I("s_cbranch_scc1 L_dbg_done")
    a.I(f"s_cmp_eq_u32 s2, {cfg.dbgwg}")
    a.I("s_cselect_b32 s94, 64, 0")
    a.L("L_dbg_done")
    a.I("s_mov_b32 s95, 0x20000")
def dbg_stamp(a, vtmp):
    if not cfg.dbgst: return
    a.I("s_memrealtime s[98:99]")
    a.I("s_waitcnt lgkmcnt(0)")
    a.I(f"v_mov_b32 v{vtmp}, s98")
    a.I(f"v_mov_b32 v{vtmp+1}, 0")
    a.I(f"buffer_store_dword v{vtmp}, v{vtmp+1}, s[92:95], s96 offen")
    a.I("s_add_u32 s96, s96, 4")

GO_OFF = 26 << 20
def go_srd(a, dst):
    a.I(f"s_add_u32 s{dst}, s{P_WS}, {GO_OFF}")
    a.I(f"s_addc_u32 s{dst+1}, s{P_WS+1}, 0")
    a.I(f"s_and_b32 s{dst+1}, s{dst+1}, 0xffff")
    a.I(f"s_mov_b32 s{dst+2}, {256*128}")
    a.I(f"s_mov_b32 s{dst+3}, 0x20000")

def mfma(a, d, A, B, c=None):
    cs = vr(d, 4) if c is None else (c if isinstance(c, str) else vr(c, 4))
    a.I(f"v_mfma_f32_16x16x32_bf16 {vr(d,4)}, {vr(A,4)}, {vr(B,4)}, {cs}")

def kpattern_addr(a, dst, n):
    a.I("v_and_b32 v1, 15, v0")
    a.I("v_lshrrev_b32 v2, 4, v0")
    a.I("v_xor_b32 v3, v1, v2")
    a.I("v_lshlrev_b32 v1, 8, v1")
    for k in range(n):
        a.I(f"v_xor_b32 v2, {4*k}, v3")
        a.I(f"v_lshl_add_u32 v{dst+k}, v2, 4, v1")

def gen_G(a):
    a.L("L_roleG")
    X = 0; QA = 128; WF = 192; vWA = 224; vXA = 228; vXO = 236; vL16 = 240; vLane = 241
    SX = 32
    sW = 48; sA = 49; sBq = 50; sU = 51; sXb = 52; sC = 56; sPi = 53
    a.I(f"s_sub_u32 s{sW}, s{S_WAVE}, 4")
    a.I(f"s_mov_b32 s{sC}, {hex(f2u(CSCALE))}")
    a.I(f"s_mov_b32 s{sC+1}, {hex(f2u(CSCALE))}")
    a.I(f"v_mov_b32 v{vLane}, v0")
    a.I(f"v_lshlrev_b32 v{vL16}, 4, v0")
    kpattern_addr(a, vXA, 4)
    a.I(f"s_lshl_b32 s{sA}, s{sW}, 14")
    a.I(f"s_add_u32 s{sA}, s{sA}, {XS}")
    for k in range(4):
        a.I(f"v_add_u32 v{vXA+k}, s{sA}, v{vXA+k}")
    a.I("v_and_b32 v1, 15, v0")
    a.I("v_lshrrev_b32 v2, 4, v0")
    a.I("v_lshrrev_b32 v3, 2, v1")
    a.I("v_lshl_add_u32 v5, v2, 3, v3")
    a.I("v_lshlrev_b32 v5, 8, v5")
    a.I("v_and_b32 v6, 3, v1")
    a.I("v_lshl_add_u32 v5, v6, 4, v5")
    a.I(f"v_add_u32 v5, {WR}, v5")
    for i in range(4):
        a.I(f"v_xor_b32 v6, {i}, v3")
        a.I(f"v_lshl_add_u32 v{vWA+i}, v6, 6, v5")
    stamp_setup(a)
    pstamp(a, 246)
    pstamp(a, 246)

    def x_reads(piece):
        if piece == 2:
            for k in range(4): a.I(f"v_subrev_u32 v{vXA+k}, {XS}, v{vXA+k}")
        for t in range(4):
            for sb in range(2):
                a.I(f"ds_read_b128 {vr(X + piece*32 + t*8 + sb*4, 4)}, v{vXA+t} offset:{(piece&1)*8192 + sb*4096}")
    def rd(slot, i):
        return [f"ds_read_b64_tr_b16 {vr(WF + i*4 + sec*2, 2)}, v{vWA + (i >> 1)} offset:{slot*8192 + sec*1024 + (i & 1)*8}" for sec in range(2)]
    def qa(i, sb):
        return QA + (((i >> 1)*2 + sb)*2 + (i & 1))*4

    def task(t, first_unit, nxt=True):
        stamp(a, 246)
        a.I("s_barrier")
        stamp(a, 246)
        if cfg.nogr and not first_unit: return
        ns = (t + 1) & 3
        xb = X + t*8
        for i in range(8):
            if not (cfg.nog and not first_unit) and not (cfg.ghalf and not first_unit and i >= 8 - cfg.ghalf):
                for sb in range(2):
                    mfma(a, qa(i, sb), WF + i*4, xb + 4*sb, "0" if t == 0 else None)
            if nxt:
                for o in rd(ns, i): a.I(o)
        if first_unit and t % 4 == 3 and t < 15:
            x_reads(t // 4 + 1)
        a.I("s_waitcnt lgkmcnt(0)")
        if first_unit: pstamp(a, 246)

    def handoff():
        a.I(f"s_cmp_lt_u32 s{sU}, 3")
        a.I(f"s_cselect_b32 s{sA}, {QH//8192}, {WR//8192}")
        a.I(f"s_add_u32 s{sA}, s{sA}, s{sW}")
        a.I(f"s_lshl_b32 s{sA}, s{sA}, 13")
        a.I(f"v_add_u32 v242, s{sA}, v{vL16}")
        a.I("s_nop 3")
        for k in range(8):
            for j in range(4):
                a.I(f"v_pk_mul_f32 {vr(QA+8*k+2*j,2)}, {vr(QA+8*k+2*j,2)}, s[{sC}:{sC+1}]")
            for j in range(4):
                a.I(f"v_cvt_pk_bf16_f32 v{QA+4*k+j}, v{QA+8*k+2*j}, v{QA+8*k+2*j+1}")
            a.I(f"ds_write_b128 v242, {vr(QA+4*k,4)} offset:{k*1024}")
        a.I("s_waitcnt lgkmcnt(0)")

    a.I("s_barrier")
    pstamp(a, 246)
    x_reads(0)
    for i in range(8):
        for o in rd(0, i): a.I(o)
    a.I("s_waitcnt lgkmcnt(0)")
    pstamp(a, 246)
    a.I(f"s_mov_b32 s{sU}, 0")
    for t in range(16): task(t, True)
    handoff()
    a.I(f"s_mov_b32 s{sU}, 1")
    a.L("L_G_unit")
    for t in range(15): task(t, False)
    task(15, False)
    handoff()
    a.I(f"s_add_u32 s{sU}, s{sU}, 1")
    a.I(f"s_cmp_lt_u32 s{sU}, 4")
    a.I("s_cbranch_scc1 L_G_unit")
    a.I("s_mov_b32 s54, 18")
    a.I("s_branch L_tail_mm")

def slab_voffsets(a, VO, lane, t):
    for jp in range(4):
        a.I(f"v_lshrrev_b32 v{t}, 5, v{lane}")
        a.I(f"v_bfe_u32 v{t+1}, v{lane}, 1, 3")
        a.I(f"v_add_u32 v{t+2}, {2*jp}, v{t}")
        a.I(f"v_xor_b32 v{t+1}, v{t+1}, v{t+2}")
        a.I(f"v_lshlrev_b32 v{t}, 10, v{t}")
        a.I(f"v_bfe_u32 v{t+2}, v{lane}, 4, 1")
        a.I(f"v_lshl_add_u32 v{t}, v{t+2}, 9, v{t}")
        a.I(f"v_lshrrev_b32 v{t+2}, 2, v{t+1}")
        a.I(f"v_lshl_add_u32 v{t}, v{t+2}, 8, v{t}")
        a.I(f"v_and_b32 v{t+2}, 3, v{t+1}")
        a.I(f"v_lshl_add_u32 v{t}, v{t+2}, 5, v{t}")
        a.I(f"v_and_b32 v{t+2}, 1, v{lane}")
        a.I(f"v_lshl_add_u32 v{VO+jp}, v{t+2}, 4, v{t}")

def tail_srds(a):
    srd(a, 32, P_WO, 0x400000)
    a.I(f"s_add_u32 s36, s{P_WS}, {cfg.part_off}")
    a.I(f"s_addc_u32 s37, s{P_WS+1}, 0")
    a.I("s_and_b32 s37, s37, 0xffff")
    a.I(f"s_mov_b32 s38, {hex(PART_BYTES)}")
    a.I("s_mov_b32 s39, 0x20000")
    go_srd(a, 64)

def gen_A(a):
    a.L("L_roleA")
    O = 0; Q = 64; S = [96, 112]; NM = 128; P = [136, 144]; KF = 152; VF = 184
    vKA = 216; vVA = 220; l0 = 228; mx = 232; t0 = 233; inv = 234; vL16 = 242; vAd = 243; t1 = 238; t2 = 239; t3 = 240
    sIt = 48; sU = 49; sA = 50; sBq = 51; sW = S_WAVE
    if cfg.prio_a: a.I(f"s_setprio {cfg.prio_a}")
    stamp_setup(a)
    stamp(a, 246)
    stamp(a, 246, 1)
    dbg_stamp(a, 246)
    SX = 44; sXb = 58; sPi = 59
    srd(a, SX, P_X, 16*96*512*2)
    a.I("v_and_b32 v1, 15, v0")
    a.I("v_lshrrev_b32 v2, 4, v0")
    for j in range(4):
        a.I(f"v_add_u32 v3, {4*j}, v2")
        a.I("v_xor_b32 v3, v1, v3")
        a.I("v_lshlrev_b32 v3, 4, v3")
        a.I(f"v_lshl_add_u32 v{8+j}, v2, 10, v3")
    a.I(f"s_mul_i32 s{sXb}, s{S_B}, 98304")
    a.I(f"s_lshl_b32 s{sA}, s{sW}, 15")
    a.I(f"s_add_u32 s{sXb}, s{sXb}, s{sA}")
    def issue_x(piece, i0=0, i1=8):
        a.I(f"s_lshr_b32 s{sPi}, s{S_RHO}, 2")
        a.I(f"s_add_u32 s{sPi}, s{sPi}, {piece}")
        a.I(f"s_and_b32 s{sPi}, s{sPi}, 3")
        a.I(f"s_lshl_b32 s{sPi}, s{sPi}, 8")
        a.I(f"s_add_u32 s{sA}, s{sXb}, s{sPi}")
        if i0: a.I(f"s_add_u32 s{sA}, s{sA}, {i0*4096}")
        a.I(f"s_lshl_b32 s{sBq}, s{sW}, 14")
        a.I(f"s_add_u32 s{sBq}, s{sBq}, {(XS if piece < 2 else 0) + (piece & 1)*8192}")
        for i in range(i0, i1):
            a.I(f"s_add_u32 m0, s{sBq}, {i*1024}")
            if i > i0: a.I(f"s_add_u32 s{sA}, s{sA}, 4096")
            else: a.I("s_nop 0")
            a.I(f"buffer_load_dwordx4 v{8 + (i & 3)}, s[{SX}:{SX+3}], s{sA} offen{cfg.x_pol} lds")
    issue_x(0)
    sG = 55; sTrig = 54; vRdy = 245
    a.I(f"s_lshl_b32 s{sG}, s{S_P}, 4")
    a.I(f"s_add_u32 s{sG}, s{sG}, s{S_B}")
    a.I(f"s_mov_b32 s{sTrig}, 0xffff")
    a.I("s_load_dwordx2 s[56:57], s[0:1], 88")
    a.I("s_waitcnt lgkmcnt(0)")
    srd(a, 40, 56, 256)
    a.I(f"v_lshlrev_b32 v{vL16}, 4, v0")
    a.I("v_mov_b32 v255, v0")
    slab_voffsets(a, 248, 255, 1)
    tail_srds(a)
    kpattern_addr(a, vKA, 4)
    a.I("v_and_b32 v1, 15, v0")
    a.I("v_lshrrev_b32 v2, 4, v0")
    a.I("v_lshrrev_b32 v3, 2, v1")
    a.I("v_lshl_add_u32 v4, v2, 2, v3")
    a.I("v_lshlrev_b32 v5, 8, v4")
    a.I("v_and_b32 v6, 3, v1")
    a.I("v_lshl_add_u32 v5, v6, 3, v5")
    a.I(f"v_add_u32 v5, {VR}, v5")
    a.I("v_and_b32 v4, 7, v4")
    for i in range(8):
        a.I(f"v_xor_b32 v6, {i}, v4")
        a.I(f"v_lshl_add_u32 v{vVA+i}, v6, 5, v5")
    for j in range(4): a.I(f"v_mov_b32 v{l0+j}, 0")
    def handoff_setup():
        a.I(f"s_cmp_lg_u32 s{S_WAVE}, 0")
        a.I("s_cbranch_scc1 L_A_noreset")
        go_srd(a, 64)
        a.I(f"s_lshl_b32 s{sA}, s{sG}, 3")
        a.I(f"s_add_u32 s{sA}, s{sA}, s{S_MJ}")
        a.I(f"s_lshl_b32 s{sA}, s{sA}, 7")
        a.I("v_mov_b32 v1, 0")
        a.I("v_lshlrev_b32 v2, 2, v0")
        a.I("s_mov_b64 s[60:61], exec")
        a.I("s_mov_b64 exec, 0xff")
        a.I(f"buffer_store_dword v1, v2, s[64:67], s{sA} offen sc1")
        a.I("s_waitcnt vmcnt(0)")
        a.I("s_mov_b64 exec, 1")
        a.I("v_mov_b32 v2, 1")
        a.I(f"s_lshl_b32 s{sA}, s{sG}, 2")
        a.I(f"s_add_u32 s{sA}, s{sA}, 128")
        a.I(f"buffer_atomic_add v2, v1, s[40:43], s{sA} offen")
        a.I("s_mov_b64 exec, s[60:61]")
        a.I("s_lshr_b32 s3, s2, 3")
        a.I("s_mul_i32 s3, s3, 3")
        a.I("s_lshr_b32 s3, s3, 3")
        a.I(f"s_add_u32 s{sTrig}, s3, 4")
        a.L("L_A_noreset")
    a.I("s_waitcnt vmcnt(0)")
    for n in range(-1, 16):
        stamp(a, 246)
        a.I("s_barrier")
        stamp(a, 246)
        XP = cfg.xsched
        if XP == 0:
            if n in (-1, 0, 1): issue_x(n + 2)
            if n == 2: a.I("s_waitcnt vmcnt(16)")
            if n == 6: a.I("s_waitcnt vmcnt(8)")
        elif XP == 1:
            if n in (-1, 0): issue_x(1, 4*(n+1), 4*(n+2))
            if 1 <= n <= 4: issue_x(2, 2*(n-1), 2*n)
            if 5 <= n <= 8: issue_x(3, 2*(n-5), 2*(n-4))
            if n == 2: a.I("s_waitcnt vmcnt(4)")
            if n == 6: a.I("s_waitcnt vmcnt(4)")
        elif XP == 2:
            if -1 <= n <= 1: issue_x(1, [0,3,6][n+1], [3,6,8][n+1])
            if 2 <= n <= 4: issue_x(2, [0,3,6][n-2], [3,6,8][n-2])
            if 5 <= n <= 7: issue_x(3, [0,3,6][n-5], [3,6,8][n-5])
            if n == 2: a.I("s_waitcnt vmcnt(3)")
            if n == 6: a.I("s_waitcnt vmcnt(6)")
        if n == 10: a.I("s_waitcnt vmcnt(0)")
        if n == 11: handoff_setup()

    rare_blocks = []

    def oacc(i, sb):
        return O + (((i >> 1)*2 + sb)*2 + (i & 1))*4
    def xreduce(v, op, tmp):
        a.I(f"v_mov_b32 v{tmp}, v{v}")
        a.I("s_nop 1")
        a.I(f"v_permlane16_swap_b32 v{v}, v{tmp}")
        a.I("s_nop 0")
        a.I(f"{op} v{v}, v{v}, v{tmp}")
        a.I(f"v_mov_b32 v{tmp}, v{v}")
        a.I("s_nop 1")
        a.I(f"v_permlane32_swap_b32 v{v}, v{tmp}")
        a.I("s_nop 0")
        a.I(f"{op} v{v}, v{v}, v{tmp}")

    def step(pos, tag, pv=True, pv_c0=False, sm=True, qk=True, first=False, fin_l=False, finalize=False, vrd=True, check=True):
        Sn = S[pos % 2]; Sc = S[(pos + 1) % 2]
        Pw = P[(pos + 1) % 2]; Pr = P[pos % 2]
        vslot = (pos + 3) % 4
        stamp(a, 246)
        a.I("s_barrier")
        stamp(a, 246)
        if first: dbg_stamp(a, 246)
        if first or tag == "_l0": stamp(a, 246, 1)
        if cfg.noa: return
        if first:
            a.I(f"s_cmp_lt_u32 s{sU}, 3")
            a.I(f"s_cselect_b32 s{sA}, {QH//8192}, {WR//8192}")
            a.I(f"s_add_u32 s{sA}, s{sA}, s{sW}")
            a.I(f"s_lshl_b32 s{sA}, s{sA}, 13")
            a.I(f"v_add_u32 v{vAd}, s{sA}, v{vL16}")
            for k in range(8):
                a.I(f"ds_read_b128 {vr(Q+4*k,4)}, v{vAd} offset:{k*1024}")
        if qk:
            for k in range(4):
                for kt in range(2):
                    a.I(f"ds_read_b128 {vr(KF+(k*2+kt)*4,4)}, v{vKA+k} offset:{pos*8192 + kt*4096}")
        if finalize:
            a.I(f"s_sub_u32 s{sA}, s{sU}, 1")
            a.I(f"s_lshl_b32 s{sA}, s{sA}, 3")
            a.I(f"s_lshr_b32 s{sA}, 0x80C11, s{sA}")
            a.I(f"s_and_b32 s{sA}, s{sA}, 0xff")
            a.I(f"s_add_u32 s{sA}, s{sA}, s{sW}")
            a.I(f"s_lshl_b32 s{sA}, s{sA}, 13")
            a.I(f"v_add_u32 v{vAd}, s{sA}, v{vL16}")
        def valu_gap(g):
            if not sm: return
            a.I(f"v_exp_f32 v{Sc+g}, v{Sc+g}")
            if g >= 1:
                e = g - 1
                lr = l0 + 2*(e >> 3) + (e & 1)
                a.I(f"v_add_f32 v{lr}, v{lr}, v{Sc+e}")
            if g >= 2 and g % 2 == 0:
                j = g // 2 - 1
                a.I(f"v_cvt_pk_bf16_f32 v{Pw+j}, v{Sc+2*j}, v{Sc+2*j+1}")
        pv_mark = None
        for i in range(8):
            if pv:
                for sb in range(2):
                    mfma(a, oacc(i, sb), VF + i*4, Pr + 4*sb, "0" if pv_c0 else None)
                pv_mark = a.mark()
            valu_gap(i)
        nv = 0; nw = 0
        for k in range(8):
            kap, kt = k // 2, k % 2
            if qk:
                a.I(f"s_waitcnt lgkmcnt({min(15, 7 - k + nv + nw)})")
                for sb in range(2):
                    c = ("0" if first else vr(NM + 4*sb, 4)) if kap == 0 else None
                    mfma(a, Sn + (sb*2 + kt)*4, KF + k*4, Q + (kap*2 + sb)*4, c)
                qk_mark = a.mark()
            if vrd:
                for sec in range(2):
                    a.I(f"ds_read_b64_tr_b16 {vr(VF + k*4 + sec*2, 2)}, v{vVA+k} offset:{vslot*8192 + sec*4096}")
                    nv += 1
            valu_gap(8 + k)
            if finalize:
                if k == 0 and pv_mark is not None: a.pad_since(pv_mark, 8)
                sb = k & 1
                for j in range(4):
                    a.I(f"v_pk_mul_f32 {vr(O+8*k+2*j,2)}, {vr(O+8*k+2*j,2)}, {vr(inv+2*sb,2)}")
                for j in range(4):
                    a.I(f"v_cvt_pk_bf16_f32 v{O+4*k+j}, v{O+8*k+2*j}, v{O+8*k+2*j+1}")
                a.I(f"ds_write_b128 v{vAd}, {vr(O+4*k,4)} offset:{k*1024}")
                nw += 1
        if sm:
            a.I("s_nop 0")
            a.I(f"v_add_f32 v{l0+3}, v{l0+3}, v{Sc+15}")
            a.I(f"v_cvt_pk_bf16_f32 v{Pw+7}, v{Sc+14}, v{Sc+15}")
        if fin_l:
            for sb in range(2):
                a.I(f"v_add_f32 v{t0}, v{l0+2*sb}, v{l0+2*sb+1}")
                xreduce(t0, "v_add_f32", t1)
                a.I(f"v_rcp_f32 v{inv+2*sb}, v{t0}")
                a.I(f"v_mov_b32 v{l0+2*sb}, 0")
                a.I(f"v_mov_b32 v{inv+2*sb+1}, v{inv+2*sb}")
                a.I(f"v_mov_b32 v{l0+2*sb+1}, 0")
        if qk:
            a.pad_since(qk_mark, 8)
            if first:
                for sb in range(2):
                    b8 = Sn + 8*sb
                    a.I(f"v_max3_f32 v{mx}, v{b8}, v{b8+1}, v{b8+2}")
                    a.I(f"v_max3_f32 v{mx}, v{mx}, v{b8+3}, v{b8+4}")
                    a.I(f"v_max3_f32 v{mx}, v{mx}, v{b8+5}, v{b8+6}")
                    a.I(f"v_max_f32 v{mx}, v{mx}, v{b8+7}")
                    xreduce(mx, "v_max_f32", t0)
                    for j in range(8):
                        a.I(f"v_sub_f32 v{b8+j}, v{b8+j}, v{mx}")
                    for j in range(4):
                        a.I(f"v_sub_f32 v{NM+4*sb+j}, 0, v{mx}")
            else:
                a.I(f"v_max3_f32 v{mx}, v{Sn}, v{Sn+1}, v{Sn+2}")
                a.I(f"v_max3_f32 v{t1}, v{Sn+3}, v{Sn+4}, v{Sn+5}")
                a.I(f"v_max3_f32 v{mx}, v{mx}, v{Sn+6}, v{Sn+7}")
                a.I(f"v_max3_f32 v{t1}, v{t1}, v{Sn+8}, v{Sn+9}")
                a.I(f"v_max3_f32 v{mx}, v{mx}, v{Sn+10}, v{Sn+11}")
                a.I(f"v_max3_f32 v{t1}, v{t1}, v{Sn+12}, v{Sn+13}")
                a.I(f"v_max3_f32 v{mx}, v{mx}, v{Sn+14}, v{Sn+15}")
                a.I(f"v_max_f32 v{mx}, v{mx}, v{t1}")
                if check:
                    a.I(f"v_cmp_lt_f32 vcc, {hex(f2u(cfg.thresh))}, v{mx}")
                    a.I(f"s_cbranch_vccnz L_A_rare{tag}")
                    a.L(f"L_A_ret{tag}")
                    rare_blocks.append((tag, Sn, Pw, sm))
        a.I("s_waitcnt lgkmcnt(0)")

    a.I(f"s_mov_b32 s{sU}, 0")
    step(0, "_f0", pv=False, sm=False, first=True, vrd=False)
    step(1, "_f1", pv=False)
    a.I(f"s_mov_b32 s{sIt}, 0")
    a.I("s_branch L_A_b2")
    a.L("L_A_loop")
    a.I(f"s_lshl_b32 s{sA}, s{sU}, 2")
    a.I(f"s_add_u32 s{sA}, s{sA}, s{sIt}")
    a.I(f"s_cmp_lg_u32 s{sA}, s{sTrig}")
    a.I("s_cbranch_scc1 L_A_notrig")
    a.I(f"s_lshl_b32 s{sA}, s{sG}, 2")
    a.I(f"s_add_u32 s{sA}, s{sA}, 128")
    a.I("v_mov_b32 v252, 0")
    a.I(f"buffer_load_dword v253, v252, s[40:43], s{sA} offen sc1")
    a.L("L_A_notrig")
    a.I(f"s_cmp_lg_u32 s{sIt}, 0")
    a.I("s_cbranch_scc1 L_A_reg0")
    a.I(f"s_cmp_eq_u32 s{sU}, 4")
    a.I("s_cbranch_scc1 L_A_last")
    step(0, "_b0", first=True, fin_l=True)
    step(1, "_b1", finalize=True)
    a.L("L_A_b2")
    step(2, "_b2", pv_c0=True)
    a.I("s_branch L_A_reg3")
    a.L("L_A_reg0")
    step(0, "_0")
    step(1, "_1")
    step(2, "_2")
    a.L("L_A_reg3")
    step(3, "_3")
    a.I(f"s_add_u32 s{sIt}, s{sIt}, 1")
    a.I(f"s_cmp_eq_u32 s{sIt}, 4")
    a.I("s_cbranch_scc0 L_A_loop")
    a.I(f"s_mov_b32 s{sIt}, 0")
    a.I(f"s_add_u32 s{sU}, s{sU}, 1")
    a.I("s_branch L_A_loop")
    a.L("L_A_last")
    step(0, "_l0", qk=False, fin_l=True)
    step(1, "_l1", qk=False, sm=False, vrd=False, finalize=True)
    a.I("s_branch L_tail_ld")
    for tag, Sn, Pw, sm in rare_blocks:
        a.L(f"L_A_rare{tag}")
        a.I("s_nop 15")
        for sb in range(2):
            b8 = Sn + 8*sb
            a.I(f"v_max3_f32 v{mx}, v{b8}, v{b8+1}, v{b8+2}")
            a.I(f"v_max3_f32 v{mx}, v{mx}, v{b8+3}, v{b8+4}")
            a.I(f"v_max3_f32 v{mx}, v{mx}, v{b8+5}, v{b8+6}")
            a.I(f"v_max_f32 v{mx}, v{mx}, v{b8+7}")
            xreduce(mx, "v_max_f32", t0)
            a.I(f"v_max_f32 v{mx}, 0, v{mx}")
            a.I(f"v_ceil_f32 v{mx}, v{mx}")
            a.I(f"v_min_f32 v{t0}, 0x43480000, v{mx}")
            a.I(f"v_cvt_i32_f32 v{t0}, v{t0}")
            a.I(f"v_sub_u32 v{t0}, 0, v{t0}")
            a.I(f"v_ldexp_f32 v{t1}, 1.0, v{t0}")
            a.I(f"v_mov_b32 v{t2}, v{t1}")
            for j in range(8):
                a.I(f"v_sub_f32 v{b8+j}, v{b8+j}, v{mx}")
            for j in range(4):
                a.I(f"v_sub_f32 v{NM+4*sb+j}, v{NM+4*sb+j}, v{mx}")
            for kap in range(4):
                ob = O + (kap*2 + sb)*8
                for j in range(4):
                    a.I(f"v_pk_mul_f32 {vr(ob+2*j,2)}, {vr(ob+2*j,2)}, {vr(t1,2)}")
            a.I(f"v_mul_f32 v{l0+2*sb}, v{l0+2*sb}, v{t1}")
            a.I(f"v_mul_f32 v{l0+2*sb+1}, v{l0+2*sb+1}, v{t1}")
            for j in range(4):
                pr = Pw + 4*sb + j
                a.I(f"v_lshlrev_b32 v{mx}, 16, v{pr}")
                a.I(f"v_and_b32 v{t0}, 0xffff0000, v{pr}")
                a.I(f"v_mul_f32 v{mx}, v{mx}, v{t1}")
                a.I(f"v_mul_f32 v{t0}, v{t0}, v{t1}")
                a.I(f"v_cvt_pk_bf16_f32 v{pr}, v{mx}, v{t0}")
        a.I("s_nop 1")
        a.I(f"s_branch L_A_ret{tag}")

class LdsQ:
    def __init__(self): self.ops = []
    def issue(self, key): self.ops.append(key)
    def need(self, keys):
        last = max(len(self.ops) - 1 - self.ops[::-1].index(k) for k in keys)
        return len(self.ops) - 1 - last

SLAB = [[122880, 131072], [40960, 49152], [24576, 32768], [57344, 90112]]
def gen_tail(a):
    SWO = 32; SPT = 36; SDB = 40; SOUT = 44; SGO = 64
    sSt = 48; sA = 49; sBq = 50; sIt = 52; sRow = 53; sG = 55; sJ = 63
    vL = 255
    def tail_stamp_reset():
        if cfg.stamps:
            a.I("s_and_b32 s96, s96, 0xfffffc00")
            a.I(f"s_add_u32 s96, s96, {1000 if cfg.stamps == 2 else 512}")
    def part_srd():
        a.I(f"s_add_u32 s{SPT}, s{P_WS}, {cfg.part_off}")
        a.I(f"s_addc_u32 s{SPT+1}, s{P_WS+1}, 0")
        a.I(f"s_and_b32 s{SPT+1}, s{SPT+1}, 0xffff")
        a.I(f"s_mov_b32 s{SPT+2}, {hex(PART_BYTES)}")
        a.I(f"s_mov_b32 s{SPT+3}, 0x20000")
    def lane_id():
        a.I(f"v_mbcnt_lo_u32_b32 v{vL}, -1, 0")
        a.I(f"v_mbcnt_hi_u32_b32 v{vL}, -1, v{vL}")
    def group_id():
        a.I(f"s_lshl_b32 s{sG}, s{S_P}, 4")
        a.I(f"s_add_u32 s{sG}, s{sG}, s{S_B}")
    VO = 248
    sTab = 56; sG0 = 57
    def ld_slab(j0, nj, j0_reg=None):
        a.I(f"s_and_b32 s{sA}, s{sJ}, 15")
        a.I(f"s_add_u32 s{sA}, s{sA}, s{S_B}")
        a.I(f"s_and_b32 s{sA}, s{sA}, 15")
        a.I(f"s_lshl_b32 s{sA}, s{sA}, 15")
        if cfg.wo_fake: a.I(f"s_mov_b32 s{sA}, 0")
        a.I(f"s_lshr_b32 s{sBq}, s{sJ}, 4")
        a.I(f"s_xor_b32 s{sBq}, s{sBq}, s{S_B}")
        a.I(f"s_and_b32 s{sBq}, s{sBq}, 1")
        a.I(f"s_lshl_b32 s{sBq}, s{sBq}, 7")
        a.I(f"s_add_u32 s{sA}, s{sA}, s{sBq}")
        a.I(f"s_add_u32 s{sA}, s{sA}, s{sRow}")
        blk = [SLAB[sl][hf] // 8192 for sl in range(4) for hf in range(2)]
        lo = sum(blk[2*sl] << (8*sl) for sl in range(4)); hi = sum(blk[2*sl+1] << (8*sl) for sl in range(4))
        a.I(f"s_and_b32 s{sBq}, s{sJ}, 3")
        a.I(f"s_lshl_b32 s{sBq}, s{sBq}, 3")
        if j0_reg is None:
            for hf, tab in ((0, lo), (1, hi)):
                a.I(f"s_lshr_b32 s{sIt}, {hex(tab)}, s{sBq}")
                a.I(f"s_and_b32 s{sIt}, s{sIt}, 0xff")
                a.I(f"s_lshl_b32 s{sIt}, s{sIt}, 13")
                for j in range(8):
                    a.I(f"s_add_u32 m0, s{sIt}, {j*1024}")
                    if hf or j: a.I(f"s_add_u32 s{sA}, s{sA}, 2048")
                    else: a.I("s_nop 0")
                    a.I(f"buffer_load_dwordx4 v{VO + (j & 3)}, s[{SWO}:{SWO+3}], s{sA} offen{cfg.wo_pol} lds")
        else:
            a.I(f"s_lshr_b32 s{sIt}, s{sTab}, s{sBq}")
            a.I(f"s_and_b32 s{sIt}, s{sIt}, 0xff")
            a.I(f"s_lshl_b32 s{sIt}, s{sIt}, 13")
            a.I(f"s_add_u32 s{sIt}, s{sIt}, s{j0_reg}")
            a.I(f"s_add_u32 s{sA}, s{sA}, s{sG0}")
            for j in range(4):
                a.I(f"s_add_u32 m0, s{sIt}, {j*1024}")
                if j: a.I(f"s_add_u32 s{sA}, s{sA}, 2048")
                else: a.I("s_nop 0")
                a.I(f"buffer_load_dwordx4 v{VO + (j & 3)}, s[{SWO}:{SWO+3}], s{sA} offen{cfg.wo_pol} lds")
        a.I(f"s_add_u32 s{sJ}, s{sJ}, 1")

    a.L("L_tail_pre")
    a.I("s_load_dwordx2 s[60:61], s[0:1], 88")
    a.I("s_waitcnt lgkmcnt(0)")
    srd(a, SDB, 60, 256)
    lane_id()
    slab_voffsets(a, VO, vL, 10)
    tail_srds(a)
    a.I(f"s_lshl_b32 s{sRow}, s{S_HB}, 17")
    a.I(f"s_mov_b32 s{sJ}, 0")
    for n in (79, 80, 81):
        stamp(a, 246)
        a.I("s_barrier")
        stamp(a, 246)
        ld_slab(0, 16)
        stamp(a, 246)
    a.I("s_waitcnt vmcnt(16)")
    a.I("s_branch L_tail_ld2")
    a.L("L_tail_ld")
    a.I("s_setprio 0")
    a.I(f"s_lshl_b32 s{sRow}, s{S_HB}, 17")
    a.I(f"s_mov_b32 s{sJ}, 3")
    a.L("L_tail_ld2")
    group_id()
    a.I(f"s_cmp_lg_u32 s{S_WAVE}, 0")
    a.I("s_cbranch_scc1 L_T_rdy")
    a.I("s_waitcnt vmcnt(0)")
    a.I("v_readfirstlane_b32 s62, v253")
    a.I("s_cmp_ge_u32 s62, 8")
    a.I("s_cbranch_scc1 L_T_rdy")
    a.I(f"s_lshl_b32 s{sA}, s{sG}, 2")
    a.I(f"s_add_u32 s{sA}, s{sA}, 128")
    a.I(f"s_mov_b32 s{sIt}, 0")
    a.I("v_mov_b32 v252, 0")
    a.L("L_T_rdypoll")
    a.I(f"buffer_load_dword v253, v252, s[{SDB}:{SDB+3}], s{sA} offen sc1")
    a.I("s_waitcnt vmcnt(0)")
    a.I("v_readfirstlane_b32 s62, v253")
    a.I(f"s_add_u32 s{sIt}, s{sIt}, 1")
    a.I("s_cmp_ge_u32 s62, 8")
    a.I("s_cbranch_scc1 L_T_rdy")
    a.I(f"s_cmp_lt_u32 s{sIt}, 0x4000")
    a.I("s_cbranch_scc0 L_T_rdy")
    a.I("s_sleep 8")
    a.I("s_branch L_T_rdypoll")
    a.L("L_T_rdy")
    sJ0 = 51
    blk = [SLAB[sl][hf] // 8192 for sl in range(4) for hf in range(2)]
    lo = sum(blk[2*sl] << (8*sl) for sl in range(4)); hi = sum(blk[2*sl+1] << (8*sl) for sl in range(4))
    a.I(f"s_mov_b32 s{sTab}, {hex(lo)}")
    a.I(f"s_cmp_ge_u32 s{S_WAVE}, 2")
    a.I(f"s_cselect_b32 s{sTab}, {hex(hi)}, s{sTab}")
    a.I(f"s_and_b32 s{sJ0}, s{S_WAVE}, 1")
    a.I(f"s_lshl_b32 s{sJ0}, s{sJ0}, 12")
    a.I(f"s_lshl_b32 s{sG0}, s{S_WAVE}, 13")
    a.I("s_barrier")
    tail_stamp_reset()
    stamp(a, 246); stamp(a, 246, 1); dbg_stamp(a, 246)
    a.I(f"s_mov_b32 s{sSt}, 29")
    a.L("L_TL_loop")
    ld_slab(0, 4, sJ0)
    a.I("s_waitcnt vmcnt(4)")
    a.I("s_barrier")
    a.I(f"s_sub_u32 s{sSt}, s{sSt}, 1")
    a.I(f"s_cmp_lg_u32 s{sSt}, 0")
    a.I("s_cbranch_scc1 L_TL_loop")
    a.I("s_waitcnt vmcnt(0)")
    a.I("s_barrier")
    a.I("s_barrier")
    stamp(a, 246); stamp(a, 246, 1); dbg_stamp(a, 246)
    a.I(f"s_mov_b32 s{sJ}, s{S_WAVE}")
    a.I("s_branch L_T_reduce")

    a.L("L_tail_mm")
    ACC = [0, 96]; AF = 192; BF = 208; vAA = 232; vB = 240; vL16 = 242; PK = 244
    sWp = 51
    a.I("s_setprio 0")
    part_srd()
    group_id()
    go_srd(a, SGO)
    lane_id()
    a.I(f"s_sub_u32 s{sWp}, s{S_WAVE}, 4")
    T0 = 244
    a.I(f"v_and_b32 v{T0}, 15, v{vL}")
    a.I(f"v_lshrrev_b32 v{T0+1}, 4, v{vL}")
    a.I(f"v_lshrrev_b32 v{T0+2}, 2, v{T0}")
    a.I(f"v_lshl_add_u32 v{T0+3}, v{T0+1}, 2, v{T0+2}")
    a.I(f"v_lshlrev_b32 v{T0+4}, 9, v{T0+3}")
    a.I(f"v_and_b32 v{T0+5}, 3, v{T0}")
    a.I(f"v_lshl_add_u32 v{T0+4}, v{T0+5}, 3, v{T0+4}")
    a.I(f"s_lshr_b32 s{sA}, s{sWp}, 1")
    a.I(f"s_lshl_b32 s{sA}, s{sA}, 8")
    a.I(f"v_add_u32 v{T0+4}, s{sA}, v{T0+4}")
    a.I(f"v_and_b32 v{T0+3}, 7, v{T0+3}")
    a.I(f"s_and_b32 s{sA}, s{sWp}, 1")
    a.I(f"s_lshl_b32 s{sA}, s{sA}, 2")
    for t in range(4):
        a.I(f"s_add_u32 s{sBq}, s{sA}, {t}")
        a.I(f"v_xor_b32 v{T0+5}, s{sBq}, v{T0+3}")
        a.I(f"v_lshl_add_u32 v{vAA+t}, v{T0+5}, 5, v{T0+4}")
    a.I(f"v_lshlrev_b32 v{vL16}, 4, v{vL}")
    for j in range(192): a.I(f"v_mov_b32 v{j}, 0")
    TB = 68
    for i in range(16):
        a.I(f"s_add_u32 s{sA}, s{S_B}, {i}")
        a.I(f"s_and_b32 s{sA}, s{sA}, 15")
        a.I(f"s_lshr_b32 s{sBq}, s{sA}, 2")
        a.I(f"s_lshl_b32 s{sBq}, s{sBq}, 3")
        a.I(f"s_lshr_b32 s{sBq}, 0x80C11, s{sBq}")
        a.I(f"s_and_b32 s{sBq}, s{sBq}, 0xff")
        a.I(f"s_lshl_b32 s{sBq}, s{sBq}, 13")
        a.I(f"s_and_b32 s{sA}, s{sA}, 3")
        a.I(f"s_lshl_b32 s{sA}, s{sA}, 11")
        a.I(f"s_add_u32 s{TB+i}, s{sBq}, s{sA}")
    vAH = 236
    HI = 90112
    for t in range(4): a.I(f"v_add_u32 v{vAH+t}, {HI}, v{vAA+t}")
    q = LdsQ()
    done = [-1]
    def rdA(slot, t):
        for sec in range(2):
            base = SLAB[slot][sec]
            if base >= 65536: a.I(f"ds_read_b64_tr_b16 {vr(AF + t*4 + sec*2, 2)}, v{vAH+t} offset:{base - HI}")
            else: a.I(f"ds_read_b64_tr_b16 {vr(AF + t*4 + sec*2, 2)}, v{vAA+t} offset:{base}")
            q.issue(("A", t, sec))
    def rdB(par, sub):
        a.I(f"ds_read_b128 {vr(BF + sub*4, 4)}, v{vB+par} offset:{(sub >> 1)*8192 + (sub & 1)*1024}")
        q.issue(("B", sub))
    def acc(P, t, sub):
        return ACC[P] + ((sub*2 + (t >> 1))*2 + (t & 1))*4
    a.I(f"v_add_u32 v{vB}, s{TB}, v{vL16}")
    a.I(f"v_add_u32 v{vB+1}, s{TB+1}, v{vL16}")
    a.L("L_T_idle")
    a.I("s_barrier")
    a.I("s_sub_u32 s54, s54, 1")
    a.I("s_cmp_lg_u32 s54, 0")
    a.I("s_cbranch_scc1 L_T_idle")
    a.I("s_barrier")
    tail_stamp_reset()
    stamp(a, 246); stamp(a, 246, 1); dbg_stamp(a, 246)
    def order():
        return [(hf, t, j) for hf in range(2) for t in range(4) for j in range(3)]
    for (hf, t, j) in order():
        if t == 3: rdB(0, 3*hf + j)
        if hf == 1 and j == 2: rdA(0, t)
    def store_tile(P, ch, first_of_stage):
        base = ACC[P] + ch*16
        ops = [f"v_cvt_pk_bf16_f32 v{PK+j}, v{base+2*j}, v{base+2*j+1}" for j in range(8)]
        ops.append(f"s_add_u32 s{sBq}, s{sJ}, {ch*2048}")
        ops.append(f"buffer_store_dwordx4 {vr(PK,4)}, v{vL16}, s[{SPT}:{SPT+3}], s{sBq} offen{cfg.part_st_pol}")
        ops.append(f"buffer_store_dwordx4 {vr(PK+4,4)}, v{vL16}, s[{SPT}:{SPT+3}], s{sBq} offen offset:1024{cfg.part_st_pol}")
        ops.append("s_nop 1")
        return ops
    def part_base(P):
        a.I(f"s_lshl_b32 s{sJ}, s{sG}, 2")
        a.I(f"s_add_u32 s{sJ}, s{sJ}, s{sWp}")
        a.I(f"s_lshl_b32 s{sJ}, s{sJ}, 1")
        a.I(f"s_and_b32 s{sA}, s{S_B}, 1")
        a.I(f"s_xor_b32 s{sA}, s{sA}, {P}")
        a.I(f"s_add_u32 s{sJ}, s{sJ}, s{sA}")
        a.I(f"s_lshl_b32 s{sJ}, s{sJ}, 3")
        a.I(f"s_add_u32 s{sJ}, s{sJ}, s{S_MJ}")
        a.I(f"s_mul_i32 s{sJ}, s{sJ}, 12288")
    def raise_flag(P):
        a.I("s_waitcnt vmcnt(0)")
        a.I(f"s_lshl_b32 s{sA}, s{sG}, 2")
        a.I(f"s_add_u32 s{sA}, s{sA}, s{sWp}")
        a.I(f"s_lshl_b32 s{sA}, s{sA}, 1")
        a.I(f"s_and_b32 s{sBq}, s{S_B}, 1")
        a.I(f"s_xor_b32 s{sBq}, s{sBq}, {P}")
        a.I(f"s_add_u32 s{sA}, s{sA}, s{sBq}")
        a.I(f"s_lshl_b32 s{sA}, s{sA}, 7")
        a.I(f"s_lshl_b32 s{sBq}, s{S_MJ}, 2")
        a.I(f"s_add_u32 s{sA}, s{sA}, s{sBq}")
        a.I(f"v_mov_b32 v{PK}, 1")
        a.I(f"v_mov_b32 v{PK+1}, 0")
        a.I("s_mov_b64 s[60:61], exec")
        a.I("s_mov_b64 exec, 1")
        a.I(f"buffer_store_dword v{PK}, v{PK+1}, s[{SGO}:{SGO+3}], s{sA} offen sc1")
        a.I("s_mov_b64 exec, s[60:61]")
    def stage(sg, P, nxt=True, bar=True, extra=None, late=None):
        ns = (sg + 1) & 3; npar = (sg + 1) & 1
        extra = list(extra or []); late = list(late or [])
        nm = 0
        for (hf, t, j) in order():
            sub = 3*hf + j
            c = q.need([("B", sub), ("A", t, 0), ("A", t, 1)])
            pos = len(q.ops) - 1 - c
            if pos > done[0]:
                a.I(f"s_waitcnt lgkmcnt({min(15, c)})")
                done[0] = len(q.ops) - 1 - min(15, c)
            mfma(a, acc(P, t, sub), AF + t*4, BF + sub*4)
            nm += 1
            if nxt and t == 3: rdB(npar, sub)
            if nxt and hf == 1 and j == 2: rdA(ns, t)
            if nm == 1 and sg + 2 < 32:
                a.I(f"v_add_u32 v{vB + (sg & 1)}, s{TB + ((sg + 2) & 15)}, v{vL16}")
            if extra and nm >= 3: a.I(extra.pop(0))
            if nm in (20, 22) and late: a.I(late.pop(0))
        for o in extra + late: a.I(o)
        if bar: a.I("s_barrier")
    for sg in range(16): stage(sg, 0)
    if cfg.tailst: stamp(a, 246, 1)
    part_base(0)
    for st in range(16):
        extra = []; late = []
        if st < 6:
            ops = store_tile(0, st, False)
            extra = ops[:9]
            late = ops[9:11]
        stage(16 + st, 1, nxt=(st < 15), bar=(st < 15), extra=extra, late=late)
        if st == 7 and cfg.tailst: stamp(a, 246, 1)
        if st == 11: raise_flag(0)
        if st == 11 and cfg.tailst: stamp(a, 246, 1)
    mk = a.mark()
    part_base(1)
    stamp(a, 246); stamp(a, 246, 1); dbg_stamp(a, 246)
    a.pad_since(mk, 8)
    PKs = [244, 192, 200, 208]
    for t in range(6):
        PK = PKs[t % 4]
        for o in store_tile(1, t, False): a.I(o)
    PK = 244
    raise_flag(1)
    stamp(a, 246, 1); dbg_stamp(a, 246)
    a.I(f"s_cmp_ge_u32 s{S_WAVE}, 6")
    a.I("s_cbranch_scc1 L_k1_end")
    a.I(f"s_mov_b32 s{sJ}, s{S_WAVE}")
    a.L("L_T_reduce")
    vB = 242
    a.I(f"v_lshlrev_b32 v{vB}, 4, v{vL}")
    a.I("s_load_dwordx2 s[58:59], s[0:1], 80")
    sFl = 51
    a.I(f"s_lshl_b32 s{sFl}, s{sG}, 3")
    a.I(f"s_add_u32 s{sFl}, s{sFl}, s{S_MJ}")
    a.I(f"s_lshl_b32 s{sFl}, s{sFl}, 7")
    a.I(f"v_lshlrev_b32 v2, 2, v{vL}")
    a.I(f"s_lshl_b32 s{sA}, s{sG}, 3")
    a.I(f"s_add_u32 s{sA}, s{sA}, s{S_MJ}")
    a.I(f"s_mul_i32 s{sA}, s{sA}, 98304")
    a.I(f"s_lshl_b32 s{sBq}, s{sJ}, 11")
    a.I(f"s_add_u32 s{sA}, s{sA}, s{sBq}")
    a.I("s_mov_b64 s[60:61], exec")
    a.I(f"s_mov_b32 s{sIt}, 0")
    a.I("s_mov_b32 s62, 0")
    for src in range(8):
        a.L(f"L_T_w{src}")
        a.I(f"s_bitcmp1_b32 s62, {src}")
        a.I(f"s_cbranch_scc1 L_T_h{src}")
        a.I("s_mov_b64 exec, 0xff")
        a.I(f"buffer_load_dword v3, v2, s[{SGO}:{SGO+3}], s{sFl} offen sc1")
        a.I("s_waitcnt vmcnt(0)")
        a.I("v_cmp_eq_u32 vcc, 1, v3")
        a.I(f"s_add_u32 s{sIt}, s{sIt}, 1")
        a.I("s_mov_b64 exec, s[60:61]")
        a.I("s_and_b32 s62, vcc_lo, 0xff")
        a.I(f"s_cmp_lt_u32 s{sIt}, 0x8000")
        a.I("s_cselect_b32 s62, s62, 0xff")
        a.I(f"s_bitcmp1_b32 s62, {src}")
        a.I(f"s_cbranch_scc1 L_T_h{src}")
        a.I("s_sleep 1")
        a.I(f"s_branch L_T_w{src}")
        a.L(f"L_T_h{src}")
        a.I(f"s_add_u32 s{sBq}, s{sA}, {src*12288}")
        a.I(f"buffer_load_dwordx4 {vr(8+src*8,4)}, v{vB}, s[{SPT}:{SPT+3}], s{sBq} offen{cfg.part_ld_pol}")
        a.I(f"buffer_load_dwordx4 {vr(8+src*8+4,4)}, v{vB}, s[{SPT}:{SPT+3}], s{sBq} offen offset:1024{cfg.part_ld_pol}")
    stamp(a, 246); stamp(a, 246, 1); dbg_stamp(a, 246)
    a.I("s_waitcnt lgkmcnt(0)")
    srd(a, SOUT, 58, 16*96*1024*2)
    a.I(f"s_lshl_b32 s{sBq}, s{sJ}, 4")
    a.I(f"s_mul_i32 s{sA}, s{S_B}, 96")
    a.I(f"s_add_u32 s{sA}, s{sA}, s{sBq}")
    a.I(f"s_lshl_b32 s{sA}, s{sA}, 11")
    a.I(f"s_lshl_b32 s{sBq}, s{S_P}, 10")
    a.I(f"s_add_u32 s{sA}, s{sA}, s{sBq}")
    a.I(f"s_lshl_b32 s{sBq}, s{S_MJ}, 7")
    a.I(f"s_add_u32 s{sA}, s{sA}, s{sBq}")
    a.I(f"v_and_b32 v2, 15, v{vL}")
    a.I("v_lshlrev_b32 v2, 11, v2")
    a.I(f"v_lshrrev_b32 v3, 4, v{vL}")
    a.I("v_lshl_add_u32 v2, v3, 3, v2")
    RA = 80
    for src in range(8):
        a.I(f"s_waitcnt vmcnt({14 - 2*src})")
        for d in range(8):
            r = 8 + src*8 + d
            if src == 0:
                a.I(f"v_lshlrev_b32 v{RA+2*d}, 16, v{r}")
                a.I(f"v_and_b32 v{RA+2*d+1}, 0xffff0000, v{r}")
            else:
                a.I(f"v_lshlrev_b32 v4, 16, v{r}")
                a.I(f"v_and_b32 v5, 0xffff0000, v{r}")
                a.I(f"v_add_f32 v{RA+2*d}, v{RA+2*d}, v4")
                a.I(f"v_add_f32 v{RA+2*d+1}, v{RA+2*d+1}, v5")
    for d in range(8):
        a.I(f"v_cvt_pk_bf16_f32 v{8+d}, v{RA+2*d}, v{RA+2*d+1}")
    for e4 in range(4):
        a.I(f"buffer_store_dwordx2 v[{8+2*e4}:{9+2*e4}], v2, s[{SOUT}:{SOUT+3}], s{sA} offen offset:{e4*32}")
    a.I("s_waitcnt vmcnt(0)")
    stamp(a, 246); stamp(a, 246, 1); dbg_stamp(a, 246)
    a.I("s_waitcnt vmcnt(0)")
    a.L("L_k1_end")
    a.I("s_endpgm")

def gen_k2(a):
    a.I("s_cmp_ge_u32 s2, 256")
    a.I("s_cbranch_scc1 L_k2_end")
    a.I("s_load_dwordx2 s[4:5], s[0:1], 80")
    a.I("s_load_dwordx2 s[6:7], s[0:1], 96")
    if cfg.dbgst: a.I("s_memrealtime s[34:35]")
    a.I("v_lshrrev_b32 v1, 6, v0")
    a.I("v_and_b32 v0, 63, v0")
    a.I("v_readfirstlane_b32 s20, v1")
    a.I("s_waitcnt lgkmcnt(0)")
    srd(a, 8, 6, PART_BYTES)
    srd(a, 12, 4, 16*96*1024*2)
    a.I("s_mul_i32 s21, s2, 98304")
    a.I("s_lshl_b32 s22, s20, 11")
    a.I("s_add_u32 s21, s21, s22")
    a.I("v_lshlrev_b32 v1, 4, v0")
    for src in range(8):
        a.I(f"s_add_u32 s23, s21, {src*12288}")
        a.I(f"buffer_load_dwordx4 {vr(8+src*8,4)}, v1, s[8:11], s23 offen{cfg.part_ld_pol}")
        a.I(f"buffer_load_dwordx4 {vr(8+src*8+4,4)}, v1, s[8:11], s23 offen offset:1024{cfg.part_ld_pol}")
    a.I("s_lshr_b32 s24, s2, 3")
    a.I("s_and_b32 s25, s2, 7")
    a.I("s_and_b32 s26, s24, 15")
    a.I("s_lshr_b32 s27, s24, 4")
    a.I("s_lshr_b32 s28, s20, 1")
    a.I("s_and_b32 s29, s20, 1")
    a.I("s_mul_i32 s26, s26, 96")
    a.I("s_lshl_b32 s28, s28, 5")
    a.I("s_add_u32 s26, s26, s28")
    a.I("s_lshl_b32 s26, s26, 11")
    a.I("s_lshl_b32 s27, s27, 10")
    a.I("s_lshl_b32 s25, s25, 7")
    a.I("s_lshl_b32 s29, s29, 6")
    a.I("s_add_u32 s26, s26, s27")
    a.I("s_add_u32 s26, s26, s25")
    a.I("s_add_u32 s26, s26, s29")
    a.I("v_and_b32 v2, 31, v0")
    a.I("v_lshlrev_b32 v2, 11, v2")
    a.I("v_lshrrev_b32 v3, 5, v0")
    a.I("v_lshl_add_u32 v2, v3, 5, v2")
    ACC = 80
    for src in range(8):
        a.I(f"s_waitcnt vmcnt({14 - 2*src})")
        for d in range(8):
            r = 8 + src*8 + d
            if src == 0:
                a.I(f"v_lshlrev_b32 v{ACC+2*d}, 16, v{r}")
                a.I(f"v_and_b32 v{ACC+2*d+1}, 0xffff0000, v{r}")
            else:
                a.I(f"v_lshlrev_b32 v4, 16, v{r}")
                a.I(f"v_and_b32 v5, 0xffff0000, v{r}")
                a.I(f"v_add_f32 v{ACC+2*d}, v{ACC+2*d}, v4")
                a.I(f"v_add_f32 v{ACC+2*d+1}, v{ACC+2*d+1}, v5")
    for d in range(8):
        a.I(f"v_cvt_pk_bf16_f32 v{8+d}, v{ACC+2*d}, v{ACC+2*d+1}")
    a.I("buffer_store_dwordx4 v[8:11], v2, s[12:15], s26 offen")
    a.I("buffer_store_dwordx4 v[12:15], v2, s[12:15], s26 offen offset:16")
    a.I("s_waitcnt vmcnt(0)")
    if cfg.dbgst:
        a.I("s_cmp_lg_u32 s2, 0")
        a.I("s_cbranch_scc1 L_k2_end")
        a.I("s_cmp_lg_u32 s20, 0")
        a.I("s_cbranch_scc1 L_k2_end")
        a.I("s_memrealtime s[36:37]")
        a.I("s_load_dwordx2 s[30:31], s[0:1], 88")
        a.I("s_waitcnt lgkmcnt(0)")
        a.I(f"s_add_u32 s8, s6, {40<<20}")
        a.I("s_addc_u32 s9, s7, 0")
        a.I("s_and_b32 s9, s9, 0xffff")
        a.I("s_mov_b32 s10, 256")
        a.I("s_mov_b32 s11, 0x20000")
        a.I("s_mov_b32 s12, s30")
        a.I("s_and_b32 s13, s31, 0xffff")
        a.I("s_mov_b32 s14, 64")
        a.I("s_mov_b32 s15, 0x20000")
        a.I("v_lshlrev_b32 v1, 2, v0")
        a.I("buffer_load_dword v2, v1, s[8:11], 0 offen sc1")
        a.I("s_waitcnt vmcnt(0)")
        a.I("v_mov_b32 v3, s34")
        a.I("v_cmp_eq_u32 vcc, 14, v0")
        a.I("s_nop 1")
        a.I("v_cndmask_b32 v2, v2, v3, vcc")
        a.I("v_mov_b32 v3, s36")
        a.I("v_cmp_eq_u32 vcc, 15, v0")
        a.I("s_nop 1")
        a.I("v_cndmask_b32 v2, v2, v3, vcc")
        a.I("buffer_store_dword v2, v1, s[12:15], 0 offen")
        a.I("s_waitcnt vmcnt(0)")
    a.L("L_k2_end")
    a.I("s_endpgm")

def kd(a, name, vgpr, sgpr):
    a.raw('.section .rodata,"a"')
    a.raw(".p2align 6")
    a.raw(f".amdhsa_kernel {name}")
    a.raw(f"  .amdhsa_next_free_vgpr {vgpr}")
    a.raw(f"  .amdhsa_next_free_sgpr {sgpr}")
    a.raw(f"  .amdhsa_accum_offset {(vgpr+3)//4*4}")
    a.raw("  .amdhsa_group_segment_fixed_size 0")
    a.raw("  .amdhsa_kernarg_size 104")
    a.raw("  .amdhsa_user_sgpr_count 2")
    a.raw("  .amdhsa_user_sgpr_kernarg_segment_ptr 1")
    a.raw("  .amdhsa_system_sgpr_workgroup_id_x 1")
    a.raw(".end_amdhsa_kernel")

def build():
    a = Asm()
    global K1
    if cfg.fused:
        K1 = NAME + "_kernel"
        a.raw(f"; @launch grid=(256,1,1) block=(512,1,1) lds={LDS_BYTES}")
    else:
        a.raw(f"; @launch kernel={K1} grid=(256,1,1) block=(512,1,1) lds={LDS_BYTES}")
        a.raw(f"; @launch kernel={K2} grid=(256,1,1) block=(384,1,1) lds=0")
    a.raw('.amdgcn_target "amdgcn-amd-amdhsa--gfx950"')
    a.raw(".text")
    a.raw(f".globl {K1}")
    a.raw(".p2align 8")
    a.raw(f".type {K1},@function")
    a.L(K1)
    setup_common(a)
    gen_loader(a, True)
    gen_loader(a, False)
    gen_G(a)
    gen_A(a)
    gen_tail(a)
    if not cfg.fused:
        a.raw(f".globl {K2}")
        a.raw(".p2align 8")
        a.raw(f".type {K2},@function")
        a.L(K2)
        gen_k2(a)
    kd(a, K1, 256, 102 if (cfg.stamps or cfg.dbgst) else 84)
    if not cfg.fused:
        a.raw(".text")
        kd(a, K2, 96, 40)
    return a

if __name__ == "__main__":
    for arg in sys.argv[2:]:
        k, v = arg.split("=", 1)
        cur = getattr(cfg, k)
        if isinstance(cur, bool): v = v in ("1", "True", "true")
        elif isinstance(cur, int): v = int(v)
        elif isinstance(cur, float): v = float(v)
        else: v = v.replace("_", " ")
        setattr(cfg, k, v)
    a = build()
    out = sys.argv[1] if len(sys.argv) > 1 else f"cdna_kernels/{NAME}.s"
    open(out, "w").write(a.text())
    probs = check_file(a.lines)
    for p in probs: print("HAZARD", p)
    print("wrote", out, len(a.lines), "lines;", len(probs), "hazard reports")
```

```python
import struct, math, sys
from asmlib import Asm, vr, sr, check_file

NAME = "concat_heads__mha_block_cached__gqa_block_cached__near_ridge"
K1 = "attn_kernel"
K2 = "reduce_kernel"

def f2u(x): return struct.unpack("<I", struct.pack("<f", x))[0]
CSCALE = math.log2(math.e) / math.sqrt(128.0)

KR = 0; VR = 32768; WR = 65536; QH = 98304; XS = 98304
OS = [122880, 98304, 65536, 0]
STAGE = [24576, 32768, 40960, 49152, 57344, 90112, 147456, 155648]
LDS_BYTES = 163840
PART_BYTES = 32 * 64 * 12288

class Cfg:
    kv_pol = " nt"
    wq_pol = " nt"
    x_pol = ""
    wo_pol = ""
    part_st_pol = " sc1"
    part_ld_pol = " sc1"
    thresh = 8.0
    debug_dump = False
    prio_a = 0
    stamps = 0
    nokv = False
    nog = False
    cwstep = 11
    codewarm = False
    k0early = 9
    xsched = 1
    wfirst = True
    ldprio = 0
    tailst = False
    ghalf = 0
    t_nowait = False
    t_contig = False
    t_nodma = False
    t_nord = False
    t_early = False
    wo_fake = False
    dbgwave = 0
    dbgwg = 0
    part_off = 0
    fused = True
    noa = False
    nogr = False
    nowq = False
    dbgst = False

cfg = Cfg()

S_WAVE = 20; S_XCD = 21; S_SLOT = 22; S_P = 23; S_B = 24; S_HQ = 25; S_HB = 26; S_RHO = 27; S_MJ = 28
P_X = 8; P_K = 10; P_V = 12; P_WQ = 14; P_WO = 16; P_WS = 18

def srd(a, dst, ptr, size):
    a.I(f"s_mov_b32 s{dst}, s{ptr}")
    a.I(f"s_and_b32 s{dst+1}, s{ptr+1}, 0xffff")
    a.I(f"s_mov_b32 s{dst+2}, {hex(size)}")
    a.I(f"s_mov_b32 s{dst+3}, 0x20000")

def setup_common(a):
    a.I("s_cmp_ge_u32 s2, 256")
    a.I("s_cbranch_scc1 L_k1_end")
    a.I(f"s_and_b32 s{S_XCD}, s2, 7")
    a.I(f"s_lshr_b32 s{S_SLOT}, s2, 3")
    a.I(f"s_lshr_b32 s{S_P}, s{S_XCD}, 2")
    a.I(f"s_mul_i32 s3, s{S_P}, 40")
    a.I("s_add_u32 s4, s0, s3")
    a.I("s_addc_u32 s5, s1, 0")
    a.I("s_load_dwordx8 s[8:15], s[4:5], 0")
    a.I(f"s_load_dwordx2 s[{P_WO}:{P_WO+1}], s[4:5], 32")
    a.I(f"s_load_dwordx2 s[{P_WS}:{P_WS+1}], s[0:1], 96")
    a.I("v_lshrrev_b32 v1, 6, v0")
    a.I("v_and_b32 v0, 63, v0")
    a.I(f"v_readfirstlane_b32 s{S_WAVE}, v1")
    a.I(f"s_lshr_b32 s{S_B}, s{S_SLOT}, 1")
    a.I(f"s_and_b32 s{S_HQ}, s{S_SLOT}, 1")
    a.I(f"s_and_b32 s3, s{S_XCD}, 3")
    a.I("s_lshl_b32 s3, s3, 1")
    a.I(f"s_add_u32 s{S_MJ}, s3, s{S_HQ}")
    a.I(f"s_lshl_b32 s{S_HB}, s{S_MJ}, 2")
    a.I(f"s_and_b32 s{S_RHO}, s{S_B}, 3")
    a.I(f"s_lshl_b32 s{S_RHO}, s{S_RHO}, 2")
    a.I("s_waitcnt lgkmcnt(0)")
    dbg_setup(a)
    a.I(f"s_cmp_lt_u32 s{S_WAVE}, 3")
    a.I("s_cbranch_scc1 L_roleA")
    a.I(f"s_cmp_eq_u32 s{S_WAVE}, 3")
    a.I("s_cbranch_scc1 L_roleLK")
    a.I(f"s_cmp_eq_u32 s{S_WAVE}, 7")
    a.I("s_cbranch_scc1 L_roleLV")
    a.I("s_branch L_roleG")

def gen_loader(a, isK):
    tag = "LK" if isK else "LV"
    D = 13 if isK else 14
    a.L(f"L_role{tag}")
    if cfg.ldprio: a.I(f"s_setprio {cfg.ldprio}")
    SKV = 32; SW = 36
    srd(a, SKV, P_K if isK else P_V, 0x4000000)
    srd(a, SW, P_WQ, 0x400000)
    sKB = 48; sT = 49; sTau = 50; sN = 51; sA = 52; sBq = 53; sWrow = 54
    a.I(f"s_lshl_b32 s{sKB}, s{S_B}, 5")
    a.I(f"s_add_u32 s{sKB}, s{sKB}, s{S_HB}")
    a.I(f"s_lshl_b32 s{sKB}, s{sKB}, 17")
    a.I("v_and_b32 v1, 15, v0")
    a.I("v_lshrrev_b32 v2, 4, v0")
    if isK:
        for j in range(4):
            a.I(f"v_add_u32 v3, {4*j}, v2")
            a.I("v_xor_b32 v3, v1, v3")
            a.I("v_lshlrev_b32 v3, 4, v3")
            a.I(f"v_lshl_add_u32 v{4+j}, v2, 8, v3")
    else:
        for j in range(4):
            a.I(f"v_add_u32 v3, {4*(j & 1)}, v2")
            a.I("v_lshlrev_b32 v3, 1, v3")
            a.I("v_xor_b32 v3, v1, v3")
            a.I("v_lshlrev_b32 v3, 4, v3")
            a.I(f"v_lshl_add_u32 v{4+j}, v2, 8, v3")
    a.I("v_lshlrev_b32 v3, 2, v2")
    a.I("v_xor_b32 v3, v1, v3")
    a.I("v_lshlrev_b32 v3, 4, v3")
    a.I("v_lshlrev_b32 v9, 13, v2")
    a.I("v_add_u32 v8, v9, v3")
    i0 = 0 if isK else 4
    LB = KR if isK else VR

    def issue_w():
        a.I(f"s_add_u32 s{sA}, s{S_RHO}, s{sTau}")
        a.I(f"s_and_b32 s{sA}, s{sA}, 15")
        a.I(f"s_lshl_b32 s{sA}, s{sA}, 18")
        a.I(f"s_lshr_b32 s{sBq}, s{sTau}, 4")
        a.I(f"s_add_u32 s{sBq}, s{sBq}, s{S_HB}")
        a.I(f"s_lshl_b32 s{sBq}, s{sBq}, 8")
        a.I(f"s_add_u32 s{sA}, s{sA}, s{sBq}")
        a.I(f"s_add_u32 s{sA}, s{sA}, {i0*4*8192}")
        a.I(f"s_and_b32 s{sBq}, s{sTau}, 3")
        a.I(f"s_lshl_b32 s{sBq}, s{sBq}, 13")
        a.I(f"s_add_u32 s{sBq}, s{sBq}, {WR + i0*1024}")
        for i in range(4):
            a.I(f"s_add_u32 m0, s{sBq}, {i*1024}")
            if i: a.I(f"s_add_u32 s{sA}, s{sA}, 32768")
            else: a.I("s_nop 0")
            a.I(f"buffer_load_dwordx4 v8, s[{SW}:{SW+3}], s{sA} offen{cfg.wq_pol} lds")
        a.I(f"s_add_u32 s{sTau}, s{sTau}, 1")

    def issue_kv():
        a.I(f"s_lshl_b32 s{sA}, s{sT}, 13")
        a.I(f"s_add_u32 s{sA}, s{sA}, s{sKB}")
        a.I(f"s_and_b32 s{sBq}, s{sT}, 3")
        a.I(f"s_lshl_b32 s{sBq}, s{sBq}, 13")
        for half in range(2):
            if cfg.nokv: break
            a.I(f"s_add_u32 m0, s{sBq}, {LB + half*4096}")
            if half: a.I(f"s_add_u32 s{sA}, s{sA}, 4096")
            else: a.I("s_nop 0")
            for j in range(4):
                off = f" offset:{j*1024}" if j else ""
                a.I(f"buffer_load_dwordx4 v{4+j}, s[{SKV}:{SKV+3}], s{sA} offen{off}{cfg.kv_pol} lds")
        a.I(f"s_add_u32 s{sT}, s{sT}, 1")

    stamp_setup(a)
    a.I(f"s_mov_b32 s{sT}, 0")
    a.I(f"s_mov_b32 s{sTau}, 0")
    pstamp(a, 20)
    for _ in range(4): issue_w()
    pstamp(a, 20)
    a.I(f"s_waitcnt vmcnt({12 + (1 if cfg.stamps == 3 else 0)})")
    pstamp(a, 20)
    a.I("s_barrier")
    a.I("s_waitcnt vmcnt(8)")
    WLAST = 16 if cfg.nowq else 59
    def has_kv(n):
        if cfg.nokv: return False
        if isK and cfg.k0early:
            return n == cfg.k0early or (D + 1 <= n <= D + 63)
        return D <= n <= D + 63
    def cnt(n):
        if n < 0: return 4
        return (4 if n <= WLAST else 0) + (8 if has_kv(n) else 0)
    phases = []
    for n in range(79 if isK else 80):
        key = (has_kv(n), n <= WLAST, cnt(n) + cnt(n - 1))
        if phases and phases[-1][0] == key: phases[-1][2] = n
        else: phases.append([key, n, n])
    for pi, (key, n0, n1) in enumerate(phases):
        kv, w, N = key
        cntn = n1 - n0 + 1
        if cntn > 1:
            a.I(f"s_mov_b32 s{sN}, {cntn}")
            a.L(f"L_{tag}_ph{pi}")
        a.I("s_barrier")
        stamp(a, 20)
        if cfg.wfirst:
            if w: issue_w()
            if kv: issue_kv()
        else:
            if kv: issue_kv()
            if w: issue_w()
        stamp(a, 20)
        a.I(f"s_waitcnt vmcnt({N + (7 if cfg.stamps == 2 else 0)})")
        stamp(a, 20)
        if cntn > 1:
            a.I(f"s_sub_u32 s{sN}, s{sN}, 1")
            a.I(f"s_cmp_lg_u32 s{sN}, 0")
            a.I(f"s_cbranch_scc1 L_{tag}_ph{pi}")
    if not isK: a.I("s_mov_b32 s54, 2")
    a.I("s_branch L_tail_pre" if isK else "s_branch L_tail_mm")

STAMP_BASE = 32 << 20
def stamp_setup(a):
    if not cfg.stamps: return
    a.I(f"s_mov_b32 s92, s{P_WS}")
    a.I(f"s_and_b32 s93, s{P_WS+1}, 0xffff")
    a.I(f"s_mov_b32 s94, {hex(STAMP_BASE + (2<<20))}")
    a.I("s_mov_b32 s95, 0x20000")
    a.I("s_lshl_b32 s96, s2, 3")
    a.I(f"s_add_u32 s96, s96, s{S_WAVE}")
    a.I("s_lshl_b32 s96, s96, 10")
    a.I(f"s_add_u32 s96, s96, {STAMP_BASE}")
def stamp(a, vtmp, level=2):
    if cfg.stamps != level: return
    a.I("s_memrealtime s[98:99]")
    if level == 1: a.I("s_memtime s[100:101]")
    a.I("s_waitcnt lgkmcnt(0)")
    a.I(f"v_mov_b32 v{vtmp}, s98")
    a.I(f"v_mov_b32 v{vtmp+1}, 0")
    a.I(f"buffer_store_dword v{vtmp}, v{vtmp+1}, s[92:95], s96 offen")
    if level == 1:
        a.I(f"v_mov_b32 v{vtmp}, s100")
        a.I(f"buffer_store_dword v{vtmp}, v{vtmp+1}, s[92:95], s96 offen offset:4")
        a.I("s_add_u32 s96, s96, 4")
    a.I("s_add_u32 s96, s96, 4")

def pstamp(a, v):
    stamp(a, v, 3)
def dbg_setup(a):
    if not cfg.dbgst: return
    a.I("s_load_dwordx2 s[90:91], s[0:1], 88")
    a.I("s_waitcnt lgkmcnt(0)")
    a.I("s_mov_b32 s92, s90")
    a.I("s_and_b32 s93, s91, 0xffff")
    a.I("s_mov_b32 s94, 0")
    a.I("s_mov_b32 s96, 0")
    a.I(f"s_cmp_lg_u32 s{S_WAVE}, {cfg.dbgwave}")
    a.I("s_cbranch_scc1 L_dbg_done")
    a.I(f"s_cmp_eq_u32 s2, {cfg.dbgwg}")
    a.I("s_cselect_b32 s94, 64, 0")
    a.L("L_dbg_done")
    a.I("s_mov_b32 s95, 0x20000")
def dbg_stamp(a, vtmp):
    if not cfg.dbgst: return
    a.I("s_memrealtime s[98:99]")
    a.I("s_waitcnt lgkmcnt(0)")
    a.I(f"v_mov_b32 v{vtmp}, s98")
    a.I(f"v_mov_b32 v{vtmp+1}, 0")
    a.I(f"buffer_store_dword v{vtmp}, v{vtmp+1}, s[92:95], s96 offen")
    a.I("s_add_u32 s96, s96, 4")

GO_OFF = 26 << 20
def go_srd(a, dst):
    a.I(f"s_add_u32 s{dst}, s{P_WS}, {GO_OFF}")
    a.I(f"s_addc_u32 s{dst+1}, s{P_WS+1}, 0")
    a.I(f"s_and_b32 s{dst+1}, s{dst+1}, 0xffff")
    a.I(f"s_mov_b32 s{dst+2}, {256*128}")
    a.I(f"s_mov_b32 s{dst+3}, 0x20000")

def mfma(a, d, A, B, c=None):
    cs = vr(d, 4) if c is None else (c if isinstance(c, str) else vr(c, 4))
    a.I(f"v_mfma_f32_16x16x32_bf16 {vr(d,4)}, {vr(A,4)}, {vr(B,4)}, {cs}")

def kpattern_addr(a, dst, n):
    a.I("v_and_b32 v1, 15, v0")
    a.I("v_lshrrev_b32 v2, 4, v0")
    a.I("v_xor_b32 v3, v1, v2")
    a.I("v_lshlrev_b32 v1, 8, v1")
    for k in range(n):
        a.I(f"v_xor_b32 v2, {4*k}, v3")
        a.I(f"v_lshl_add_u32 v{dst+k}, v2, 4, v1")

def gen_G(a):
    a.L("L_roleG")
    X = 0; QA = 128; WF = 192; vWA = 224; vXA = 228; vXO = 236; vL16 = 240; vLane = 241
    SX = 32
    sW = 48; sA = 49; sBq = 50; sU = 51; sXb = 52; sC = 56; sPi = 53
    a.I(f"s_sub_u32 s{sW}, s{S_WAVE}, 4")
    a.I(f"s_mov_b32 s{sC}, {hex(f2u(CSCALE))}")
    a.I(f"s_mov_b32 s{sC+1}, {hex(f2u(CSCALE))}")
    a.I(f"v_mov_b32 v{vLane}, v0")
    a.I(f"v_lshlrev_b32 v{vL16}, 4, v0")
    kpattern_addr(a, vXA, 4)
    a.I(f"s_lshl_b32 s{sA}, s{sW}, 14")
    a.I(f"s_add_u32 s{sA}, s{sA}, {XS}")
    for k in range(4):
        a.I(f"v_add_u32 v{vXA+k}, s{sA}, v{vXA+k}")
    a.I("v_and_b32 v1, 15, v0")
    a.I("v_lshrrev_b32 v2, 4, v0")
    a.I("v_lshrrev_b32 v3, 2, v1")
    a.I("v_lshl_add_u32 v5, v2, 3, v3")
    a.I("v_lshlrev_b32 v5, 8, v5")
    a.I("v_and_b32 v6, 3, v1")
    a.I("v_lshl_add_u32 v5, v6, 4, v5")
    a.I(f"v_add_u32 v5, {WR}, v5")
    for i in range(4):
        a.I(f"v_xor_b32 v6, {i}, v3")
        a.I(f"v_lshl_add_u32 v{vWA+i}, v6, 6, v5")
    stamp_setup(a)
    pstamp(a, 246)
    pstamp(a, 246)

    def x_reads(piece):
        if piece == 2:
            for k in range(4): a.I(f"v_subrev_u32 v{vXA+k}, {XS}, v{vXA+k}")
        for t in range(4):
            for sb in range(2):
                a.I(f"ds_read_b128 {vr(X + piece*32 + t*8 + sb*4, 4)}, v{vXA+t} offset:{(piece&1)*8192 + sb*4096}")
    def rd(slot, i):
        return [f"ds_read_b64_tr_b16 {vr(WF + i*4 + sec*2, 2)}, v{vWA + (i >> 1)} offset:{slot*8192 + sec*1024 + (i & 1)*8}" for sec in range(2)]
    def qa(i, sb):
        return QA + (((i >> 1)*2 + sb)*2 + (i & 1))*4

    def task(t, first_unit, nxt=True):
        stamp(a, 246)
        a.I("s_barrier")
        stamp(a, 246)
        if cfg.nogr and not first_unit: return
        ns = (t + 1) & 3
        xb = X + t*8
        for i in range(8):
            if not (cfg.nog and not first_unit) and not (cfg.ghalf and not first_unit and i >= 8 - cfg.ghalf):
                for sb in range(2):
                    mfma(a, qa(i, sb), WF + i*4, xb + 4*sb, "0" if t == 0 else None)
            if nxt:
                for o in rd(ns, i): a.I(o)
        if first_unit and t % 4 == 3 and t < 15:
            x_reads(t // 4 + 1)
        a.I("s_waitcnt lgkmcnt(0)")
        if first_unit: pstamp(a, 246)

    def handoff():
        a.I(f"s_cmp_lt_u32 s{sU}, 3")
        a.I(f"s_cselect_b32 s{sA}, {QH//8192}, {WR//8192}")
        a.I(f"s_add_u32 s{sA}, s{sA}, s{sW}")
        a.I(f"s_lshl_b32 s{sA}, s{sA}, 13")
        a.I(f"v_add_u32 v242, s{sA}, v{vL16}")
        a.I("s_nop 3")
        for k in range(8):
            for j in range(4):
                a.I(f"v_pk_mul_f32 {vr(QA+8*k+2*j,2)}, {vr(QA+8*k+2*j,2)}, s[{sC}:{sC+1}]")
            for j in range(4):
                a.I(f"v_cvt_pk_bf16_f32 v{QA+4*k+j}, v{QA+8*k+2*j}, v{QA+8*k+2*j+1}")
            a.I(f"ds_write_b128 v242, {vr(QA+4*k,4)} offset:{k*1024}")
        a.I("s_waitcnt lgkmcnt(0)")

    a.I("s_barrier")
    pstamp(a, 246)
    x_reads(0)
    for i in range(8):
        for o in rd(0, i): a.I(o)
    a.I("s_waitcnt lgkmcnt(0)")
    pstamp(a, 246)
    a.I(f"s_mov_b32 s{sU}, 0")
    for t in range(16): task(t, True)
    handoff()
    a.I(f"s_mov_b32 s{sU}, 1")
    a.L("L_G_unit")
    for t in range(15): task(t, False)
    task(15, False)
    handoff()
    a.I(f"s_add_u32 s{sU}, s{sU}, 1")
    a.I(f"s_cmp_lt_u32 s{sU}, 4")
    a.I("s_cbranch_scc1 L_G_unit")
    a.I("s_mov_b32 s54, 18")
    a.I("s_branch L_tail_mm")

def slab_voffsets(a, VO, lane, t):
    for jp in range(4):
        a.I(f"v_lshrrev_b32 v{t}, 5, v{lane}")
        a.I(f"v_bfe_u32 v{t+1}, v{lane}, 1, 3")
        a.I(f"v_add_u32 v{t+2}, {2*jp}, v{t}")
        a.I(f"v_xor_b32 v{t+1}, v{t+1}, v{t+2}")
        a.I(f"v_lshlrev_b32 v{t}, 10, v{t}")
        a.I(f"v_bfe_u32 v{t+2}, v{lane}, 4, 1")
        a.I(f"v_lshl_add_u32 v{t}, v{t+2}, 9, v{t}")
        a.I(f"v_lshrrev_b32 v{t+2}, 2, v{t+1}")
        a.I(f"v_lshl_add_u32 v{t}, v{t+2}, 8, v{t}")
        a.I(f"v_and_b32 v{t+2}, 3, v{t+1}")
        a.I(f"v_lshl_add_u32 v{t}, v{t+2}, 5, v{t}")
        a.I(f"v_and_b32 v{t+2}, 1, v{lane}")
        a.I(f"v_lshl_add_u32 v{VO+jp}, v{t+2}, 4, v{t}")

def tail_srds(a):
    srd(a, 32, P_WO, 0x400000)
    a.I(f"s_add_u32 s36, s{P_WS}, {cfg.part_off}")
    a.I(f"s_addc_u32 s37, s{P_WS+1}, 0")
    a.I("s_and_b32 s37, s37, 0xffff")
    a.I(f"s_mov_b32 s38, {hex(PART_BYTES)}")
    a.I("s_mov_b32 s39, 0x20000")
    go_srd(a, 64)

def gen_A(a):
    a.L("L_roleA")
    O = 0; Q = 64; S = [96, 112]; NM = 128; P = [136, 144]; KF = 152; VF = 184
    vKA = 216; vVA = 220; l0 = 228; mx = 232; t0 = 233; inv = 234; vL16 = 242; vAd = 243; t1 = 238; t2 = 239; t3 = 240
    sIt = 48; sU = 49; sA = 50; sBq = 51; sW = S_WAVE
    if cfg.prio_a: a.I(f"s_setprio {cfg.prio_a}")
    stamp_setup(a)
    stamp(a, 246)
    stamp(a, 246, 1)
    dbg_stamp(a, 246)
    SX = 44; sXb = 58; sPi = 59
    srd(a, SX, P_X, 16*96*512*2)
    a.I("v_and_b32 v1, 15, v0")
    a.I("v_lshrrev_b32 v2, 4, v0")
    for j in range(4):
        a.I(f"v_add_u32 v3, {4*j}, v2")
        a.I("v_xor_b32 v3, v1, v3")
        a.I("v_lshlrev_b32 v3, 4, v3")
        a.I(f"v_lshl_add_u32 v{8+j}, v2, 10, v3")
    a.I(f"s_mul_i32 s{sXb}, s{S_B}, 98304")
    a.I(f"s_lshl_b32 s{sA}, s{sW}, 15")
    a.I(f"s_add_u32 s{sXb}, s{sXb}, s{sA}")
    def issue_x(piece, i0=0, i1=8):
        a.I(f"s_lshr_b32 s{sPi}, s{S_RHO}, 2")
        a.I(f"s_add_u32 s{sPi}, s{sPi}, {piece}")
        a.I(f"s_and_b32 s{sPi}, s{sPi}, 3")
        a.I(f"s_lshl_b32 s{sPi}, s{sPi}, 8")
        a.I(f"s_add_u32 s{sA}, s{sXb}, s{sPi}")
        if i0: a.I(f"s_add_u32 s{sA}, s{sA}, {i0*4096}")
        a.I(f"s_lshl_b32 s{sBq}, s{sW}, 14")
        a.I(f"s_add_u32 s{sBq}, s{sBq}, {(XS if piece < 2 else 0) + (piece & 1)*8192}")
        for i in range(i0, i1):
            a.I(f"s_add_u32 m0, s{sBq}, {i*1024}")
            if i > i0: a.I(f"s_add_u32 s{sA}, s{sA}, 4096")
            else: a.I("s_nop 0")
            a.I(f"buffer_load_dwordx4 v{8 + (i & 3)}, s[{SX}:{SX+3}], s{sA} offen{cfg.x_pol} lds")
    issue_x(0)
    sG = 55; sTrig = 54; vRdy = 245
    a.I(f"s_lshl_b32 s{sG}, s{S_P}, 4")
    a.I(f"s_add_u32 s{sG}, s{sG}, s{S_B}")
    a.I(f"s_mov_b32 s{sTrig}, 0xffff")
    a.I("s_load_dwordx2 s[56:57], s[0:1], 88")
    a.I("s_waitcnt lgkmcnt(0)")
    srd(a, 40, 56, 256)
    a.I(f"v_lshlrev_b32 v{vL16}, 4, v0")
    a.I("v_mov_b32 v255, v0")
    slab_voffsets(a, 248, 255, 1)
    tail_srds(a)
    kpattern_addr(a, vKA, 4)
    a.I("v_and_b32 v1, 15, v0")
    a.I("v_lshrrev_b32 v2, 4, v0")
    a.I("v_lshrrev_b32 v3, 2, v1")
    a.I("v_lshl_add_u32 v4, v2, 2, v3")
    a.I("v_lshlrev_b32 v5, 8, v4")
    a.I("v_and_b32 v6, 3, v1")
    a.I("v_lshl_add_u32 v5, v6, 3, v5")
    a.I(f"v_add_u32 v5, {VR}, v5")
    a.I("v_and_b32 v4, 7, v4")
    for i in range(8):
        a.I(f"v_xor_b32 v6, {i}, v4")
        a.I(f"v_lshl_add_u32 v{vVA+i}, v6, 5, v5")
    for j in range(4): a.I(f"v_mov_b32 v{l0+j}, 0")
    def handoff_setup():
        a.I(f"s_cmp_lg_u32 s{S_WAVE}, 0")
        a.I("s_cbranch_scc1 L_A_noreset")
        go_srd(a, 64)
        a.I(f"s_lshl_b32 s{sA}, s{sG}, 3")
        a.I(f"s_add_u32 s{sA}, s{sA}, s{S_MJ}")
        a.I(f"s_lshl_b32 s{sA}, s{sA}, 7")
        a.I("v_mov_b32 v1, 0")
        a.I("v_lshlrev_b32 v2, 2, v0")
        a.I("s_mov_b64 s[60:61], exec")
        a.I("s_mov_b64 exec, 0xff")
        a.I(f"buffer_store_dword v1, v2, s[64:67], s{sA} offen sc1")
        a.I("s_waitcnt vmcnt(0)")
        a.I("s_mov_b64 exec, 1")
        a.I("v_mov_b32 v2, 1")
        a.I(f"s_lshl_b32 s{sA}, s{sG}, 2")
        a.I(f"s_add_u32 s{sA}, s{sA}, 128")
        a.I(f"buffer_atomic_add v2, v1, s[40:43], s{sA} offen")
        a.I("s_mov_b64 exec, s[60:61]")
        a.I("s_lshr_b32 s3, s2, 3")
        a.I("s_mul_i32 s3, s3, 3")
        a.I("s_lshr_b32 s3, s3, 3")
        a.I(f"s_add_u32 s{sTrig}, s3, 4")
        a.L("L_A_noreset")
    def code_warm():
        a.I("s_getpc_b64 s[60:61]")
        a.L("L_pc_here")
        a.I(f"s_sub_u32 s60, s60, L_pc_here-{K1}")
        a.I("s_subb_u32 s61, s61, 0")
        a.I("s_mov_b32 s68, s60")
        a.I("s_and_b32 s69, s61, 0xffff")
        a.I(f"s_mov_b32 s70, L_k1_end-{K1}")
        a.I("s_mov_b32 s71, 0x20000")
        a.I(f"s_lshl_b32 s{sA}, s{S_SLOT}, 11")
        a.I(f"s_sub_u32 s{sBq}, s{sW}, 1")
        a.I(f"s_lshl_b32 s{sBq}, s{sBq}, 10")
        a.I(f"s_add_u32 s{sA}, s{sA}, s{sBq}")
        a.I("v_lshlrev_b32 v12, 4, v0")
        a.I(f"s_cmp_eq_u32 s{sW}, 0")
        a.I("s_cbranch_scc1 L_nowarm")
        a.I(f"buffer_load_dwordx4 v[16:19], v12, s[68:71], s{sA} offen")
        a.L("L_nowarm")
    a.I("s_waitcnt vmcnt(0)")
    for n in range(-1, 16):
        stamp(a, 246)
        a.I("s_barrier")
        stamp(a, 246)
        XP = cfg.xsched
        if XP == 0:
            if n in (-1, 0, 1): issue_x(n + 2)
            if n == 2: a.I("s_waitcnt vmcnt(16)")
            if n == 6: a.I("s_waitcnt vmcnt(8)")
        elif XP == 1:
            if n in (-1, 0): issue_x(1, 4*(n+1), 4*(n+2))
            if 1 <= n <= 4: issue_x(2, 2*(n-1), 2*n)
            if 5 <= n <= 8: issue_x(3, 2*(n-5), 2*(n-4))
            if n == 2: a.I("s_waitcnt vmcnt(4)")
            if n == 6: a.I("s_waitcnt vmcnt(4)")
        elif XP == 2:
            if -1 <= n <= 1: issue_x(1, [0,3,6][n+1], [3,6,8][n+1])
            if 2 <= n <= 4: issue_x(2, [0,3,6][n-2], [3,6,8][n-2])
            if 5 <= n <= 7: issue_x(3, [0,3,6][n-5], [3,6,8][n-5])
            if n == 2: a.I("s_waitcnt vmcnt(3)")
            if n == 6: a.I("s_waitcnt vmcnt(6)")
        if n == 10: a.I("s_waitcnt vmcnt(0)")
        if n == 11: handoff_setup()
        if n == cfg.cwstep and cfg.codewarm: code_warm()

    rare_blocks = []

    def oacc(i, sb):
        return O + (((i >> 1)*2 + sb)*2 + (i & 1))*4
    def xreduce(v, op, tmp):
        a.I(f"v_mov_b32 v{tmp}, v{v}")
        a.I("s_nop 1")
        a.I(f"v_permlane16_swap_b32 v{v}, v{tmp}")
        a.I("s_nop 0")
        a.I(f"{op} v{v}, v{v}, v{tmp}")
        a.I(f"v_mov_b32 v{tmp}, v{v}")
        a.I("s_nop 1")
        a.I(f"v_permlane32_swap_b32 v{v}, v{tmp}")
        a.I("s_nop 0")
        a.I(f"{op} v{v}, v{v}, v{tmp}")

    def step(pos, tag, pv=True, pv_c0=False, sm=True, qk=True, first=False, fin_l=False, finalize=False, vrd=True, check=True):
        Sn = S[pos % 2]; Sc = S[(pos + 1) % 2]
        Pw = P[(pos + 1) % 2]; Pr = P[pos % 2]
        vslot = (pos + 3) % 4
        stamp(a, 246)
        a.I("s_barrier")
        stamp(a, 246)
        if first: dbg_stamp(a, 246)
        if first or tag == "_l0": stamp(a, 246, 1)
        if cfg.noa: return
        if first:
            a.I(f"s_cmp_lt_u32 s{sU}, 3")
            a.I(f"s_cselect_b32 s{sA}, {QH//8192}, {WR//8192}")
            a.I(f"s_add_u32 s{sA}, s{sA}, s{sW}")
            a.I(f"s_lshl_b32 s{sA}, s{sA}, 13")
            a.I(f"v_add_u32 v{vAd}, s{sA}, v{vL16}")
            for k in range(8):
                a.I(f"ds_read_b128 {vr(Q+4*k,4)}, v{vAd} offset:{k*1024}")
        if qk:
            for k in range(4):
                for kt in range(2):
                    a.I(f"ds_read_b128 {vr(KF+(k*2+kt)*4,4)}, v{vKA+k} offset:{pos*8192 + kt*4096}")
        if finalize:
            a.I(f"s_sub_u32 s{sA}, s{sU}, 1")
            a.I(f"s_lshl_b32 s{sA}, s{sA}, 3")
            a.I(f"s_lshr_b32 s{sA}, 0x80C11, s{sA}")
            a.I(f"s_and_b32 s{sA}, s{sA}, 0xff")
            a.I(f"s_add_u32 s{sA}, s{sA}, s{sW}")
            a.I(f"s_lshl_b32 s{sA}, s{sA}, 13")
            a.I(f"v_add_u32 v{vAd}, s{sA}, v{vL16}")
        def valu_gap(g):
            if not sm: return
            a.I(f"v_exp_f32 v{Sc+g}, v{Sc+g}")
            if g >= 1:
                e = g - 1
                lr = l0 + 2*(e >> 3) + (e & 1)
                a.I(f"v_add_f32 v{lr}, v{lr}, v{Sc+e}")
            if g >= 2 and g % 2 == 0:
                j = g // 2 - 1
                a.I(f"v_cvt_pk_bf16_f32 v{Pw+j}, v{Sc+2*j}, v{Sc+2*j+1}")
        pv_mark = None
        for i in range(8):
            if pv:
                for sb in range(2):
                    mfma(a, oacc(i, sb), VF + i*4, Pr + 4*sb, "0" if pv_c0 else None)
                pv_mark = a.mark()
            valu_gap(i)
        nv = 0; nw = 0
        for k in range(8):
            kap, kt = k // 2, k % 2
            if qk:
                a.I(f"s_waitcnt lgkmcnt({min(15, 7 - k + nv + nw)})")
                for sb in range(2):
                    c = ("0" if first else vr(NM + 4*sb, 4)) if kap == 0 else None
                    mfma(a, Sn + (sb*2 + kt)*4, KF + k*4, Q + (kap*2 + sb)*4, c)
                qk_mark = a.mark()
            if vrd:
                for sec in range(2):
                    a.I(f"ds_read_b64_tr_b16 {vr(VF + k*4 + sec*2, 2)}, v{vVA+k} offset:{vslot*8192 + sec*4096}")
                    nv += 1
            valu_gap(8 + k)
            if finalize:
                if k == 0 and pv_mark is not None: a.pad_since(pv_mark, 8)
                sb = k & 1
                for j in range(4):
                    a.I(f"v_pk_mul_f32 {vr(O+8*k+2*j,2)}, {vr(O+8*k+2*j,2)}, {vr(inv+2*sb,2)}")
                for j in range(4):
                    a.I(f"v_cvt_pk_bf16_f32 v{O+4*k+j}, v{O+8*k+2*j}, v{O+8*k+2*j+1}")
                a.I(f"ds_write_b128 v{vAd}, {vr(O+4*k,4)} offset:{k*1024}")
                nw += 1
        if sm:
            a.I("s_nop 0")
            a.I(f"v_add_f32 v{l0+3}, v{l0+3}, v{Sc+15}")
            a.I(f"v_cvt_pk_bf16_f32 v{Pw+7}, v{Sc+14}, v{Sc+15}")
        if fin_l:
            for sb in range(2):
                a.I(f"v_add_f32 v{t0}, v{l0+2*sb}, v{l0+2*sb+1}")
                xreduce(t0, "v_add_f32", t1)
                a.I(f"v_rcp_f32 v{inv+2*sb}, v{t0}")
                a.I(f"v_mov_b32 v{l0+2*sb}, 0")
                a.I(f"v_mov_b32 v{inv+2*sb+1}, v{inv+2*sb}")
                a.I(f"v_mov_b32 v{l0+2*sb+1}, 0")
        if qk:
            a.pad_since(qk_mark, 8)
            if first:
                for sb in range(2):
                    b8 = Sn + 8*sb
                    a.I(f"v_max3_f32 v{mx}, v{b8}, v{b8+1}, v{b8+2}")
                    a.I(f"v_max3_f32 v{mx}, v{mx}, v{b8+3}, v{b8+4}")
                    a.I(f"v_max3_f32 v{mx}, v{mx}, v{b8+5}, v{b8+6}")
                    a.I(f"v_max_f32 v{mx}, v{mx}, v{b8+7}")
                    xreduce(mx, "v_max_f32", t0)
                    for j in range(8):
                        a.I(f"v_sub_f32 v{b8+j}, v{b8+j}, v{mx}")
                    for j in range(4):
                        a.I(f"v_sub_f32 v{NM+4*sb+j}, 0, v{mx}")
            else:
                a.I(f"v_max3_f32 v{mx}, v{Sn}, v{Sn+1}, v{Sn+2}")
                a.I(f"v_max3_f32 v{t1}, v{Sn+3}, v{Sn+4}, v{Sn+5}")
                a.I(f"v_max3_f32 v{mx}, v{mx}, v{Sn+6}, v{Sn+7}")
                a.I(f"v_max3_f32 v{t1}, v{t1}, v{Sn+8}, v{Sn+9}")
                a.I(f"v_max3_f32 v{mx}, v{mx}, v{Sn+10}, v{Sn+11}")
                a.I(f"v_max3_f32 v{t1}, v{t1}, v{Sn+12}, v{Sn+13}")
                a.I(f"v_max3_f32 v{mx}, v{mx}, v{Sn+14}, v{Sn+15}")
                a.I(f"v_max_f32 v{mx}, v{mx}, v{t1}")
                if check:
                    a.I(f"v_cmp_lt_f32 vcc, {hex(f2u(cfg.thresh))}, v{mx}")
                    a.I(f"s_cbranch_vccnz L_A_rare{tag}")
                    a.L(f"L_A_ret{tag}")
                    rare_blocks.append((tag, Sn, Pw, sm))
        a.I("s_waitcnt lgkmcnt(0)")

    a.I(f"s_mov_b32 s{sU}, 0")
    step(0, "_f0", pv=False, sm=False, first=True, vrd=False)
    step(1, "_f1", pv=False)
    a.I(f"s_mov_b32 s{sIt}, 0")
    a.I("s_branch L_A_b2")
    a.L("L_A_loop")
    a.I(f"s_lshl_b32 s{sA}, s{sU}, 2")
    a.I(f"s_add_u32 s{sA}, s{sA}, s{sIt}")
    a.I(f"s_cmp_lg_u32 s{sA}, s{sTrig}")
    a.I("s_cbranch_scc1 L_A_notrig")
    a.I(f"s_lshl_b32 s{sA}, s{sG}, 2")
    a.I(f"s_add_u32 s{sA}, s{sA}, 128")
    a.I("v_mov_b32 v252, 0")
    a.I(f"buffer_load_dword v253, v252, s[40:43], s{sA} offen sc1")
    a.L("L_A_notrig")
    a.I(f"s_cmp_lg_u32 s{sIt}, 0")
    a.I("s_cbranch_scc1 L_A_reg0")
    a.I(f"s_cmp_eq_u32 s{sU}, 4")
    a.I("s_cbranch_scc1 L_A_last")
    step(0, "_b0", first=True, fin_l=True)
    step(1, "_b1", finalize=True)
    a.L("L_A_b2")
    step(2, "_b2", pv_c0=True)
    a.I("s_branch L_A_reg3")
    a.L("L_A_reg0")
    step(0, "_0")
    step(1, "_1")
    step(2, "_2")
    a.L("L_A_reg3")
    step(3, "_3")
    a.I(f"s_add_u32 s{sIt}, s{sIt}, 1")
    a.I(f"s_cmp_eq_u32 s{sIt}, 4")
    a.I("s_cbranch_scc0 L_A_loop")
    a.I(f"s_mov_b32 s{sIt}, 0")
    a.I(f"s_add_u32 s{sU}, s{sU}, 1")
    a.I("s_branch L_A_loop")
    a.L("L_A_last")
    step(0, "_l0", qk=False, fin_l=True)
    step(1, "_l1", qk=False, sm=False, vrd=False, finalize=True)
    a.I("s_branch L_tail_ld")
    for tag, Sn, Pw, sm in rare_blocks:
        a.L(f"L_A_rare{tag}")
        a.I("s_nop 15")
        for sb in range(2):
            b8 = Sn + 8*sb
            a.I(f"v_max3_f32 v{mx}, v{b8}, v{b8+1}, v{b8+2}")
            a.I(f"v_max3_f32 v{mx}, v{mx}, v{b8+3}, v{b8+4}")
            a.I(f"v_max3_f32 v{mx}, v{mx}, v{b8+5}, v{b8+6}")
            a.I(f"v_max_f32 v{mx}, v{mx}, v{b8+7}")
            xreduce(mx, "v_max_f32", t0)
            a.I(f"v_max_f32 v{mx}, 0, v{mx}")
            a.I(f"v_ceil_f32 v{mx}, v{mx}")
            a.I(f"v_min_f32 v{t0}, 0x43480000, v{mx}")
            a.I(f"v_cvt_i32_f32 v{t0}, v{t0}")
            a.I(f"v_sub_u32 v{t0}, 0, v{t0}")
            a.I(f"v_ldexp_f32 v{t1}, 1.0, v{t0}")
            a.I(f"v_mov_b32 v{t2}, v{t1}")
            for j in range(8):
                a.I(f"v_sub_f32 v{b8+j}, v{b8+j}, v{mx}")
            for j in range(4):
                a.I(f"v_sub_f32 v{NM+4*sb+j}, v{NM+4*sb+j}, v{mx}")
            for kap in range(4):
                ob = O + (kap*2 + sb)*8
                for j in range(4):
                    a.I(f"v_pk_mul_f32 {vr(ob+2*j,2)}, {vr(ob+2*j,2)}, {vr(t1,2)}")
            a.I(f"v_mul_f32 v{l0+2*sb}, v{l0+2*sb}, v{t1}")
            a.I(f"v_mul_f32 v{l0+2*sb+1}, v{l0+2*sb+1}, v{t1}")
            for j in range(4):
                pr = Pw + 4*sb + j
                a.I(f"v_lshlrev_b32 v{mx}, 16, v{pr}")
                a.I(f"v_and_b32 v{t0}, 0xffff0000, v{pr}")
                a.I(f"v_mul_f32 v{mx}, v{mx}, v{t1}")
                a.I(f"v_mul_f32 v{t0}, v{t0}, v{t1}")
                a.I(f"v_cvt_pk_bf16_f32 v{pr}, v{mx}, v{t0}")
        a.I("s_nop 1")
        a.I(f"s_branch L_A_ret{tag}")

class LdsQ:
    def __init__(self): self.ops = []
    def issue(self, key): self.ops.append(key)
    def need(self, keys):
        last = max(len(self.ops) - 1 - self.ops[::-1].index(k) for k in keys)
        return len(self.ops) - 1 - last

SLAB = [[122880, 131072], [40960, 49152], [24576, 32768], [57344, 90112]]
def gen_tail(a):
    SWO = 32; SPT = 36; SDB = 40; SOUT = 44; SGO = 64
    sSt = 48; sA = 49; sBq = 50; sIt = 52; sRow = 53; sG = 55; sJ = 63
    vL = 255
    def tail_stamp_reset():
        if cfg.stamps:
            a.I("s_and_b32 s96, s96, 0xfffffc00")
            a.I(f"s_add_u32 s96, s96, {1000 if cfg.stamps == 2 else 512}")
    def part_srd():
        a.I(f"s_add_u32 s{SPT}, s{P_WS}, {cfg.part_off}")
        a.I(f"s_addc_u32 s{SPT+1}, s{P_WS+1}, 0")
        a.I(f"s_and_b32 s{SPT+1}, s{SPT+1}, 0xffff")
        a.I(f"s_mov_b32 s{SPT+2}, {hex(PART_BYTES)}")
        a.I(f"s_mov_b32 s{SPT+3}, 0x20000")
    def lane_id():
        a.I(f"v_mbcnt_lo_u32_b32 v{vL}, -1, 0")
        a.I(f"v_mbcnt_hi_u32_b32 v{vL}, -1, v{vL}")
    def group_id():
        a.I(f"s_lshl_b32 s{sG}, s{S_P}, 4")
        a.I(f"s_add_u32 s{sG}, s{sG}, s{S_B}")
    VO = 248
    sTab = 56; sG0 = 57
    def ld_slab(j0, nj, j0_reg=None):
        a.I(f"s_and_b32 s{sA}, s{sJ}, 15")
        a.I(f"s_add_u32 s{sA}, s{sA}, s{S_B}")
        a.I(f"s_and_b32 s{sA}, s{sA}, 15")
        a.I(f"s_lshl_b32 s{sA}, s{sA}, 15")
        if cfg.wo_fake: a.I(f"s_mov_b32 s{sA}, 0")
        a.I(f"s_lshr_b32 s{sBq}, s{sJ}, 4")
        a.I(f"s_xor_b32 s{sBq}, s{sBq}, s{S_B}")
        a.I(f"s_and_b32 s{sBq}, s{sBq}, 1")
        a.I(f"s_lshl_b32 s{sBq}, s{sBq}, 7")
        a.I(f"s_add_u32 s{sA}, s{sA}, s{sBq}")
        a.I(f"s_add_u32 s{sA}, s{sA}, s{sRow}")
        blk = [SLAB[sl][hf] // 8192 for sl in range(4) for hf in range(2)]
        lo = sum(blk[2*sl] << (8*sl) for sl in range(4)); hi = sum(blk[2*sl+1] << (8*sl) for sl in range(4))
        a.I(f"s_and_b32 s{sBq}, s{sJ}, 3")
        a.I(f"s_lshl_b32 s{sBq}, s{sBq}, 3")
        if j0_reg is None:
            for hf, tab in ((0, lo), (1, hi)):
                a.I(f"s_lshr_b32 s{sIt}, {hex(tab)}, s{sBq}")
                a.I(f"s_and_b32 s{sIt}, s{sIt}, 0xff")
                a.I(f"s_lshl_b32 s{sIt}, s{sIt}, 13")
                for j in range(8):
                    a.I(f"s_add_u32 m0, s{sIt}, {j*1024}")
                    if hf or j: a.I(f"s_add_u32 s{sA}, s{sA}, 2048")
                    else: a.I("s_nop 0")
                    a.I(f"buffer_load_dwordx4 v{VO + (j & 3)}, s[{SWO}:{SWO+3}], s{sA} offen{cfg.wo_pol} lds")
        else:
            a.I(f"s_lshr_b32 s{sIt}, s{sTab}, s{sBq}")
            a.I(f"s_and_b32 s{sIt}, s{sIt}, 0xff")
            a.I(f"s_lshl_b32 s{sIt}, s{sIt}, 13")
            a.I(f"s_add_u32 s{sIt}, s{sIt}, s{j0_reg}")
            a.I(f"s_add_u32 s{sA}, s{sA}, s{sG0}")
            for j in range(4):
                a.I(f"s_add_u32 m0, s{sIt}, {j*1024}")
                if j: a.I(f"s_add_u32 s{sA}, s{sA}, 2048")
                else: a.I("s_nop 0")
                a.I(f"buffer_load_dwordx4 v{VO + (j & 3)}, s[{SWO}:{SWO+3}], s{sA} offen{cfg.wo_pol} lds")
        a.I(f"s_add_u32 s{sJ}, s{sJ}, 1")

    a.L("L_tail_pre")
    a.I("s_load_dwordx2 s[60:61], s[0:1], 88")
    a.I("s_waitcnt lgkmcnt(0)")
    srd(a, SDB, 60, 256)
    lane_id()
    slab_voffsets(a, VO, vL, 10)
    tail_srds(a)
    a.I(f"s_lshl_b32 s{sRow}, s{S_HB}, 17")
    a.I(f"s_mov_b32 s{sJ}, 0")
    for n in (79, 80, 81):
        stamp(a, 246)
        a.I("s_barrier")
        stamp(a, 246)
        ld_slab(0, 16)
        stamp(a, 246)
    a.I("s_waitcnt vmcnt(16)")
    a.I("s_branch L_tail_ld2")
    a.L("L_tail_ld")
    a.I("s_setprio 0")
    a.I(f"s_lshl_b32 s{sRow}, s{S_HB}, 17")
    a.I(f"s_mov_b32 s{sJ}, 3")
    a.L("L_tail_ld2")
    group_id()
    a.I(f"s_cmp_lg_u32 s{S_WAVE}, 0")
    a.I("s_cbranch_scc1 L_T_rdy")
    a.I("s_waitcnt vmcnt(0)")
    a.I("v_readfirstlane_b32 s62, v253")
    a.I("s_cmp_ge_u32 s62, 8")
    a.I("s_cbranch_scc1 L_T_rdy")
    a.I(f"s_lshl_b32 s{sA}, s{sG}, 2")
    a.I(f"s_add_u32 s{sA}, s{sA}, 128")
    a.I(f"s_mov_b32 s{sIt}, 0")
    a.I("v_mov_b32 v252, 0")
    a.L("L_T_rdypoll")
    a.I(f"buffer_load_dword v253, v252, s[{SDB}:{SDB+3}], s{sA} offen sc1")
    a.I("s_waitcnt vmcnt(0)")
    a.I("v_readfirstlane_b32 s62, v253")
    a.I(f"s_add_u32 s{sIt}, s{sIt}, 1")
    a.I("s_cmp_ge_u32 s62, 8")
    a.I("s_cbranch_scc1 L_T_rdy")
    a.I(f"s_cmp_lt_u32 s{sIt}, 0x4000")
    a.I("s_cbranch_scc0 L_T_rdy")
    a.I("s_sleep 8")
    a.I("s_branch L_T_rdypoll")
    a.L("L_T_rdy")
    sJ0 = 51
    blk = [SLAB[sl][hf] // 8192 for sl in range(4) for hf in range(2)]
    lo = sum(blk[2*sl] << (8*sl) for sl in range(4)); hi = sum(blk[2*sl+1] << (8*sl) for sl in range(4))
    a.I(f"s_mov_b32 s{sTab}, {hex(lo)}")
    a.I(f"s_cmp_ge_u32 s{S_WAVE}, 2")
    a.I(f"s_cselect_b32 s{sTab}, {hex(hi)}, s{sTab}")
    a.I(f"s_and_b32 s{sJ0}, s{S_WAVE}, 1")
    a.I(f"s_lshl_b32 s{sJ0}, s{sJ0}, 12")
    a.I(f"s_lshl_b32 s{sG0}, s{S_WAVE}, 13")
    a.I("s_barrier")
    tail_stamp_reset()
    stamp(a, 246); stamp(a, 246, 1); dbg_stamp(a, 246)
    a.I(f"s_mov_b32 s{sSt}, 29")
    a.L("L_TL_loop")
    ld_slab(0, 4, sJ0)
    a.I("s_waitcnt vmcnt(4)")
    a.I("s_barrier")
    a.I(f"s_sub_u32 s{sSt}, s{sSt}, 1")
    a.I(f"s_cmp_lg_u32 s{sSt}, 0")
    a.I("s_cbranch_scc1 L_TL_loop")
    a.I("s_waitcnt vmcnt(0)")
    a.I("s_barrier")
    a.I("s_barrier")
    stamp(a, 246); stamp(a, 246, 1); dbg_stamp(a, 246)
    a.I(f"s_mov_b32 s{sJ}, s{S_WAVE}")
    a.I("s_branch L_T_reduce")

    a.L("L_tail_mm")
    ACC = [0, 96]; AF = 192; BF = 208; vAA = 232; vB = 240; vL16 = 242; PK = 244
    sWp = 51
    a.I("s_setprio 0")
    part_srd()
    group_id()
    go_srd(a, SGO)
    lane_id()
    a.I(f"s_sub_u32 s{sWp}, s{S_WAVE}, 4")
    T0 = 244
    a.I(f"v_and_b32 v{T0}, 15, v{vL}")
    a.I(f"v_lshrrev_b32 v{T0+1}, 4, v{vL}")
    a.I(f"v_lshrrev_b32 v{T0+2}, 2, v{T0}")
    a.I(f"v_lshl_add_u32 v{T0+3}, v{T0+1}, 2, v{T0+2}")
    a.I(f"v_lshlrev_b32 v{T0+4}, 9, v{T0+3}")
    a.I(f"v_and_b32 v{T0+5}, 3, v{T0}")
    a.I(f"v_lshl_add_u32 v{T0+4}, v{T0+5}, 3, v{T0+4}")
    a.I(f"s_lshr_b32 s{sA}, s{sWp}, 1")
    a.I(f"s_lshl_b32 s{sA}, s{sA}, 8")
    a.I(f"v_add_u32 v{T0+4}, s{sA}, v{T0+4}")
    a.I(f"v_and_b32 v{T0+3}, 7, v{T0+3}")
    a.I(f"s_and_b32 s{sA}, s{sWp}, 1")
    a.I(f"s_lshl_b32 s{sA}, s{sA}, 2")
    for t in range(4):
        a.I(f"s_add_u32 s{sBq}, s{sA}, {t}")
        a.I(f"v_xor_b32 v{T0+5}, s{sBq}, v{T0+3}")
        a.I(f"v_lshl_add_u32 v{vAA+t}, v{T0+5}, 5, v{T0+4}")
    a.I(f"v_lshlrev_b32 v{vL16}, 4, v{vL}")
    for j in range(192): a.I(f"v_mov_b32 v{j}, 0")
    TB = 68
    for i in range(16):
        a.I(f"s_add_u32 s{sA}, s{S_B}, {i}")
        a.I(f"s_and_b32 s{sA}, s{sA}, 15")
        a.I(f"s_lshr_b32 s{sBq}, s{sA}, 2")
        a.I(f"s_lshl_b32 s{sBq}, s{sBq}, 3")
        a.I(f"s_lshr_b32 s{sBq}, 0x80C11, s{sBq}")
        a.I(f"s_and_b32 s{sBq}, s{sBq}, 0xff")
        a.I(f"s_lshl_b32 s{sBq}, s{sBq}, 13")
        a.I(f"s_and_b32 s{sA}, s{sA}, 3")
        a.I(f"s_lshl_b32 s{sA}, s{sA}, 11")
        a.I(f"s_add_u32 s{TB+i}, s{sBq}, s{sA}")
    vAH = 236
    HI = 90112
    for t in range(4): a.I(f"v_add_u32 v{vAH+t}, {HI}, v{vAA+t}")
    q = LdsQ()
    done = [-1]
    def rdA(slot, t):
        for sec in range(2):
            base = SLAB[slot][sec]
            if base >= 65536: a.I(f"ds_read_b64_tr_b16 {vr(AF + t*4 + sec*2, 2)}, v{vAH+t} offset:{base - HI}")
            else: a.I(f"ds_read_b64_tr_b16 {vr(AF + t*4 + sec*2, 2)}, v{vAA+t} offset:{base}")
            q.issue(("A", t, sec))
    def rdB(par, sub):
        a.I(f"ds_read_b128 {vr(BF + sub*4, 4)}, v{vB+par} offset:{(sub >> 1)*8192 + (sub & 1)*1024}")
        q.issue(("B", sub))
    def acc(P, t, sub):
        return ACC[P] + ((sub*2 + (t >> 1))*2 + (t & 1))*4
    a.I(f"v_add_u32 v{vB}, s{TB}, v{vL16}")
    a.I(f"v_add_u32 v{vB+1}, s{TB+1}, v{vL16}")
    a.L("L_T_idle")
    a.I("s_barrier")
    a.I("s_sub_u32 s54, s54, 1")
    a.I("s_cmp_lg_u32 s54, 0")
    a.I("s_cbranch_scc1 L_T_idle")
    a.I("s_barrier")
    tail_stamp_reset()
    stamp(a, 246); stamp(a, 246, 1); dbg_stamp(a, 246)
    def order():
        return [(hf, t, j) for hf in range(2) for t in range(4) for j in range(3)]
    for (hf, t, j) in order():
        if t == 3: rdB(0, 3*hf + j)
        if hf == 1 and j == 2: rdA(0, t)
    def store_tile(P, ch, first_of_stage):
        base = ACC[P] + ch*16
        ops = [f"v_cvt_pk_bf16_f32 v{PK+j}, v{base+2*j}, v{base+2*j+1}" for j in range(8)]
        ops.append(f"s_add_u32 s{sBq}, s{sJ}, {ch*2048}")
        ops.append(f"buffer_store_dwordx4 {vr(PK,4)}, v{vL16}, s[{SPT}:{SPT+3}], s{sBq} offen{cfg.part_st_pol}")
        ops.append(f"buffer_store_dwordx4 {vr(PK+4,4)}, v{vL16}, s[{SPT}:{SPT+3}], s{sBq} offen offset:1024{cfg.part_st_pol}")
        ops.append("s_nop 1")
        return ops
    def part_base(P):
        a.I(f"s_lshl_b32 s{sJ}, s{sG}, 2")
        a.I(f"s_add_u32 s{sJ}, s{sJ}, s{sWp}")
        a.I(f"s_lshl_b32 s{sJ}, s{sJ}, 1")
        a.I(f"s_and_b32 s{sA}, s{S_B}, 1")
        a.I(f"s_xor_b32 s{sA}, s{sA}, {P}")
        a.I(f"s_add_u32 s{sJ}, s{sJ}, s{sA}")
        a.I(f"s_lshl_b32 s{sJ}, s{sJ}, 3")
        a.I(f"s_add_u32 s{sJ}, s{sJ}, s{S_MJ}")
        a.I(f"s_mul_i32 s{sJ}, s{sJ}, 12288")
    def raise_flag(P):
        a.I("s_waitcnt vmcnt(0)")
        a.I(f"s_lshl_b32 s{sA}, s{sG}, 2")
        a.I(f"s_add_u32 s{sA}, s{sA}, s{sWp}")
        a.I(f"s_lshl_b32 s{sA}, s{sA}, 1")
        a.I(f"s_and_b32 s{sBq}, s{S_B}, 1")
        a.I(f"s_xor_b32 s{sBq}, s{sBq}, {P}")
        a.I(f"s_add_u32 s{sA}, s{sA}, s{sBq}")
        a.I(f"s_lshl_b32 s{sA}, s{sA}, 7")
        a.I(f"s_lshl_b32 s{sBq}, s{S_MJ}, 2")
        a.I(f"s_add_u32 s{sA}, s{sA}, s{sBq}")
        a.I(f"v_mov_b32 v{PK}, 1")
        a.I(f"v_mov_b32 v{PK+1}, 0")
        a.I("s_mov_b64 s[60:61], exec")
        a.I("s_mov_b64 exec, 1")
        a.I(f"buffer_store_dword v{PK}, v{PK+1}, s[{SGO}:{SGO+3}], s{sA} offen sc1")
        a.I("s_mov_b64 exec, s[60:61]")
    def stage(sg, P, nxt=True, bar=True, extra=None, late=None):
        ns = (sg + 1) & 3; npar = (sg + 1) & 1
        extra = list(extra or []); late = list(late or [])
        nm = 0
        for (hf, t, j) in order():
            sub = 3*hf + j
            c = q.need([("B", sub), ("A", t, 0), ("A", t, 1)])
            pos = len(q.ops) - 1 - c
            if pos > done[0]:
                a.I(f"s_waitcnt lgkmcnt({min(15, c)})")
                done[0] = len(q.ops) - 1 - min(15, c)
            mfma(a, acc(P, t, sub), AF + t*4, BF + sub*4)
            nm += 1
            if nxt and t == 3: rdB(npar, sub)
            if nxt and hf == 1 and j == 2: rdA(ns, t)
            if nm == 1 and sg + 2 < 32:
                a.I(f"v_add_u32 v{vB + (sg & 1)}, s{TB + ((sg + 2) & 15)}, v{vL16}")
            if extra and nm >= 3: a.I(extra.pop(0))
            if nm in (20, 22) and late: a.I(late.pop(0))
        for o in extra + late: a.I(o)
        if bar: a.I("s_barrier")
    for sg in range(16): stage(sg, 0)
    if cfg.tailst: stamp(a, 246, 1)
    part_base(0)
    for st in range(16):
        extra = []; late = []
        if st < 6:
            ops = store_tile(0, st, False)
            extra = ops[:9]
            late = ops[9:11]
        stage(16 + st, 1, nxt=(st < 15), bar=(st < 15), extra=extra, late=late)
        if st == 7 and cfg.tailst: stamp(a, 246, 1)
        if st == 11: raise_flag(0)
        if st == 11 and cfg.tailst: stamp(a, 246, 1)
    mk = a.mark()
    part_base(1)
    stamp(a, 246); stamp(a, 246, 1); dbg_stamp(a, 246)
    a.pad_since(mk, 8)
    PKs = [244, 192, 200, 208]
    for t in range(6):
        PK = PKs[t % 4]
        for o in store_tile(1, t, False): a.I(o)
    PK = 244
    raise_flag(1)
    stamp(a, 246, 1); dbg_stamp(a, 246)
    a.I(f"s_cmp_ge_u32 s{S_WAVE}, 6")
    a.I("s_cbranch_scc1 L_k1_end")
    a.I(f"s_mov_b32 s{sJ}, s{S_WAVE}")
    a.L("L_T_reduce")
    vB = 242
    a.I(f"v_lshlrev_b32 v{vB}, 4, v{vL}")
    a.I("s_load_dwordx2 s[58:59], s[0:1], 80")
    sFl = 51
    a.I(f"s_lshl_b32 s{sFl}, s{sG}, 3")
    a.I(f"s_add_u32 s{sFl}, s{sFl}, s{S_MJ}")
    a.I(f"s_lshl_b32 s{sFl}, s{sFl}, 7")
    a.I(f"v_lshlrev_b32 v2, 2, v{vL}")
    a.I(f"s_lshl_b32 s{sA}, s{sG}, 3")
    a.I(f"s_add_u32 s{sA}, s{sA}, s{S_MJ}")
    a.I(f"s_mul_i32 s{sA}, s{sA}, 98304")
    a.I(f"s_lshl_b32 s{sBq}, s{sJ}, 11")
    a.I(f"s_add_u32 s{sA}, s{sA}, s{sBq}")
    a.I("s_mov_b64 s[60:61], exec")
    a.I(f"s_mov_b32 s{sIt}, 0")
    a.I("s_mov_b32 s62, 0")
    for src in range(8):
        a.L(f"L_T_w{src}")
        a.I(f"s_bitcmp1_b32 s62, {src}")
        a.I(f"s_cbranch_scc1 L_T_h{src}")
        a.I("s_mov_b64 exec, 0xff")
        a.I(f"buffer_load_dword v3, v2, s[{SGO}:{SGO+3}], s{sFl} offen sc1")
        a.I("s_waitcnt vmcnt(0)")
        a.I("v_cmp_eq_u32 vcc, 1, v3")
        a.I(f"s_add_u32 s{sIt}, s{sIt}, 1")
        a.I("s_mov_b64 exec, s[60:61]")
        a.I("s_and_b32 s62, vcc_lo, 0xff")
        a.I(f"s_cmp_lt_u32 s{sIt}, 0x8000")
        a.I("s_cselect_b32 s62, s62, 0xff")
        a.I(f"s_bitcmp1_b32 s62, {src}")
        a.I(f"s_cbranch_scc1 L_T_h{src}")
        a.I("s_sleep 1")
        a.I(f"s_branch L_T_w{src}")
        a.L(f"L_T_h{src}")
        a.I(f"s_add_u32 s{sBq}, s{sA}, {src*12288}")
        a.I(f"buffer_load_dwordx4 {vr(8+src*8,4)}, v{vB}, s[{SPT}:{SPT+3}], s{sBq} offen{cfg.part_ld_pol}")
        a.I(f"buffer_load_dwordx4 {vr(8+src*8+4,4)}, v{vB}, s[{SPT}:{SPT+3}], s{sBq} offen offset:1024{cfg.part_ld_pol}")
    stamp(a, 246); stamp(a, 246, 1); dbg_stamp(a, 246)
    a.I("s_waitcnt lgkmcnt(0)")
    srd(a, SOUT, 58, 16*96*1024*2)
    a.I(f"s_lshl_b32 s{sBq}, s{sJ}, 4")
    a.I(f"s_mul_i32 s{sA}, s{S_B}, 96")
    a.I(f"s_add_u32 s{sA}, s{sA}, s{sBq}")
    a.I(f"s_lshl_b32 s{sA}, s{sA}, 11")
    a.I(f"s_lshl_b32 s{sBq}, s{S_P}, 10")
    a.I(f"s_add_u32 s{sA}, s{sA}, s{sBq}")
    a.I(f"s_lshl_b32 s{sBq}, s{S_MJ}, 7")
    a.I(f"s_add_u32 s{sA}, s{sA}, s{sBq}")
    a.I(f"v_and_b32 v2, 15, v{vL}")
    a.I("v_lshlrev_b32 v2, 11, v2")
    a.I(f"v_lshrrev_b32 v3, 4, v{vL}")
    a.I("v_lshl_add_u32 v2, v3, 3, v2")
    RA = 80
    for src in range(8):
        a.I(f"s_waitcnt vmcnt({14 - 2*src})")
        for d in range(8):
            r = 8 + src*8 + d
            if src == 0:
                a.I(f"v_lshlrev_b32 v{RA+2*d}, 16, v{r}")
                a.I(f"v_and_b32 v{RA+2*d+1}, 0xffff0000, v{r}")
            else:
                a.I(f"v_lshlrev_b32 v4, 16, v{r}")
                a.I(f"v_and_b32 v5, 0xffff0000, v{r}")
                a.I(f"v_add_f32 v{RA+2*d}, v{RA+2*d}, v4")
                a.I(f"v_add_f32 v{RA+2*d+1}, v{RA+2*d+1}, v5")
    for d in range(8):
        a.I(f"v_cvt_pk_bf16_f32 v{8+d}, v{RA+2*d}, v{RA+2*d+1}")
    for e4 in range(4):
        a.I(f"buffer_store_dwordx2 v[{8+2*e4}:{9+2*e4}], v2, s[{SOUT}:{SOUT+3}], s{sA} offen offset:{e4*32}")
    a.I("s_waitcnt vmcnt(0)")
    stamp(a, 246); stamp(a, 246, 1); dbg_stamp(a, 246)
    a.I("s_waitcnt vmcnt(0)")
    a.L("L_k1_end")
    a.I("s_endpgm")

def gen_k2(a):
    a.I("s_cmp_ge_u32 s2, 256")
    a.I("s_cbranch_scc1 L_k2_end")
    a.I("s_load_dwordx2 s[4:5], s[0:1], 80")
    a.I("s_load_dwordx2 s[6:7], s[0:1], 96")
    if cfg.dbgst: a.I("s_memrealtime s[34:35]")
    a.I("v_lshrrev_b32 v1, 6, v0")
    a.I("v_and_b32 v0, 63, v0")
    a.I("v_readfirstlane_b32 s20, v1")
    a.I("s_waitcnt lgkmcnt(0)")
    srd(a, 8, 6, PART_BYTES)
    srd(a, 12, 4, 16*96*1024*2)
    a.I("s_mul_i32 s21, s2, 98304")
    a.I("s_lshl_b32 s22, s20, 11")
    a.I("s_add_u32 s21, s21, s22")
    a.I("v_lshlrev_b32 v1, 4, v0")
    for src in range(8):
        a.I(f"s_add_u32 s23, s21, {src*12288}")
        a.I(f"buffer_load_dwordx4 {vr(8+src*8,4)}, v1, s[8:11], s23 offen{cfg.part_ld_pol}")
        a.I(f"buffer_load_dwordx4 {vr(8+src*8+4,4)}, v1, s[8:11], s23 offen offset:1024{cfg.part_ld_pol}")
    a.I("s_lshr_b32 s24, s2, 3")
    a.I("s_and_b32 s25, s2, 7")
    a.I("s_and_b32 s26, s24, 15")
    a.I("s_lshr_b32 s27, s24, 4")
    a.I("s_lshr_b32 s28, s20, 1")
    a.I("s_and_b32 s29, s20, 1")
    a.I("s_mul_i32 s26, s26, 96")
    a.I("s_lshl_b32 s28, s28, 5")
    a.I("s_add_u32 s26, s26, s28")
    a.I("s_lshl_b32 s26, s26, 11")
    a.I("s_lshl_b32 s27, s27, 10")
    a.I("s_lshl_b32 s25, s25, 7")
    a.I("s_lshl_b32 s29, s29, 6")
    a.I("s_add_u32 s26, s26, s27")
    a.I("s_add_u32 s26, s26, s25")
    a.I("s_add_u32 s26, s26, s29")
    a.I("v_and_b32 v2, 31, v0")
    a.I("v_lshlrev_b32 v2, 11, v2")
    a.I("v_lshrrev_b32 v3, 5, v0")
    a.I("v_lshl_add_u32 v2, v3, 5, v2")
    ACC = 80
    for src in range(8):
        a.I(f"s_waitcnt vmcnt({14 - 2*src})")
        for d in range(8):
            r = 8 + src*8 + d
            if src == 0:
                a.I(f"v_lshlrev_b32 v{ACC+2*d}, 16, v{r}")
                a.I(f"v_and_b32 v{ACC+2*d+1}, 0xffff0000, v{r}")
            else:
                a.I(f"v_lshlrev_b32 v4, 16, v{r}")
                a.I(f"v_and_b32 v5, 0xffff0000, v{r}")
                a.I(f"v_add_f32 v{ACC+2*d}, v{ACC+2*d}, v4")
                a.I(f"v_add_f32 v{ACC+2*d+1}, v{ACC+2*d+1}, v5")
    for d in range(8):
        a.I(f"v_cvt_pk_bf16_f32 v{8+d}, v{ACC+2*d}, v{ACC+2*d+1}")
    a.I("buffer_store_dwordx4 v[8:11], v2, s[12:15], s26 offen")
    a.I("buffer_store_dwordx4 v[12:15], v2, s[12:15], s26 offen offset:16")
    a.I("s_waitcnt vmcnt(0)")
    if cfg.dbgst:
        a.I("s_cmp_lg_u32 s2, 0")
        a.I("s_cbranch_scc1 L_k2_end")
        a.I("s_cmp_lg_u32 s20, 0")
        a.I("s_cbranch_scc1 L_k2_end")
        a.I("s_memrealtime s[36:37]")
        a.I("s_load_dwordx2 s[30:31], s[0:1], 88")
        a.I("s_waitcnt lgkmcnt(0)")
        a.I(f"s_add_u32 s8, s6, {40<<20}")
        a.I("s_addc_u32 s9, s7, 0")
        a.I("s_and_b32 s9, s9, 0xffff")
        a.I("s_mov_b32 s10, 256")
        a.I("s_mov_b32 s11, 0x20000")
        a.I("s_mov_b32 s12, s30")
        a.I("s_and_b32 s13, s31, 0xffff")
        a.I("s_mov_b32 s14, 64")
        a.I("s_mov_b32 s15, 0x20000")
        a.I("v_lshlrev_b32 v1, 2, v0")
        a.I("buffer_load_dword v2, v1, s[8:11], 0 offen sc1")
        a.I("s_waitcnt vmcnt(0)")
        a.I("v_mov_b32 v3, s34")
        a.I("v_cmp_eq_u32 vcc, 14, v0")
        a.I("s_nop 1")
        a.I("v_cndmask_b32 v2, v2, v3, vcc")
        a.I("v_mov_b32 v3, s36")
        a.I("v_cmp_eq_u32 vcc, 15, v0")
        a.I("s_nop 1")
        a.I("v_cndmask_b32 v2, v2, v3, vcc")
        a.I("buffer_store_dword v2, v1, s[12:15], 0 offen")
        a.I("s_waitcnt vmcnt(0)")
    a.L("L_k2_end")
    a.I("s_endpgm")

def kd(a, name, vgpr, sgpr):
    a.raw('.section .rodata,"a"')
    a.raw(".p2align 6")
    a.raw(f".amdhsa_kernel {name}")
    a.raw(f"  .amdhsa_next_free_vgpr {vgpr}")
    a.raw(f"  .amdhsa_next_free_sgpr {sgpr}")
    a.raw(f"  .amdhsa_accum_offset {(vgpr+3)//4*4}")
    a.raw("  .amdhsa_group_segment_fixed_size 0")
    a.raw("  .amdhsa_kernarg_size 104")
    a.raw("  .amdhsa_user_sgpr_count 2")
    a.raw("  .amdhsa_user_sgpr_kernarg_segment_ptr 1")
    a.raw("  .amdhsa_system_sgpr_workgroup_id_x 1")
    a.raw(".end_amdhsa_kernel")

def build():
    a = Asm()
    global K1
    if cfg.fused:
        K1 = NAME + "_kernel"
        a.raw(f"; @launch grid=(256,1,1) block=(512,1,1) lds={LDS_BYTES}")
    else:
        a.raw(f"; @launch kernel={K1} grid=(256,1,1) block=(512,1,1) lds={LDS_BYTES}")
        a.raw(f"; @launch kernel={K2} grid=(256,1,1) block=(384,1,1) lds=0")
    a.raw('.amdgcn_target "amdgcn-amd-amdhsa--gfx950"')
    a.raw(".text")
    a.raw(f".globl {K1}")
    a.raw(".p2align 8")
    a.raw(f".type {K1},@function")
    a.L(K1)
    setup_common(a)
    gen_loader(a, True)
    gen_loader(a, False)
    gen_G(a)
    gen_A(a)
    gen_tail(a)
    if not cfg.fused:
        a.raw(f".globl {K2}")
        a.raw(".p2align 8")
        a.raw(f".type {K2},@function")
        a.L(K2)
        gen_k2(a)
    kd(a, K1, 256, 102 if (cfg.stamps or cfg.dbgst) else 84)
    if not cfg.fused:
        a.raw(".text")
        kd(a, K2, 96, 40)
    return a

if __name__ == "__main__":
    for arg in sys.argv[2:]:
        k, v = arg.split("=", 1)
        cur = getattr(cfg, k)
        if isinstance(cur, bool): v = v in ("1", "True", "true")
        elif isinstance(cur, int): v = int(v)
        elif isinstance(cur, float): v = float(v)
        else: v = v.replace("_", " ")
        setattr(cfg, k, v)
    a = build()
    out = sys.argv[1] if len(sys.argv) > 1 else f"cdna_kernels/{NAME}.s"
    open(out, "w").write(a.text())
    probs = check_file(a.lines)
    for p in probs: print("HAZARD", p)
    print("wrote", out, len(a.lines), "lines;", len(probs), "hazard reports")
```

```python
import struct, math, sys
from asmlib import Asm, vr, sr, check_file

NAME = "concat_heads__mha_block_cached__gqa_block_cached__near_ridge"
K1 = "attn_kernel"
K2 = "reduce_kernel"

def f2u(x): return struct.unpack("<I", struct.pack("<f", x))[0]
CSCALE = math.log2(math.e) / math.sqrt(128.0)

KR = 0; VR = 32768; WR = 65536; QH = 98304; XS = 98304
OS = [122880, 98304, 65536, 0]
STAGE = [24576, 32768, 40960, 49152, 57344, 90112, 147456, 155648]
LDS_BYTES = 163840
PART_BYTES = 32 * 64 * 12288

class Cfg:
    kv_pol = " nt"
    wq_pol = " nt"
    x_pol = ""
    wo_pol = ""
    part_st_pol = " sc1"
    part_ld_pol = " sc1"
    thresh = 8.0
    debug_dump = False
    prio_a = 0
    stamps = 0
    nokv = False
    nog = False
    rotmask = 0
    rotshift = 2
    cwstep = 11
    codewarm = True
    k0early = 9
    xsched = 1
    wfirst = True
    ldprio = 0
    tailst = False
    ghalf = 0
    t_nowait = False
    t_contig = False
    t_nodma = False
    t_nord = False
    t_early = False
    wo_fake = False
    dbgwave = 0
    dbgwg = 0
    part_off = 0
    fused = True
    noa = False
    nogr = False
    nowq = False
    dbgst = False

cfg = Cfg()

S_WAVE = 20; S_XCD = 21; S_SLOT = 22; S_P = 23; S_B = 24; S_HQ = 25; S_HB = 26; S_RHO = 27; S_MJ = 28
P_X = 8; P_K = 10; P_V = 12; P_WQ = 14; P_WO = 16; P_WS = 18

def srd(a, dst, ptr, size):
    a.I(f"s_mov_b32 s{dst}, s{ptr}")
    a.I(f"s_and_b32 s{dst+1}, s{ptr+1}, 0xffff")
    a.I(f"s_mov_b32 s{dst+2}, {hex(size)}")
    a.I(f"s_mov_b32 s{dst+3}, 0x20000")

def setup_common(a):
    a.I("s_cmp_ge_u32 s2, 256")
    a.I("s_cbranch_scc1 L_k1_end")
    a.I(f"s_and_b32 s{S_XCD}, s2, 7")
    a.I(f"s_lshr_b32 s{S_SLOT}, s2, 3")
    a.I(f"s_lshr_b32 s{S_P}, s{S_XCD}, 2")
    a.I(f"s_mul_i32 s3, s{S_P}, 40")
    a.I("s_add_u32 s4, s0, s3")
    a.I("s_addc_u32 s5, s1, 0")
    a.I("s_load_dwordx8 s[8:15], s[4:5], 0")
    a.I(f"s_load_dwordx2 s[{P_WO}:{P_WO+1}], s[4:5], 32")
    a.I(f"s_load_dwordx2 s[{P_WS}:{P_WS+1}], s[0:1], 96")
    a.I("v_lshrrev_b32 v1, 6, v0")
    a.I("v_and_b32 v0, 63, v0")
    a.I(f"v_readfirstlane_b32 s{S_WAVE}, v1")
    a.I(f"s_lshr_b32 s{S_B}, s{S_SLOT}, 1")
    a.I(f"s_and_b32 s{S_HQ}, s{S_SLOT}, 1")
    a.I(f"s_and_b32 s3, s{S_XCD}, 3")
    a.I("s_lshl_b32 s3, s3, 1")
    a.I(f"s_add_u32 s{S_MJ}, s3, s{S_HQ}")
    a.I(f"s_lshl_b32 s{S_HB}, s{S_MJ}, 2")
    a.I(f"s_and_b32 s{S_RHO}, s{S_B}, {cfg.rotmask}")
    a.I(f"s_lshl_b32 s{S_RHO}, s{S_RHO}, {cfg.rotshift}")
    a.I("s_waitcnt lgkmcnt(0)")
    dbg_setup(a)
    a.I(f"s_cmp_lt_u32 s{S_WAVE}, 3")
    a.I("s_cbranch_scc1 L_roleA")
    a.I(f"s_cmp_eq_u32 s{S_WAVE}, 3")
    a.I("s_cbranch_scc1 L_roleLK")
    a.I(f"s_cmp_eq_u32 s{S_WAVE}, 7")
    a.I("s_cbranch_scc1 L_roleLV")
    a.I("s_branch L_roleG")

def gen_loader(a, isK):
    tag = "LK" if isK else "LV"
    D = 13 if isK else 14
    a.L(f"L_role{tag}")
    if cfg.ldprio: a.I(f"s_setprio {cfg.ldprio}")
    SKV = 32; SW = 36
    srd(a, SKV, P_K if isK else P_V, 0x4000000)
    srd(a, SW, P_WQ, 0x400000)
    sKB = 48; sT = 49; sTau = 50; sN = 51; sA = 52; sBq = 53; sWrow = 54
    a.I(f"s_lshl_b32 s{sKB}, s{S_B}, 5")
    a.I(f"s_add_u32 s{sKB}, s{sKB}, s{S_HB}")
    a.I(f"s_lshl_b32 s{sKB}, s{sKB}, 17")
    a.I("v_and_b32 v1, 15, v0")
    a.I("v_lshrrev_b32 v2, 4, v0")
    if isK:
        for j in range(4):
            a.I(f"v_add_u32 v3, {4*j}, v2")
            a.I("v_xor_b32 v3, v1, v3")
            a.I("v_lshlrev_b32 v3, 4, v3")
            a.I(f"v_lshl_add_u32 v{4+j}, v2, 8, v3")
    else:
        for j in range(4):
            a.I(f"v_add_u32 v3, {4*(j & 1)}, v2")
            a.I("v_lshlrev_b32 v3, 1, v3")
            a.I("v_xor_b32 v3, v1, v3")
            a.I("v_lshlrev_b32 v3, 4, v3")
            a.I(f"v_lshl_add_u32 v{4+j}, v2, 8, v3")
    a.I("v_lshlrev_b32 v3, 2, v2")
    a.I("v_xor_b32 v3, v1, v3")
    a.I("v_lshlrev_b32 v3, 4, v3")
    a.I("v_lshlrev_b32 v9, 13, v2")
    a.I("v_add_u32 v8, v9, v3")
    i0 = 0 if isK else 4
    LB = KR if isK else VR

    def issue_w():
        a.I(f"s_add_u32 s{sA}, s{S_RHO}, s{sTau}")
        a.I(f"s_and_b32 s{sA}, s{sA}, 15")
        a.I(f"s_lshl_b32 s{sA}, s{sA}, 18")
        a.I(f"s_lshr_b32 s{sBq}, s{sTau}, 4")
        a.I(f"s_add_u32 s{sBq}, s{sBq}, s{S_HB}")
        a.I(f"s_lshl_b32 s{sBq}, s{sBq}, 8")
        a.I(f"s_add_u32 s{sA}, s{sA}, s{sBq}")
        a.I(f"s_add_u32 s{sA}, s{sA}, {i0*4*8192}")
        a.I(f"s_and_b32 s{sBq}, s{sTau}, 3")
        a.I(f"s_lshl_b32 s{sBq}, s{sBq}, 13")
        a.I(f"s_add_u32 s{sBq}, s{sBq}, {WR + i0*1024}")
        for i in range(4):
            a.I(f"s_add_u32 m0, s{sBq}, {i*1024}")
            if i: a.I(f"s_add_u32 s{sA}, s{sA}, 32768")
            else: a.I("s_nop 0")
            a.I(f"buffer_load_dwordx4 v8, s[{SW}:{SW+3}], s{sA} offen{cfg.wq_pol} lds")
        a.I(f"s_add_u32 s{sTau}, s{sTau}, 1")

    def issue_kv():
        a.I(f"s_lshl_b32 s{sA}, s{sT}, 13")
        a.I(f"s_add_u32 s{sA}, s{sA}, s{sKB}")
        a.I(f"s_and_b32 s{sBq}, s{sT}, 3")
        a.I(f"s_lshl_b32 s{sBq}, s{sBq}, 13")
        for half in range(2):
            if cfg.nokv: break
            a.I(f"s_add_u32 m0, s{sBq}, {LB + half*4096}")
            if half: a.I(f"s_add_u32 s{sA}, s{sA}, 4096")
            else: a.I("s_nop 0")
            for j in range(4):
                off = f" offset:{j*1024}" if j else ""
                a.I(f"buffer_load_dwordx4 v{4+j}, s[{SKV}:{SKV+3}], s{sA} offen{off}{cfg.kv_pol} lds")
        a.I(f"s_add_u32 s{sT}, s{sT}, 1")

    stamp_setup(a)
    a.I(f"s_mov_b32 s{sT}, 0")
    a.I(f"s_mov_b32 s{sTau}, 0")
    pstamp(a, 20)
    for _ in range(4): issue_w()
    pstamp(a, 20)
    a.I(f"s_waitcnt vmcnt({12 + (1 if cfg.stamps == 3 else 0)})")
    pstamp(a, 20)
    a.I("s_barrier")
    a.I("s_waitcnt vmcnt(8)")
    WLAST = 16 if cfg.nowq else 59
    def has_kv(n):
        if cfg.nokv: return False
        if isK and cfg.k0early:
            return n == cfg.k0early or (D + 1 <= n <= D + 63)
        return D <= n <= D + 63
    def cnt(n):
        if n < 0: return 4
        return (4 if n <= WLAST else 0) + (8 if has_kv(n) else 0)
    phases = []
    for n in range(79 if isK else 80):
        key = (has_kv(n), n <= WLAST, cnt(n) + cnt(n - 1))
        if phases and phases[-1][0] == key: phases[-1][2] = n
        else: phases.append([key, n, n])
    for pi, (key, n0, n1) in enumerate(phases):
        kv, w, N = key
        cntn = n1 - n0 + 1
        if cntn > 1:
            a.I(f"s_mov_b32 s{sN}, {cntn}")
            a.L(f"L_{tag}_ph{pi}")
        a.I("s_barrier")
        stamp(a, 20)
        if cfg.wfirst:
            if w: issue_w()
            if kv: issue_kv()
        else:
            if kv: issue_kv()
            if w: issue_w()
        stamp(a, 20)
        a.I(f"s_waitcnt vmcnt({N + (7 if cfg.stamps == 2 else 0)})")
        stamp(a, 20)
        if cntn > 1:
            a.I(f"s_sub_u32 s{sN}, s{sN}, 1")
            a.I(f"s_cmp_lg_u32 s{sN}, 0")
            a.I(f"s_cbranch_scc1 L_{tag}_ph{pi}")
    if not isK: a.I("s_mov_b32 s54, 2")
    a.I("s_branch L_tail_pre" if isK else "s_branch L_tail_mm")

STAMP_BASE = 32 << 20
def stamp_setup(a):
    if not cfg.stamps: return
    a.I(f"s_mov_b32 s92, s{P_WS}")
    a.I(f"s_and_b32 s93, s{P_WS+1}, 0xffff")
    a.I(f"s_mov_b32 s94, {hex(STAMP_BASE + (2<<20))}")
    a.I("s_mov_b32 s95, 0x20000")
    a.I("s_lshl_b32 s96, s2, 3")
    a.I(f"s_add_u32 s96, s96, s{S_WAVE}")
    a.I("s_lshl_b32 s96, s96, 10")
    a.I(f"s_add_u32 s96, s96, {STAMP_BASE}")
def stamp(a, vtmp, level=2):
    if cfg.stamps != level: return
    a.I("s_memrealtime s[98:99]")
    if level == 1: a.I("s_memtime s[100:101]")
    a.I("s_waitcnt lgkmcnt(0)")
    a.I(f"v_mov_b32 v{vtmp}, s98")
    a.I(f"v_mov_b32 v{vtmp+1}, 0")
    a.I(f"buffer_store_dword v{vtmp}, v{vtmp+1}, s[92:95], s96 offen")
    if level == 1:
        a.I(f"v_mov_b32 v{vtmp}, s100")
        a.I(f"buffer_store_dword v{vtmp}, v{vtmp+1}, s[92:95], s96 offen offset:4")
        a.I("s_add_u32 s96, s96, 4")
    a.I("s_add_u32 s96, s96, 4")

def pstamp(a, v):
    stamp(a, v, 3)
def dbg_setup(a):
    if not cfg.dbgst: return
    a.I("s_load_dwordx2 s[90:91], s[0:1], 88")
    a.I("s_waitcnt lgkmcnt(0)")
    a.I("s_mov_b32 s92, s90")
    a.I("s_and_b32 s93, s91, 0xffff")
    a.I("s_mov_b32 s94, 0")
    a.I("s_mov_b32 s96, 0")
    a.I(f"s_cmp_lg_u32 s{S_WAVE}, {cfg.dbgwave}")
    a.I("s_cbranch_scc1 L_dbg_done")
    a.I(f"s_cmp_eq_u32 s2, {cfg.dbgwg}")
    a.I("s_cselect_b32 s94, 64, 0")
    a.L("L_dbg_done")
    a.I("s_mov_b32 s95, 0x20000")
def dbg_stamp(a, vtmp):
    if not cfg.dbgst: return
    a.I("s_memrealtime s[98:99]")
    a.I("s_waitcnt lgkmcnt(0)")
    a.I(f"v_mov_b32 v{vtmp}, s98")
    a.I(f"v_mov_b32 v{vtmp+1}, 0")
    a.I(f"buffer_store_dword v{vtmp}, v{vtmp+1}, s[92:95], s96 offen")
    a.I("s_add_u32 s96, s96, 4")

GO_OFF = 26 << 20
def go_srd(a, dst):
    a.I(f"s_add_u32 s{dst}, s{P_WS}, {GO_OFF}")
    a.I(f"s_addc_u32 s{dst+1}, s{P_WS+1}, 0")
    a.I(f"s_and_b32 s{dst+1}, s{dst+1}, 0xffff")
    a.I(f"s_mov_b32 s{dst+2}, {256*128}")
    a.I(f"s_mov_b32 s{dst+3}, 0x20000")

def mfma(a, d, A, B, c=None):
    cs = vr(d, 4) if c is None else (c if isinstance(c, str) else vr(c, 4))
    a.I(f"v_mfma_f32_16x16x32_bf16 {vr(d,4)}, {vr(A,4)}, {vr(B,4)}, {cs}")

def kpattern_addr(a, dst, n):
    a.I("v_and_b32 v1, 15, v0")
    a.I("v_lshrrev_b32 v2, 4, v0")
    a.I("v_xor_b32 v3, v1, v2")
    a.I("v_lshlrev_b32 v1, 8, v1")
    for k in range(n):
        a.I(f"v_xor_b32 v2, {4*k}, v3")
        a.I(f"v_lshl_add_u32 v{dst+k}, v2, 4, v1")

def gen_G(a):
    a.L("L_roleG")
    X = 0; QA = 128; WF = 192; vWA = 224; vXA = 228; vXO = 236; vL16 = 240; vLane = 241
    SX = 32
    sW = 48; sA = 49; sBq = 50; sU = 51; sXb = 52; sC = 56; sPi = 53
    a.I(f"s_sub_u32 s{sW}, s{S_WAVE}, 4")
    a.I(f"s_mov_b32 s{sC}, {hex(f2u(CSCALE))}")
    a.I(f"s_mov_b32 s{sC+1}, {hex(f2u(CSCALE))}")
    a.I(f"v_mov_b32 v{vLane}, v0")
    a.I(f"v_lshlrev_b32 v{vL16}, 4, v0")
    kpattern_addr(a, vXA, 4)
    a.I(f"s_lshl_b32 s{sA}, s{sW}, 14")
    a.I(f"s_add_u32 s{sA}, s{sA}, {XS}")
    for k in range(4):
        a.I(f"v_add_u32 v{vXA+k}, s{sA}, v{vXA+k}")
    a.I("v_and_b32 v1, 15, v0")
    a.I("v_lshrrev_b32 v2, 4, v0")
    a.I("v_lshrrev_b32 v3, 2, v1")
    a.I("v_lshl_add_u32 v5, v2, 3, v3")
    a.I("v_lshlrev_b32 v5, 8, v5")
    a.I("v_and_b32 v6, 3, v1")
    a.I("v_lshl_add_u32 v5, v6, 4, v5")
    a.I(f"v_add_u32 v5, {WR}, v5")
    for i in range(4):
        a.I(f"v_xor_b32 v6, {i}, v3")
        a.I(f"v_lshl_add_u32 v{vWA+i}, v6, 6, v5")
    stamp_setup(a)
    pstamp(a, 246)
    pstamp(a, 246)

    def x_reads(piece):
        if piece == 2:
            for k in range(4): a.I(f"v_subrev_u32 v{vXA+k}, {XS}, v{vXA+k}")
        for t in range(4):
            for sb in range(2):
                a.I(f"ds_read_b128 {vr(X + piece*32 + t*8 + sb*4, 4)}, v{vXA+t} offset:{(piece&1)*8192 + sb*4096}")
    def rd(slot, i):
        return [f"ds_read_b64_tr_b16 {vr(WF + i*4 + sec*2, 2)}, v{vWA + (i >> 1)} offset:{slot*8192 + sec*1024 + (i & 1)*8}" for sec in range(2)]
    def qa(i, sb):
        return QA + (((i >> 1)*2 + sb)*2 + (i & 1))*4

    def task(t, first_unit, nxt=True):
        stamp(a, 246)
        a.I("s_barrier")
        stamp(a, 246)
        if cfg.nogr and not first_unit: return
        ns = (t + 1) & 3
        xb = X + t*8
        for i in range(8):
            if not (cfg.nog and not first_unit) and not (cfg.ghalf and not first_unit and i >= 8 - cfg.ghalf):
                for sb in range(2):
                    mfma(a, qa(i, sb), WF + i*4, xb + 4*sb, "0" if t == 0 else None)
            if nxt:
                for o in rd(ns, i): a.I(o)
        if first_unit and t % 4 == 3 and t < 15:
            x_reads(t // 4 + 1)
        a.I("s_waitcnt lgkmcnt(0)")
        if first_unit: pstamp(a, 246)

    def handoff():
        a.I(f"s_cmp_lt_u32 s{sU}, 3")
        a.I(f"s_cselect_b32 s{sA}, {QH//8192}, {WR//8192}")
        a.I(f"s_add_u32 s{sA}, s{sA}, s{sW}")
        a.I(f"s_lshl_b32 s{sA}, s{sA}, 13")
        a.I(f"v_add_u32 v242, s{sA}, v{vL16}")
        a.I("s_nop 3")
        for k in range(8):
            for j in range(4):
                a.I(f"v_pk_mul_f32 {vr(QA+8*k+2*j,2)}, {vr(QA+8*k+2*j,2)}, s[{sC}:{sC+1}]")
            for j in range(4):
                a.I(f"v_cvt_pk_bf16_f32 v{QA+4*k+j}, v{QA+8*k+2*j}, v{QA+8*k+2*j+1}")
            a.I(f"ds_write_b128 v242, {vr(QA+4*k,4)} offset:{k*1024}")
        a.I("s_waitcnt lgkmcnt(0)")

    a.I("s_barrier")
    pstamp(a, 246)
    x_reads(0)
    for i in range(8):
        for o in rd(0, i): a.I(o)
    a.I("s_waitcnt lgkmcnt(0)")
    pstamp(a, 246)
    a.I(f"s_mov_b32 s{sU}, 0")
    for t in range(16): task(t, True)
    handoff()
    a.I(f"s_mov_b32 s{sU}, 1")
    a.L("L_G_unit")
    for t in range(15): task(t, False)
    task(15, False)
    handoff()
    a.I(f"s_add_u32 s{sU}, s{sU}, 1")
    a.I(f"s_cmp_lt_u32 s{sU}, 4")
    a.I("s_cbranch_scc1 L_G_unit")
    a.I("s_mov_b32 s54, 18")
    a.I("s_branch L_tail_mm")

def slab_voffsets(a, VO, lane, t):
    for jp in range(4):
        a.I(f"v_lshrrev_b32 v{t}, 5, v{lane}")
        a.I(f"v_bfe_u32 v{t+1}, v{lane}, 1, 3")
        a.I(f"v_add_u32 v{t+2}, {2*jp}, v{t}")
        a.I(f"v_xor_b32 v{t+1}, v{t+1}, v{t+2}")
        a.I(f"v_lshlrev_b32 v{t}, 10, v{t}")
        a.I(f"v_bfe_u32 v{t+2}, v{lane}, 4, 1")
        a.I(f"v_lshl_add_u32 v{t}, v{t+2}, 9, v{t}")
        a.I(f"v_lshrrev_b32 v{t+2}, 2, v{t+1}")
        a.I(f"v_lshl_add_u32 v{t}, v{t+2}, 8, v{t}")
        a.I(f"v_and_b32 v{t+2}, 3, v{t+1}")
        a.I(f"v_lshl_add_u32 v{t}, v{t+2}, 5, v{t}")
        a.I(f"v_and_b32 v{t+2}, 1, v{lane}")
        a.I(f"v_lshl_add_u32 v{VO+jp}, v{t+2}, 4, v{t}")

def tail_srds(a):
    srd(a, 32, P_WO, 0x400000)
    a.I(f"s_add_u32 s36, s{P_WS}, {cfg.part_off}")
    a.I(f"s_addc_u32 s37, s{P_WS+1}, 0")
    a.I("s_and_b32 s37, s37, 0xffff")
    a.I(f"s_mov_b32 s38, {hex(PART_BYTES)}")
    a.I("s_mov_b32 s39, 0x20000")
    go_srd(a, 64)

def gen_A(a):
    a.L("L_roleA")
    O = 0; Q = 64; S = [96, 112]; NM = 128; P = [136, 144]; KF = 152; VF = 184
    vKA = 216; vVA = 220; l0 = 228; mx = 232; t0 = 233; inv = 234; vL16 = 242; vAd = 243; t1 = 238; t2 = 239; t3 = 240
    sIt = 48; sU = 49; sA = 50; sBq = 51; sW = S_WAVE
    if cfg.prio_a: a.I(f"s_setprio {cfg.prio_a}")
    stamp_setup(a)
    stamp(a, 246)
    stamp(a, 246, 1)
    dbg_stamp(a, 246)
    SX = 44; sXb = 58; sPi = 59
    srd(a, SX, P_X, 16*96*512*2)
    a.I("v_and_b32 v1, 15, v0")
    a.I("v_lshrrev_b32 v2, 4, v0")
    for j in range(4):
        a.I(f"v_add_u32 v3, {4*j}, v2")
        a.I("v_xor_b32 v3, v1, v3")
        a.I("v_lshlrev_b32 v3, 4, v3")
        a.I(f"v_lshl_add_u32 v{8+j}, v2, 10, v3")
    a.I(f"s_mul_i32 s{sXb}, s{S_B}, 98304")
    a.I(f"s_lshl_b32 s{sA}, s{sW}, 15")
    a.I(f"s_add_u32 s{sXb}, s{sXb}, s{sA}")
    def issue_x(piece, i0=0, i1=8):
        a.I(f"s_lshr_b32 s{sPi}, s{S_RHO}, 2")
        a.I(f"s_add_u32 s{sPi}, s{sPi}, {piece}")
        a.I(f"s_and_b32 s{sPi}, s{sPi}, 3")
        a.I(f"s_lshl_b32 s{sPi}, s{sPi}, 8")
        a.I(f"s_add_u32 s{sA}, s{sXb}, s{sPi}")
        if i0: a.I(f"s_add_u32 s{sA}, s{sA}, {i0*4096}")
        a.I(f"s_lshl_b32 s{sBq}, s{sW}, 14")
        a.I(f"s_add_u32 s{sBq}, s{sBq}, {(XS if piece < 2 else 0) + (piece & 1)*8192}")
        for i in range(i0, i1):
            a.I(f"s_add_u32 m0, s{sBq}, {i*1024}")
            if i > i0: a.I(f"s_add_u32 s{sA}, s{sA}, 4096")
            else: a.I("s_nop 0")
            a.I(f"buffer_load_dwordx4 v{8 + (i & 3)}, s[{SX}:{SX+3}], s{sA} offen{cfg.x_pol} lds")
    issue_x(0)
    sG = 55; sTrig = 54; vRdy = 245
    a.I(f"s_lshl_b32 s{sG}, s{S_P}, 4")
    a.I(f"s_add_u32 s{sG}, s{sG}, s{S_B}")
    a.I(f"s_mov_b32 s{sTrig}, 0xffff")
    a.I("s_load_dwordx2 s[56:57], s[0:1], 88")
    a.I("s_waitcnt lgkmcnt(0)")
    srd(a, 40, 56, 256)
    a.I(f"v_lshlrev_b32 v{vL16}, 4, v0")
    a.I("v_mov_b32 v255, v0")
    slab_voffsets(a, 248, 255, 1)
    tail_srds(a)
    kpattern_addr(a, vKA, 4)
    a.I("v_and_b32 v1, 15, v0")
    a.I("v_lshrrev_b32 v2, 4, v0")
    a.I("v_lshrrev_b32 v3, 2, v1")
    a.I("v_lshl_add_u32 v4, v2, 2, v3")
    a.I("v_lshlrev_b32 v5, 8, v4")
    a.I("v_and_b32 v6, 3, v1")
    a.I("v_lshl_add_u32 v5, v6, 3, v5")
    a.I(f"v_add_u32 v5, {VR}, v5")
    a.I("v_and_b32 v4, 7, v4")
    for i in range(8):
        a.I(f"v_xor_b32 v6, {i}, v4")
        a.I(f"v_lshl_add_u32 v{vVA+i}, v6, 5, v5")
    for j in range(4): a.I(f"v_mov_b32 v{l0+j}, 0")
    def handoff_setup():
        a.I(f"s_cmp_lg_u32 s{S_WAVE}, 0")
        a.I("s_cbranch_scc1 L_A_noreset")
        go_srd(a, 64)
        a.I(f"s_lshl_b32 s{sA}, s{sG}, 3")
        a.I(f"s_add_u32 s{sA}, s{sA}, s{S_MJ}")
        a.I(f"s_lshl_b32 s{sA}, s{sA}, 7")
        a.I("v_mov_b32 v1, 0")
        a.I("v_lshlrev_b32 v2, 2, v0")
        a.I("s_mov_b64 s[60:61], exec")
        a.I("s_mov_b64 exec, 0xff")
        a.I(f"buffer_store_dword v1, v2, s[64:67], s{sA} offen sc1")
        a.I("s_waitcnt vmcnt(0)")
        a.I("s_mov_b64 exec, 1")
        a.I("v_mov_b32 v2, 1")
        a.I(f"s_lshl_b32 s{sA}, s{sG}, 2")
        a.I(f"s_add_u32 s{sA}, s{sA}, 128")
        a.I(f"buffer_atomic_add v2, v1, s[40:43], s{sA} offen")
        a.I("s_mov_b64 exec, s[60:61]")
        a.I("s_lshr_b32 s3, s2, 3")
        a.I("s_mul_i32 s3, s3, 3")
        a.I("s_lshr_b32 s3, s3, 3")
        a.I(f"s_add_u32 s{sTrig}, s3, 4")
        a.L("L_A_noreset")
    def code_warm():
        a.I("s_getpc_b64 s[60:61]")
        a.L("L_pc_here")
        a.I(f"s_sub_u32 s60, s60, L_pc_here-{K1}")
        a.I("s_subb_u32 s61, s61, 0")
        a.I("s_mov_b32 s68, s60")
        a.I("s_and_b32 s69, s61, 0xffff")
        a.I(f"s_mov_b32 s70, L_k1_end-{K1}")
        a.I("s_mov_b32 s71, 0x20000")
        a.I(f"s_lshl_b32 s{sA}, s{S_SLOT}, 11")
        a.I(f"s_sub_u32 s{sBq}, s{sW}, 1")
        a.I(f"s_lshl_b32 s{sBq}, s{sBq}, 10")
        a.I(f"s_add_u32 s{sA}, s{sA}, s{sBq}")
        a.I("v_lshlrev_b32 v12, 4, v0")
        a.I(f"s_cmp_eq_u32 s{sW}, 0")
        a.I("s_cbranch_scc1 L_nowarm")
        a.I(f"buffer_load_dwordx4 v[244:247], v12, s[68:71], s{sA} offen")
        a.L("L_nowarm")
    a.I("s_waitcnt vmcnt(0)")
    for n in range(-1, 16):
        stamp(a, 246)
        a.I("s_barrier")
        stamp(a, 246)
        XP = cfg.xsched
        if XP == 0:
            if n in (-1, 0, 1): issue_x(n + 2)
            if n == 2: a.I("s_waitcnt vmcnt(16)")
            if n == 6: a.I("s_waitcnt vmcnt(8)")
        elif XP == 1:
            if n in (-1, 0): issue_x(1, 4*(n+1), 4*(n+2))
            if 1 <= n <= 4: issue_x(2, 2*(n-1), 2*n)
            if 5 <= n <= 8: issue_x(3, 2*(n-5), 2*(n-4))
            if n == 2: a.I("s_waitcnt vmcnt(4)")
            if n == 6: a.I("s_waitcnt vmcnt(4)")
        elif XP == 2:
            if -1 <= n <= 1: issue_x(1, [0,3,6][n+1], [3,6,8][n+1])
            if 2 <= n <= 4: issue_x(2, [0,3,6][n-2], [3,6,8][n-2])
            if 5 <= n <= 7: issue_x(3, [0,3,6][n-5], [3,6,8][n-5])
            if n == 2: a.I("s_waitcnt vmcnt(3)")
            if n == 6: a.I("s_waitcnt vmcnt(6)")
        if n == 10: a.I("s_waitcnt vmcnt(0)")
        if n == 11: handoff_setup()
        if n == cfg.cwstep and cfg.codewarm: code_warm()

    rare_blocks = []

    def oacc(i, sb):
        return O + (((i >> 1)*2 + sb)*2 + (i & 1))*4
    def xreduce(v, op, tmp):
        a.I(f"v_mov_b32 v{tmp}, v{v}")
        a.I("s_nop 1")
        a.I(f"v_permlane16_swap_b32 v{v}, v{tmp}")
        a.I("s_nop 0")
        a.I(f"{op} v{v}, v{v}, v{tmp}")
        a.I(f"v_mov_b32 v{tmp}, v{v}")
        a.I("s_nop 1")
        a.I(f"v_permlane32_swap_b32 v{v}, v{tmp}")
        a.I("s_nop 0")
        a.I(f"{op} v{v}, v{v}, v{tmp}")

    def step(pos, tag, pv=True, pv_c0=False, sm=True, qk=True, first=False, fin_l=False, finalize=False, vrd=True, check=True):
        Sn = S[pos % 2]; Sc = S[(pos + 1) % 2]
        Pw = P[(pos + 1) % 2]; Pr = P[pos % 2]
        vslot = (pos + 3) % 4
        stamp(a, 246)
        a.I("s_barrier")
        stamp(a, 246)
        if first: dbg_stamp(a, 246)
        if first or tag == "_l0": stamp(a, 246, 1)
        if cfg.noa: return
        if first:
            a.I(f"s_cmp_lt_u32 s{sU}, 3")
            a.I(f"s_cselect_b32 s{sA}, {QH//8192}, {WR//8192}")
            a.I(f"s_add_u32 s{sA}, s{sA}, s{sW}")
            a.I(f"s_lshl_b32 s{sA}, s{sA}, 13")
            a.I(f"v_add_u32 v{vAd}, s{sA}, v{vL16}")
            for k in range(8):
                a.I(f"ds_read_b128 {vr(Q+4*k,4)}, v{vAd} offset:{k*1024}")
        if qk:
            for k in range(4):
                for kt in range(2):
                    a.I(f"ds_read_b128 {vr(KF+(k*2+kt)*4,4)}, v{vKA+k} offset:{pos*8192 + kt*4096}")
        if finalize:
            a.I(f"s_sub_u32 s{sA}, s{sU}, 1")
            a.I(f"s_lshl_b32 s{sA}, s{sA}, 3")
            a.I(f"s_lshr_b32 s{sA}, 0x80C11, s{sA}")
            a.I(f"s_and_b32 s{sA}, s{sA}, 0xff")
            a.I(f"s_add_u32 s{sA}, s{sA}, s{sW}")
            a.I(f"s_lshl_b32 s{sA}, s{sA}, 13")
            a.I(f"v_add_u32 v{vAd}, s{sA}, v{vL16}")
        def valu_gap(g):
            if not sm: return
            a.I(f"v_exp_f32 v{Sc+g}, v{Sc+g}")
            if g >= 1:
                e = g - 1
                lr = l0 + 2*(e >> 3) + (e & 1)
                a.I(f"v_add_f32 v{lr}, v{lr}, v{Sc+e}")
            if g >= 2 and g % 2 == 0:
                j = g // 2 - 1
                a.I(f"v_cvt_pk_bf16_f32 v{Pw+j}, v{Sc+2*j}, v{Sc+2*j+1}")
        pv_mark = None
        for i in range(8):
            if pv:
                for sb in range(2):
                    mfma(a, oacc(i, sb), VF + i*4, Pr + 4*sb, "0" if pv_c0 else None)
                pv_mark = a.mark()
            valu_gap(i)
        nv = 0; nw = 0
        for k in range(8):
            kap, kt = k // 2, k % 2
            if qk:
                a.I(f"s_waitcnt lgkmcnt({min(15, 7 - k + nv + nw)})")
                for sb in range(2):
                    c = ("0" if first else vr(NM + 4*sb, 4)) if kap == 0 else None
                    mfma(a, Sn + (sb*2 + kt)*4, KF + k*4, Q + (kap*2 + sb)*4, c)
                qk_mark = a.mark()
            if vrd:
                for sec in range(2):
                    a.I(f"ds_read_b64_tr_b16 {vr(VF + k*4 + sec*2, 2)}, v{vVA+k} offset:{vslot*8192 + sec*4096}")
                    nv += 1
            valu_gap(8 + k)
            if finalize:
                if k == 0 and pv_mark is not None: a.pad_since(pv_mark, 8)
                sb = k & 1
                for j in range(4):
                    a.I(f"v_pk_mul_f32 {vr(O+8*k+2*j,2)}, {vr(O+8*k+2*j,2)}, {vr(inv+2*sb,2)}")
                for j in range(4):
                    a.I(f"v_cvt_pk_bf16_f32 v{O+4*k+j}, v{O+8*k+2*j}, v{O+8*k+2*j+1}")
                a.I(f"ds_write_b128 v{vAd}, {vr(O+4*k,4)} offset:{k*1024}")
                nw += 1
        if sm:
            a.I("s_nop 0")
            a.I(f"v_add_f32 v{l0+3}, v{l0+3}, v{Sc+15}")
            a.I(f"v_cvt_pk_bf16_f32 v{Pw+7}, v{Sc+14}, v{Sc+15}")
        if fin_l:
            for sb in range(2):
                a.I(f"v_add_f32 v{t0}, v{l0+2*sb}, v{l0+2*sb+1}")
                xreduce(t0, "v_add_f32", t1)
                a.I(f"v_rcp_f32 v{inv+2*sb}, v{t0}")
                a.I(f"v_mov_b32 v{l0+2*sb}, 0")
                a.I(f"v_mov_b32 v{inv+2*sb+1}, v{inv+2*sb}")
                a.I(f"v_mov_b32 v{l0+2*sb+1}, 0")
        if qk:
            a.pad_since(qk_mark, 8)
            if first:
                for sb in range(2):
                    b8 = Sn + 8*sb
                    a.I(f"v_max3_f32 v{mx}, v{b8}, v{b8+1}, v{b8+2}")
                    a.I(f"v_max3_f32 v{mx}, v{mx}, v{b8+3}, v{b8+4}")
                    a.I(f"v_max3_f32 v{mx}, v{mx}, v{b8+5}, v{b8+6}")
                    a.I(f"v_max_f32 v{mx}, v{mx}, v{b8+7}")
                    xreduce(mx, "v_max_f32", t0)
                    for j in range(8):
                        a.I(f"v_sub_f32 v{b8+j}, v{b8+j}, v{mx}")
                    for j in range(4):
                        a.I(f"v_sub_f32 v{NM+4*sb+j}, 0, v{mx}")
            else:
                a.I(f"v_max3_f32 v{mx}, v{Sn}, v{Sn+1}, v{Sn+2}")
                a.I(f"v_max3_f32 v{t1}, v{Sn+3}, v{Sn+4}, v{Sn+5}")
                a.I(f"v_max3_f32 v{mx}, v{mx}, v{Sn+6}, v{Sn+7}")
                a.I(f"v_max3_f32 v{t1}, v{t1}, v{Sn+8}, v{Sn+9}")
                a.I(f"v_max3_f32 v{mx}, v{mx}, v{Sn+10}, v{Sn+11}")
                a.I(f"v_max3_f32 v{t1}, v{t1}, v{Sn+12}, v{Sn+13}")
                a.I(f"v_max3_f32 v{mx}, v{mx}, v{Sn+14}, v{Sn+15}")
                a.I(f"v_max_f32 v{mx}, v{mx}, v{t1}")
                if check:
                    a.I(f"v_cmp_lt_f32 vcc, {hex(f2u(cfg.thresh))}, v{mx}")
                    a.I(f"s_cbranch_vccnz L_A_rare{tag}")
                    a.L(f"L_A_ret{tag}")
                    rare_blocks.append((tag, Sn, Pw, sm))
        a.I("s_waitcnt lgkmcnt(0)")

    a.I(f"s_mov_b32 s{sU}, 0")
    step(0, "_f0", pv=False, sm=False, first=True, vrd=False)
    step(1, "_f1", pv=False)
    a.I(f"s_mov_b32 s{sIt}, 0")
    a.I("s_branch L_A_b2")
    a.L("L_A_loop")
    a.I(f"s_lshl_b32 s{sA}, s{sU}, 2")
    a.I(f"s_add_u32 s{sA}, s{sA}, s{sIt}")
    a.I(f"s_cmp_lg_u32 s{sA}, s{sTrig}")
    a.I("s_cbranch_scc1 L_A_notrig")
    a.I(f"s_lshl_b32 s{sA}, s{sG}, 2")
    a.I(f"s_add_u32 s{sA}, s{sA}, 128")
    a.I("v_mov_b32 v252, 0")
    a.I(f"buffer_load_dword v253, v252, s[40:43], s{sA} offen sc1")
    a.L("L_A_notrig")
    a.I(f"s_cmp_lg_u32 s{sIt}, 0")
    a.I("s_cbranch_scc1 L_A_reg0")
    a.I(f"s_cmp_eq_u32 s{sU}, 4")
    a.I("s_cbranch_scc1 L_A_last")
    step(0, "_b0", first=True, fin_l=True)
    step(1, "_b1", finalize=True)
    a.L("L_A_b2")
    step(2, "_b2", pv_c0=True)
    a.I("s_branch L_A_reg3")
    a.L("L_A_reg0")
    step(0, "_0")
    step(1, "_1")
    step(2, "_2")
    a.L("L_A_reg3")
    step(3, "_3")
    a.I(f"s_add_u32 s{sIt}, s{sIt}, 1")
    a.I(f"s_cmp_eq_u32 s{sIt}, 4")
    a.I("s_cbranch_scc0 L_A_loop")
    a.I(f"s_mov_b32 s{sIt}, 0")
    a.I(f"s_add_u32 s{sU}, s{sU}, 1")
    a.I("s_branch L_A_loop")
    a.L("L_A_last")
    step(0, "_l0", qk=False, fin_l=True)
    step(1, "_l1", qk=False, sm=False, vrd=False, finalize=True)
    a.I("s_branch L_tail_ld")
    for tag, Sn, Pw, sm in rare_blocks:
        a.L(f"L_A_rare{tag}")
        a.I("s_nop 15")
        for sb in range(2):
            b8 = Sn + 8*sb
            a.I(f"v_max3_f32 v{mx}, v{b8}, v{b8+1}, v{b8+2}")
            a.I(f"v_max3_f32 v{mx}, v{mx}, v{b8+3}, v{b8+4}")
            a.I(f"v_max3_f32 v{mx}, v{mx}, v{b8+5}, v{b8+6}")
            a.I(f"v_max_f32 v{mx}, v{mx}, v{b8+7}")
            xreduce(mx, "v_max_f32", t0)
            a.I(f"v_max_f32 v{mx}, 0, v{mx}")
            a.I(f"v_ceil_f32 v{mx}, v{mx}")
            a.I(f"v_min_f32 v{t0}, 0x43480000, v{mx}")
            a.I(f"v_cvt_i32_f32 v{t0}, v{t0}")
            a.I(f"v_sub_u32 v{t0}, 0, v{t0}")
            a.I(f"v_ldexp_f32 v{t1}, 1.0, v{t0}")
            a.I(f"v_mov_b32 v{t2}, v{t1}")
            for j in range(8):
                a.I(f"v_sub_f32 v{b8+j}, v{b8+j}, v{mx}")
            for j in range(4):
                a.I(f"v_sub_f32 v{NM+4*sb+j}, v{NM+4*sb+j}, v{mx}")
            for kap in range(4):
                ob = O + (kap*2 + sb)*8
                for j in range(4):
                    a.I(f"v_pk_mul_f32 {vr(ob+2*j,2)}, {vr(ob+2*j,2)}, {vr(t1,2)}")
            a.I(f"v_mul_f32 v{l0+2*sb}, v{l0+2*sb}, v{t1}")
            a.I(f"v_mul_f32 v{l0+2*sb+1}, v{l0+2*sb+1}, v{t1}")
            for j in range(4):
                pr = Pw + 4*sb + j
                a.I(f"v_lshlrev_b32 v{mx}, 16, v{pr}")
                a.I(f"v_and_b32 v{t0}, 0xffff0000, v{pr}")
                a.I(f"v_mul_f32 v{mx}, v{mx}, v{t1}")
                a.I(f"v_mul_f32 v{t0}, v{t0}, v{t1}")
                a.I(f"v_cvt_pk_bf16_f32 v{pr}, v{mx}, v{t0}")
        a.I("s_nop 1")
        a.I(f"s_branch L_A_ret{tag}")

class LdsQ:
    def __init__(self): self.ops = []
    def issue(self, key): self.ops.append(key)
    def need(self, keys):
        last = max(len(self.ops) - 1 - self.ops[::-1].index(k) for k in keys)
        return len(self.ops) - 1 - last

SLAB = [[122880, 131072], [40960, 49152], [24576, 32768], [57344, 90112]]
def gen_tail(a):
    SWO = 32; SPT = 36; SDB = 40; SOUT = 44; SGO = 64
    sSt = 48; sA = 49; sBq = 50; sIt = 52; sRow = 53; sG = 55; sJ = 63
    vL = 255
    def tail_stamp_reset():
        if cfg.stamps:
            a.I("s_and_b32 s96, s96, 0xfffffc00")
            a.I(f"s_add_u32 s96, s96, {1000 if cfg.stamps == 2 else 512}")
    def part_srd():
        a.I(f"s_add_u32 s{SPT}, s{P_WS}, {cfg.part_off}")
        a.I(f"s_addc_u32 s{SPT+1}, s{P_WS+1}, 0")
        a.I(f"s_and_b32 s{SPT+1}, s{SPT+1}, 0xffff")
        a.I(f"s_mov_b32 s{SPT+2}, {hex(PART_BYTES)}")
        a.I(f"s_mov_b32 s{SPT+3}, 0x20000")
    def lane_id():
        a.I(f"v_mbcnt_lo_u32_b32 v{vL}, -1, 0")
        a.I(f"v_mbcnt_hi_u32_b32 v{vL}, -1, v{vL}")
    def group_id():
        a.I(f"s_lshl_b32 s{sG}, s{S_P}, 4")
        a.I(f"s_add_u32 s{sG}, s{sG}, s{S_B}")
    VO = 248
    sTab = 56; sG0 = 57
    def ld_slab(j0, nj, j0_reg=None):
        a.I(f"s_and_b32 s{sA}, s{sJ}, 15")
        a.I(f"s_add_u32 s{sA}, s{sA}, s{S_B}")
        a.I(f"s_and_b32 s{sA}, s{sA}, 15")
        a.I(f"s_lshl_b32 s{sA}, s{sA}, 15")
        if cfg.wo_fake: a.I(f"s_mov_b32 s{sA}, 0")
        a.I(f"s_lshr_b32 s{sBq}, s{sJ}, 4")
        a.I(f"s_xor_b32 s{sBq}, s{sBq}, s{S_B}")
        a.I(f"s_and_b32 s{sBq}, s{sBq}, 1")
        a.I(f"s_lshl_b32 s{sBq}, s{sBq}, 7")
        a.I(f"s_add_u32 s{sA}, s{sA}, s{sBq}")
        a.I(f"s_add_u32 s{sA}, s{sA}, s{sRow}")
        blk = [SLAB[sl][hf] // 8192 for sl in range(4) for hf in range(2)]
        lo = sum(blk[2*sl] << (8*sl) for sl in range(4)); hi = sum(blk[2*sl+1] << (8*sl) for sl in range(4))
        a.I(f"s_and_b32 s{sBq}, s{sJ}, 3")
        a.I(f"s_lshl_b32 s{sBq}, s{sBq}, 3")
        if j0_reg is None:
            for hf, tab in ((0, lo), (1, hi)):
                a.I(f"s_lshr_b32 s{sIt}, {hex(tab)}, s{sBq}")
                a.I(f"s_and_b32 s{sIt}, s{sIt}, 0xff")
                a.I(f"s_lshl_b32 s{sIt}, s{sIt}, 13")
                for j in range(8):
                    a.I(f"s_add_u32 m0, s{sIt}, {j*1024}")
                    if hf or j: a.I(f"s_add_u32 s{sA}, s{sA}, 2048")
                    else: a.I("s_nop 0")
                    a.I(f"buffer_load_dwordx4 v{VO + (j & 3)}, s[{SWO}:{SWO+3}], s{sA} offen{cfg.wo_pol} lds")
        else:
            a.I(f"s_lshr_b32 s{sIt}, s{sTab}, s{sBq}")
            a.I(f"s_and_b32 s{sIt}, s{sIt}, 0xff")
            a.I(f"s_lshl_b32 s{sIt}, s{sIt}, 13")
            a.I(f"s_add_u32 s{sIt}, s{sIt}, s{j0_reg}")
            a.I(f"s_add_u32 s{sA}, s{sA}, s{sG0}")
            for j in range(4):
                a.I(f"s_add_u32 m0, s{sIt}, {j*1024}")
                if j: a.I(f"s_add_u32 s{sA}, s{sA}, 2048")
                else: a.I("s_nop 0")
                a.I(f"buffer_load_dwordx4 v{VO + (j & 3)}, s[{SWO}:{SWO+3}], s{sA} offen{cfg.wo_pol} lds")
        a.I(f"s_add_u32 s{sJ}, s{sJ}, 1")

    a.L("L_tail_pre")
    a.I("s_load_dwordx2 s[60:61], s[0:1], 88")
    a.I("s_waitcnt lgkmcnt(0)")
    srd(a, SDB, 60, 256)
    lane_id()
    slab_voffsets(a, VO, vL, 10)
    tail_srds(a)
    a.I(f"s_lshl_b32 s{sRow}, s{S_HB}, 17")
    a.I(f"s_mov_b32 s{sJ}, 0")
    for n in (79, 80, 81):
        stamp(a, 246)
        a.I("s_barrier")
        stamp(a, 246)
        ld_slab(0, 16)
        stamp(a, 246)
    a.I("s_waitcnt vmcnt(16)")
    a.I("s_branch L_tail_ld2")
    a.L("L_tail_ld")
    a.I("s_setprio 0")
    a.I(f"s_lshl_b32 s{sRow}, s{S_HB}, 17")
    a.I(f"s_mov_b32 s{sJ}, 3")
    a.L("L_tail_ld2")
    group_id()
    a.I(f"s_cmp_lg_u32 s{S_WAVE}, 0")
    a.I("s_cbranch_scc1 L_T_rdy")
    a.I("s_waitcnt vmcnt(0)")
    a.I("v_readfirstlane_b32 s62, v253")
    a.I("s_cmp_ge_u32 s62, 8")
    a.I("s_cbranch_scc1 L_T_rdy")
    a.I(f"s_lshl_b32 s{sA}, s{sG}, 2")
    a.I(f"s_add_u32 s{sA}, s{sA}, 128")
    a.I(f"s_mov_b32 s{sIt}, 0")
    a.I("v_mov_b32 v252, 0")
    a.L("L_T_rdypoll")
    a.I(f"buffer_load_dword v253, v252, s[{SDB}:{SDB+3}], s{sA} offen sc1")
    a.I("s_waitcnt vmcnt(0)")
    a.I("v_readfirstlane_b32 s62, v253")
    a.I(f"s_add_u32 s{sIt}, s{sIt}, 1")
    a.I("s_cmp_ge_u32 s62, 8")
    a.I("s_cbranch_scc1 L_T_rdy")
    a.I(f"s_cmp_lt_u32 s{sIt}, 0x4000")
    a.I("s_cbranch_scc0 L_T_rdy")
    a.I("s_sleep 8")
    a.I("s_branch L_T_rdypoll")
    a.L("L_T_rdy")
    sJ0 = 51
    blk = [SLAB[sl][hf] // 8192 for sl in range(4) for hf in range(2)]
    lo = sum(blk[2*sl] << (8*sl) for sl in range(4)); hi = sum(blk[2*sl+1] << (8*sl) for sl in range(4))
    a.I(f"s_mov_b32 s{sTab}, {hex(lo)}")
    a.I(f"s_cmp_ge_u32 s{S_WAVE}, 2")
    a.I(f"s_cselect_b32 s{sTab}, {hex(hi)}, s{sTab}")
    a.I(f"s_and_b32 s{sJ0}, s{S_WAVE}, 1")
    a.I(f"s_lshl_b32 s{sJ0}, s{sJ0}, 12")
    a.I(f"s_lshl_b32 s{sG0}, s{S_WAVE}, 13")
    a.I("s_barrier")
    tail_stamp_reset()
    stamp(a, 246); stamp(a, 246, 1); dbg_stamp(a, 246)
    a.I(f"s_mov_b32 s{sSt}, 29")
    a.L("L_TL_loop")
    ld_slab(0, 4, sJ0)
    a.I("s_waitcnt vmcnt(4)")
    a.I("s_barrier")
    a.I(f"s_sub_u32 s{sSt}, s{sSt}, 1")
    a.I(f"s_cmp_lg_u32 s{sSt}, 0")
    a.I("s_cbranch_scc1 L_TL_loop")
    a.I("s_waitcnt vmcnt(0)")
    a.I("s_barrier")
    a.I("s_barrier")
    stamp(a, 246); stamp(a, 246, 1); dbg_stamp(a, 246)
    a.I(f"s_mov_b32 s{sJ}, s{S_WAVE}")
    a.I("s_branch L_T_reduce")

    a.L("L_tail_mm")
    ACC = [0, 96]; AF = 192; BF = 208; vAA = 232; vB = 240; vL16 = 242; PK = 244
    sWp = 51
    a.I("s_setprio 0")
    part_srd()
    group_id()
    go_srd(a, SGO)
    lane_id()
    a.I(f"s_sub_u32 s{sWp}, s{S_WAVE}, 4")
    T0 = 244
    a.I(f"v_and_b32 v{T0}, 15, v{vL}")
    a.I(f"v_lshrrev_b32 v{T0+1}, 4, v{vL}")
    a.I(f"v_lshrrev_b32 v{T0+2}, 2, v{T0}")
    a.I(f"v_lshl_add_u32 v{T0+3}, v{T0+1}, 2, v{T0+2}")
    a.I(f"v_lshlrev_b32 v{T0+4}, 9, v{T0+3}")
    a.I(f"v_and_b32 v{T0+5}, 3, v{T0}")
    a.I(f"v_lshl_add_u32 v{T0+4}, v{T0+5}, 3, v{T0+4}")
    a.I(f"s_lshr_b32 s{sA}, s{sWp}, 1")
    a.I(f"s_lshl_b32 s{sA}, s{sA}, 8")
    a.I(f"v_add_u32 v{T0+4}, s{sA}, v{T0+4}")
    a.I(f"v_and_b32 v{T0+3}, 7, v{T0+3}")
    a.I(f"s_and_b32 s{sA}, s{sWp}, 1")
    a.I(f"s_lshl_b32 s{sA}, s{sA}, 2")
    for t in range(4):
        a.I(f"s_add_u32 s{sBq}, s{sA}, {t}")
        a.I(f"v_xor_b32 v{T0+5}, s{sBq}, v{T0+3}")
        a.I(f"v_lshl_add_u32 v{vAA+t}, v{T0+5}, 5, v{T0+4}")
    a.I(f"v_lshlrev_b32 v{vL16}, 4, v{vL}")
    for j in range(192): a.I(f"v_mov_b32 v{j}, 0")
    TB = 68
    for i in range(16):
        a.I(f"s_add_u32 s{sA}, s{S_B}, {i}")
        a.I(f"s_and_b32 s{sA}, s{sA}, 15")
        a.I(f"s_lshr_b32 s{sBq}, s{sA}, 2")
        a.I(f"s_lshl_b32 s{sBq}, s{sBq}, 3")
        a.I(f"s_lshr_b32 s{sBq}, 0x80C11, s{sBq}")
        a.I(f"s_and_b32 s{sBq}, s{sBq}, 0xff")
        a.I(f"s_lshl_b32 s{sBq}, s{sBq}, 13")
        a.I(f"s_and_b32 s{sA}, s{sA}, 3")
        a.I(f"s_lshl_b32 s{sA}, s{sA}, 11")
        a.I(f"s_add_u32 s{TB+i}, s{sBq}, s{sA}")
    vAH = 236
    HI = 90112
    for t in range(4): a.I(f"v_add_u32 v{vAH+t}, {HI}, v{vAA+t}")
    q = LdsQ()
    done = [-1]
    def rdA(slot, t):
        for sec in range(2):
            base = SLAB[slot][sec]
            if base >= 65536: a.I(f"ds_read_b64_tr_b16 {vr(AF + t*4 + sec*2, 2)}, v{vAH+t} offset:{base - HI}")
            else: a.I(f"ds_read_b64_tr_b16 {vr(AF + t*4 + sec*2, 2)}, v{vAA+t} offset:{base}")
            q.issue(("A", t, sec))
    def rdB(par, sub):
        a.I(f"ds_read_b128 {vr(BF + sub*4, 4)}, v{vB+par} offset:{(sub >> 1)*8192 + (sub & 1)*1024}")
        q.issue(("B", sub))
    def acc(P, t, sub):
        return ACC[P] + ((sub*2 + (t >> 1))*2 + (t & 1))*4
    a.I(f"v_add_u32 v{vB}, s{TB}, v{vL16}")
    a.I(f"v_add_u32 v{vB+1}, s{TB+1}, v{vL16}")
    a.L("L_T_idle")
    a.I("s_barrier")
    a.I("s_sub_u32 s54, s54, 1")
    a.I("s_cmp_lg_u32 s54, 0")
    a.I("s_cbranch_scc1 L_T_idle")
    a.I("s_barrier")
    tail_stamp_reset()
    stamp(a, 246); stamp(a, 246, 1); dbg_stamp(a, 246)
    def order():
        return [(hf, t, j) for hf in range(2) for t in range(4) for j in range(3)]
    for (hf, t, j) in order():
        if t == 3: rdB(0, 3*hf + j)
        if hf == 1 and j == 2: rdA(0, t)
    def store_tile(P, ch, first_of_stage):
        base = ACC[P] + ch*16
        ops = [f"v_cvt_pk_bf16_f32 v{PK+j}, v{base+2*j}, v{base+2*j+1}" for j in range(8)]
        ops.append(f"s_add_u32 s{sBq}, s{sJ}, {ch*2048}")
        ops.append(f"buffer_store_dwordx4 {vr(PK,4)}, v{vL16}, s[{SPT}:{SPT+3}], s{sBq} offen{cfg.part_st_pol}")
        ops.append(f"buffer_store_dwordx4 {vr(PK+4,4)}, v{vL16}, s[{SPT}:{SPT+3}], s{sBq} offen offset:1024{cfg.part_st_pol}")
        ops.append("s_nop 1")
        return ops
    def part_base(P):
        a.I(f"s_lshl_b32 s{sJ}, s{sG}, 2")
        a.I(f"s_add_u32 s{sJ}, s{sJ}, s{sWp}")
        a.I(f"s_lshl_b32 s{sJ}, s{sJ}, 1")
        a.I(f"s_and_b32 s{sA}, s{S_B}, 1")
        a.I(f"s_xor_b32 s{sA}, s{sA}, {P}")
        a.I(f"s_add_u32 s{sJ}, s{sJ}, s{sA}")
        a.I(f"s_lshl_b32 s{sJ}, s{sJ}, 3")
        a.I(f"s_add_u32 s{sJ}, s{sJ}, s{S_MJ}")
        a.I(f"s_mul_i32 s{sJ}, s{sJ}, 12288")
    def raise_flag(P):
        a.I("s_waitcnt vmcnt(0)")
        a.I(f"s_lshl_b32 s{sA}, s{sG}, 2")
        a.I(f"s_add_u32 s{sA}, s{sA}, s{sWp}")
        a.I(f"s_lshl_b32 s{sA}, s{sA}, 1")
        a.I(f"s_and_b32 s{sBq}, s{S_B}, 1")
        a.I(f"s_xor_b32 s{sBq}, s{sBq}, {P}")
        a.I(f"s_add_u32 s{sA}, s{sA}, s{sBq}")
        a.I(f"s_lshl_b32 s{sA}, s{sA}, 7")
        a.I(f"s_lshl_b32 s{sBq}, s{S_MJ}, 2")
        a.I(f"s_add_u32 s{sA}, s{sA}, s{sBq}")
        a.I(f"v_mov_b32 v{PK}, 1")
        a.I(f"v_mov_b32 v{PK+1}, 0")
        a.I("s_mov_b64 s[60:61], exec")
        a.I("s_mov_b64 exec, 1")
        a.I(f"buffer_store_dword v{PK}, v{PK+1}, s[{SGO}:{SGO+3}], s{sA} offen sc1")
        a.I("s_mov_b64 exec, s[60:61]")
    def stage(sg, P, nxt=True, bar=True, extra=None, late=None):
        ns = (sg + 1) & 3; npar = (sg + 1) & 1
        extra = list(extra or []); late = list(late or [])
        nm = 0
        for (hf, t, j) in order():
            sub = 3*hf + j
            c = q.need([("B", sub), ("A", t, 0), ("A", t, 1)])
            pos = len(q.ops) - 1 - c
            if pos > done[0]:
                a.I(f"s_waitcnt lgkmcnt({min(15, c)})")
                done[0] = len(q.ops) - 1 - min(15, c)
            mfma(a, acc(P, t, sub), AF + t*4, BF + sub*4)
            nm += 1
            if nxt and t == 3: rdB(npar, sub)
            if nxt and hf == 1 and j == 2: rdA(ns, t)
            if nm == 1 and sg + 2 < 32:
                a.I(f"v_add_u32 v{vB + (sg & 1)}, s{TB + ((sg + 2) & 15)}, v{vL16}")
            if extra and nm >= 3: a.I(extra.pop(0))
            if nm in (20, 22) and late: a.I(late.pop(0))
        for o in extra + late: a.I(o)
        if bar: a.I("s_barrier")
    for sg in range(16): stage(sg, 0)
    if cfg.tailst: stamp(a, 246, 1)
    part_base(0)
    for st in range(16):
        extra = []; late = []
        if st < 6:
            ops = store_tile(0, st, False)
            extra = ops[:9]
            late = ops[9:11]
        stage(16 + st, 1, nxt=(st < 15), bar=(st < 15), extra=extra, late=late)
        if st == 7 and cfg.tailst: stamp(a, 246, 1)
        if st == 11: raise_flag(0)
        if st == 11 and cfg.tailst: stamp(a, 246, 1)
    mk = a.mark()
    part_base(1)
    stamp(a, 246); stamp(a, 246, 1); dbg_stamp(a, 246)
    a.pad_since(mk, 8)
    PKs = [244, 192, 200, 208]
    for t in range(6):
        PK = PKs[t % 4]
        for o in store_tile(1, t, False): a.I(o)
    PK = 244
    raise_flag(1)
    stamp(a, 246, 1); dbg_stamp(a, 246)
    a.I(f"s_cmp_ge_u32 s{S_WAVE}, 6")
    a.I("s_cbranch_scc1 L_k1_end")
    a.I(f"s_mov_b32 s{sJ}, s{S_WAVE}")
    a.L("L_T_reduce")
    vB = 242
    a.I(f"v_lshlrev_b32 v{vB}, 4, v{vL}")
    a.I("s_load_dwordx2 s[58:59], s[0:1], 80")
    sFl = 51
    a.I(f"s_lshl_b32 s{sFl}, s{sG}, 3")
    a.I(f"s_add_u32 s{sFl}, s{sFl}, s{S_MJ}")
    a.I(f"s_lshl_b32 s{sFl}, s{sFl}, 7")
    a.I(f"v_lshlrev_b32 v2, 2, v{vL}")
    a.I(f"s_lshl_b32 s{sA}, s{sG}, 3")
    a.I(f"s_add_u32 s{sA}, s{sA}, s{S_MJ}")
    a.I(f"s_mul_i32 s{sA}, s{sA}, 98304")
    a.I(f"s_lshl_b32 s{sBq}, s{sJ}, 11")
    a.I(f"s_add_u32 s{sA}, s{sA}, s{sBq}")
    a.I("s_mov_b64 s[60:61], exec")
    a.I(f"s_mov_b32 s{sIt}, 0")
    a.I("s_mov_b32 s62, 0")
    for src in range(8):
        a.L(f"L_T_w{src}")
        a.I(f"s_bitcmp1_b32 s62, {src}")
        a.I(f"s_cbranch_scc1 L_T_h{src}")
        a.I("s_mov_b64 exec, 0xff")
        a.I(f"buffer_load_dword v3, v2, s[{SGO}:{SGO+3}], s{sFl} offen sc1")
        a.I("s_waitcnt vmcnt(0)")
        a.I("v_cmp_eq_u32 vcc, 1, v3")
        a.I(f"s_add_u32 s{sIt}, s{sIt}, 1")
        a.I("s_mov_b64 exec, s[60:61]")
        a.I("s_and_b32 s62, vcc_lo, 0xff")
        a.I(f"s_cmp_lt_u32 s{sIt}, 0x8000")
        a.I("s_cselect_b32 s62, s62, 0xff")
        a.I(f"s_bitcmp1_b32 s62, {src}")
        a.I(f"s_cbranch_scc1 L_T_h{src}")
        a.I("s_sleep 1")
        a.I(f"s_branch L_T_w{src}")
        a.L(f"L_T_h{src}")
        a.I(f"s_add_u32 s{sBq}, s{sA}, {src*12288}")
        a.I(f"buffer_load_dwordx4 {vr(8+src*8,4)}, v{vB}, s[{SPT}:{SPT+3}], s{sBq} offen{cfg.part_ld_pol}")
        a.I(f"buffer_load_dwordx4 {vr(8+src*8+4,4)}, v{vB}, s[{SPT}:{SPT+3}], s{sBq} offen offset:1024{cfg.part_ld_pol}")
    stamp(a, 246); stamp(a, 246, 1); dbg_stamp(a, 246)
    a.I("s_waitcnt lgkmcnt(0)")
    srd(a, SOUT, 58, 16*96*1024*2)
    a.I(f"s_lshl_b32 s{sBq}, s{sJ}, 4")
    a.I(f"s_mul_i32 s{sA}, s{S_B}, 96")
    a.I(f"s_add_u32 s{sA}, s{sA}, s{sBq}")
    a.I(f"s_lshl_b32 s{sA}, s{sA}, 11")
    a.I(f"s_lshl_b32 s{sBq}, s{S_P}, 10")
    a.I(f"s_add_u32 s{sA}, s{sA}, s{sBq}")
    a.I(f"s_lshl_b32 s{sBq}, s{S_MJ}, 7")
    a.I(f"s_add_u32 s{sA}, s{sA}, s{sBq}")
    a.I(f"v_and_b32 v2, 15, v{vL}")
    a.I("v_lshlrev_b32 v2, 11, v2")
    a.I(f"v_lshrrev_b32 v3, 4, v{vL}")
    a.I("v_lshl_add_u32 v2, v3, 3, v2")
    RA = 80
    for src in range(8):
        a.I(f"s_waitcnt vmcnt({14 - 2*src})")
        for d in range(8):
            r = 8 + src*8 + d
            if src == 0:
                a.I(f"v_lshlrev_b32 v{RA+2*d}, 16, v{r}")
                a.I(f"v_and_b32 v{RA+2*d+1}, 0xffff0000, v{r}")
            else:
                a.I(f"v_lshlrev_b32 v4, 16, v{r}")
                a.I(f"v_and_b32 v5, 0xffff0000, v{r}")
                a.I(f"v_add_f32 v{RA+2*d}, v{RA+2*d}, v4")
                a.I(f"v_add_f32 v{RA+2*d+1}, v{RA+2*d+1}, v5")
    for d in range(8):
        a.I(f"v_cvt_pk_bf16_f32 v{8+d}, v{RA+2*d}, v{RA+2*d+1}")
    for e4 in range(4):
        a.I(f"buffer_store_dwordx2 v[{8+2*e4}:{9+2*e4}], v2, s[{SOUT}:{SOUT+3}], s{sA} offen offset:{e4*32}")
    a.I("s_waitcnt vmcnt(0)")
    stamp(a, 246); stamp(a, 246, 1); dbg_stamp(a, 246)
    a.I("s_waitcnt vmcnt(0)")
    a.L("L_k1_end")
    a.I("s_endpgm")

def gen_k2(a):
    a.I("s_cmp_ge_u32 s2, 256")
    a.I("s_cbranch_scc1 L_k2_end")
    a.I("s_load_dwordx2 s[4:5], s[0:1], 80")
    a.I("s_load_dwordx2 s[6:7], s[0:1], 96")
    if cfg.dbgst: a.I("s_memrealtime s[34:35]")
    a.I("v_lshrrev_b32 v1, 6, v0")
    a.I("v_and_b32 v0, 63, v0")
    a.I("v_readfirstlane_b32 s20, v1")
    a.I("s_waitcnt lgkmcnt(0)")
    srd(a, 8, 6, PART_BYTES)
    srd(a, 12, 4, 16*96*1024*2)
    a.I("s_mul_i32 s21, s2, 98304")
    a.I("s_lshl_b32 s22, s20, 11")
    a.I("s_add_u32 s21, s21, s22")
    a.I("v_lshlrev_b32 v1, 4, v0")
    for src in range(8):
        a.I(f"s_add_u32 s23, s21, {src*12288}")
        a.I(f"buffer_load_dwordx4 {vr(8+src*8,4)}, v1, s[8:11], s23 offen{cfg.part_ld_pol}")
        a.I(f"buffer_load_dwordx4 {vr(8+src*8+4,4)}, v1, s[8:11], s23 offen offset:1024{cfg.part_ld_pol}")
    a.I("s_lshr_b32 s24, s2, 3")
    a.I("s_and_b32 s25, s2, 7")
    a.I("s_and_b32 s26, s24, 15")
    a.I("s_lshr_b32 s27, s24, 4")
    a.I("s_lshr_b32 s28, s20, 1")
    a.I("s_and_b32 s29, s20, 1")
    a.I("s_mul_i32 s26, s26, 96")
    a.I("s_lshl_b32 s28, s28, 5")
    a.I("s_add_u32 s26, s26, s28")
    a.I("s_lshl_b32 s26, s26, 11")
    a.I("s_lshl_b32 s27, s27, 10")
    a.I("s_lshl_b32 s25, s25, 7")
    a.I("s_lshl_b32 s29, s29, 6")
    a.I("s_add_u32 s26, s26, s27")
    a.I("s_add_u32 s26, s26, s25")
    a.I("s_add_u32 s26, s26, s29")
    a.I("v_and_b32 v2, 31, v0")
    a.I("v_lshlrev_b32 v2, 11, v2")
    a.I("v_lshrrev_b32 v3, 5, v0")
    a.I("v_lshl_add_u32 v2, v3, 5, v2")
    ACC = 80
    for src in range(8):
        a.I(f"s_waitcnt vmcnt({14 - 2*src})")
        for d in range(8):
            r = 8 + src*8 + d
            if src == 0:
                a.I(f"v_lshlrev_b32 v{ACC+2*d}, 16, v{r}")
                a.I(f"v_and_b32 v{ACC+2*d+1}, 0xffff0000, v{r}")
            else:
                a.I(f"v_lshlrev_b32 v4, 16, v{r}")
                a.I(f"v_and_b32 v5, 0xffff0000, v{r}")
                a.I(f"v_add_f32 v{ACC+2*d}, v{ACC+2*d}, v4")
                a.I(f"v_add_f32 v{ACC+2*d+1}, v{ACC+2*d+1}, v5")
    for d in range(8):
        a.I(f"v_cvt_pk_bf16_f32 v{8+d}, v{ACC+2*d}, v{ACC+2*d+1}")
    a.I("buffer_store_dwordx4 v[8:11], v2, s[12:15], s26 offen")
    a.I("buffer_store_dwordx4 v[12:15], v2, s[12:15], s26 offen offset:16")
    a.I("s_waitcnt vmcnt(0)")
    if cfg.dbgst:
        a.I("s_cmp_lg_u32 s2, 0")
        a.I("s_cbranch_scc1 L_k2_end")
        a.I("s_cmp_lg_u32 s20, 0")
        a.I("s_cbranch_scc1 L_k2_end")
        a.I("s_memrealtime s[36:37]")
        a.I("s_load_dwordx2 s[30:31], s[0:1], 88")
        a.I("s_waitcnt lgkmcnt(0)")
        a.I(f"s_add_u32 s8, s6, {40<<20}")
        a.I("s_addc_u32 s9, s7, 0")
        a.I("s_and_b32 s9, s9, 0xffff")
        a.I("s_mov_b32 s10, 256")
        a.I("s_mov_b32 s11, 0x20000")
        a.I("s_mov_b32 s12, s30")
        a.I("s_and_b32 s13, s31, 0xffff")
        a.I("s_mov_b32 s14, 64")
        a.I("s_mov_b32 s15, 0x20000")
        a.I("v_lshlrev_b32 v1, 2, v0")
        a.I("buffer_load_dword v2, v1, s[8:11], 0 offen sc1")
        a.I("s_waitcnt vmcnt(0)")
        a.I("v_mov_b32 v3, s34")
        a.I("v_cmp_eq_u32 vcc, 14, v0")
        a.I("s_nop 1")
        a.I("v_cndmask_b32 v2, v2, v3, vcc")
        a.I("v_mov_b32 v3, s36")
        a.I("v_cmp_eq_u32 vcc, 15, v0")
        a.I("s_nop 1")
        a.I("v_cndmask_b32 v2, v2, v3, vcc")
        a.I("buffer_store_dword v2, v1, s[12:15], 0 offen")
        a.I("s_waitcnt vmcnt(0)")
    a.L("L_k2_end")
    a.I("s_endpgm")

def kd(a, name, vgpr, sgpr):
    a.raw('.section .rodata,"a"')
    a.raw(".p2align 6")
    a.raw(f".amdhsa_kernel {name}")
    a.raw(f"  .amdhsa_next_free_vgpr {vgpr}")
    a.raw(f"  .amdhsa_next_free_sgpr {sgpr}")
    a.raw(f"  .amdhsa_accum_offset {(vgpr+3)//4*4}")
    a.raw("  .amdhsa_group_segment_fixed_size 0")
    a.raw("  .amdhsa_kernarg_size 104")
    a.raw("  .amdhsa_user_sgpr_count 2")
    a.raw("  .amdhsa_user_sgpr_kernarg_segment_ptr 1")
    a.raw("  .amdhsa_system_sgpr_workgroup_id_x 1")
    a.raw(".end_amdhsa_kernel")

def build():
    a = Asm()
    global K1
    if cfg.fused:
        K1 = NAME + "_kernel"
        a.raw(f"; @launch grid=(256,1,1) block=(512,1,1) lds={LDS_BYTES}")
    else:
        a.raw(f"; @launch kernel={K1} grid=(256,1,1) block=(512,1,1) lds={LDS_BYTES}")
        a.raw(f"; @launch kernel={K2} grid=(256,1,1) block=(384,1,1) lds=0")
    a.raw('.amdgcn_target "amdgcn-amd-amdhsa--gfx950"')
    a.raw(".text")
    a.raw(f".globl {K1}")
    a.raw(".p2align 8")
    a.raw(f".type {K1},@function")
    a.L(K1)
    setup_common(a)
    gen_loader(a, True)
    gen_loader(a, False)
    gen_G(a)
    gen_A(a)
    gen_tail(a)
    if not cfg.fused:
        a.raw(f".globl {K2}")
        a.raw(".p2align 8")
        a.raw(f".type {K2},@function")
        a.L(K2)
        gen_k2(a)
    kd(a, K1, 256, 102 if (cfg.stamps or cfg.dbgst) else 84)
    if not cfg.fused:
        a.raw(".text")
        kd(a, K2, 96, 40)
    return a

if __name__ == "__main__":
    for arg in sys.argv[2:]:
        k, v = arg.split("=", 1)
        cur = getattr(cfg, k)
        if isinstance(cur, bool): v = v in ("1", "True", "true")
        elif isinstance(cur, int): v = int(v)
        elif isinstance(cur, float): v = float(v)
        else: v = v.replace("_", " ")
        setattr(cfg, k, v)
    a = build()
    out = sys.argv[1] if len(sys.argv) > 1 else f"cdna_kernels/{NAME}.s"
    open(out, "w").write(a.text())
    probs = check_file(a.lines)
    for p in probs: print("HAZARD", p)
    print("wrote", out, len(a.lines), "lines;", len(probs), "hazard reports")
```

```python
import struct, math, sys
from asmlib import Asm, vr, sr, check_file

NAME = "concat_heads__mha_block_cached__gqa_block_cached__near_ridge"
K1 = "attn_kernel"
K2 = "reduce_kernel"

def f2u(x): return struct.unpack("<I", struct.pack("<f", x))[0]
CSCALE = math.log2(math.e) / math.sqrt(128.0)

KR = 0; VR = 32768; WR = 65536; QH = 98304; XS = 98304
OS = [122880, 98304, 65536, 0]
STAGE = [24576, 32768, 40960, 49152, 57344, 90112, 147456, 155648]
LDS_BYTES = 163840
PART_BYTES = 32 * 64 * 12288

class Cfg:
    kv_pol = " nt"
    wq_pol = " nt"
    x_pol = ""
    wo_pol = ""
    part_st_pol = " sc1"
    part_ld_pol = " sc1"
    thresh = 8.0
    debug_dump = False
    prio_a = 0
    stamps = 0
    nokv = False
    nog = False
    mmprio = 3
    vearly = False
    pollcnt = False
    pkadd = False
    rotmask = 0
    rotshift = 2
    cwstep = 11
    codewarm = False
    k0early = 9
    xsched = 1
    wfirst = True
    ldprio = 0
    tailst = False
    ghalf = 0
    t_nowait = False
    t_contig = False
    t_nodma = False
    t_nord = False
    t_early = False
    wo_fake = False
    dbgwave = 0
    dbgwg = 0
    part_off = 0
    fused = True
    noa = False
    nogr = False
    nowq = False
    dbgst = False

cfg = Cfg()

S_WAVE = 20; S_XCD = 21; S_SLOT = 22; S_P = 23; S_B = 24; S_HQ = 25; S_HB = 26; S_RHO = 27; S_MJ = 28
P_X = 8; P_K = 10; P_V = 12; P_WQ = 14; P_WO = 16; P_WS = 18

def srd(a, dst, ptr, size):
    a.I(f"s_mov_b32 s{dst}, s{ptr}")
    a.I(f"s_and_b32 s{dst+1}, s{ptr+1}, 0xffff")
    a.I(f"s_mov_b32 s{dst+2}, {hex(size)}")
    a.I(f"s_mov_b32 s{dst+3}, 0x20000")

def setup_common(a):
    a.I("s_cmp_ge_u32 s2, 256")
    a.I("s_cbranch_scc1 L_k1_end")
    a.I(f"s_and_b32 s{S_XCD}, s2, 7")
    a.I(f"s_lshr_b32 s{S_SLOT}, s2, 3")
    a.I(f"s_lshr_b32 s{S_P}, s{S_XCD}, 2")
    a.I(f"s_mul_i32 s3, s{S_P}, 40")
    a.I("s_add_u32 s4, s0, s3")
    a.I("s_addc_u32 s5, s1, 0")
    a.I("s_load_dwordx8 s[8:15], s[4:5], 0")
    a.I(f"s_load_dwordx2 s[{P_WO}:{P_WO+1}], s[4:5], 32")
    a.I(f"s_load_dwordx2 s[{P_WS}:{P_WS+1}], s[0:1], 96")
    a.I("v_lshrrev_b32 v1, 6, v0")
    a.I("v_and_b32 v0, 63, v0")
    a.I(f"v_readfirstlane_b32 s{S_WAVE}, v1")
    a.I(f"s_lshr_b32 s{S_B}, s{S_SLOT}, 1")
    a.I(f"s_and_b32 s{S_HQ}, s{S_SLOT}, 1")
    a.I(f"s_and_b32 s3, s{S_XCD}, 3")
    a.I("s_lshl_b32 s3, s3, 1")
    a.I(f"s_add_u32 s{S_MJ}, s3, s{S_HQ}")
    a.I(f"s_lshl_b32 s{S_HB}, s{S_MJ}, 2")
    a.I(f"s_and_b32 s{S_RHO}, s{S_B}, {cfg.rotmask}")
    a.I(f"s_lshl_b32 s{S_RHO}, s{S_RHO}, {cfg.rotshift}")
    a.I("s_waitcnt lgkmcnt(0)")
    dbg_setup(a)
    a.I(f"s_cmp_lt_u32 s{S_WAVE}, 3")
    a.I("s_cbranch_scc1 L_roleA")
    a.I(f"s_cmp_eq_u32 s{S_WAVE}, 3")
    a.I("s_cbranch_scc1 L_roleLK")
    a.I(f"s_cmp_eq_u32 s{S_WAVE}, 7")
    a.I("s_cbranch_scc1 L_roleLV")
    a.I("s_branch L_roleG")

def gen_loader(a, isK):
    tag = "LK" if isK else "LV"
    D = 13 if isK else 14
    a.L(f"L_role{tag}")
    if cfg.ldprio: a.I(f"s_setprio {cfg.ldprio}")
    SKV = 32; SW = 36
    srd(a, SKV, P_K if isK else P_V, 0x4000000)
    srd(a, SW, P_WQ, 0x400000)
    sKB = 48; sT = 49; sTau = 50; sN = 51; sA = 52; sBq = 53; sWrow = 54
    a.I(f"s_lshl_b32 s{sKB}, s{S_B}, 5")
    a.I(f"s_add_u32 s{sKB}, s{sKB}, s{S_HB}")
    a.I(f"s_lshl_b32 s{sKB}, s{sKB}, 17")
    a.I("v_and_b32 v1, 15, v0")
    a.I("v_lshrrev_b32 v2, 4, v0")
    if isK:
        for j in range(4):
            a.I(f"v_add_u32 v3, {4*j}, v2")
            a.I("v_xor_b32 v3, v1, v3")
            a.I("v_lshlrev_b32 v3, 4, v3")
            a.I(f"v_lshl_add_u32 v{4+j}, v2, 8, v3")
    else:
        for j in range(4):
            a.I(f"v_add_u32 v3, {4*(j & 1)}, v2")
            a.I("v_lshlrev_b32 v3, 1, v3")
            a.I("v_xor_b32 v3, v1, v3")
            a.I("v_lshlrev_b32 v3, 4, v3")
            a.I(f"v_lshl_add_u32 v{4+j}, v2, 8, v3")
    a.I("v_lshlrev_b32 v3, 2, v2")
    a.I("v_xor_b32 v3, v1, v3")
    a.I("v_lshlrev_b32 v3, 4, v3")
    a.I("v_lshlrev_b32 v9, 13, v2")
    a.I("v_add_u32 v8, v9, v3")
    i0 = 0 if isK else 4
    LB = KR if isK else VR

    def issue_w():
        a.I(f"s_add_u32 s{sA}, s{S_RHO}, s{sTau}")
        a.I(f"s_and_b32 s{sA}, s{sA}, 15")
        a.I(f"s_lshl_b32 s{sA}, s{sA}, 18")
        a.I(f"s_lshr_b32 s{sBq}, s{sTau}, 4")
        a.I(f"s_add_u32 s{sBq}, s{sBq}, s{S_HB}")
        a.I(f"s_lshl_b32 s{sBq}, s{sBq}, 8")
        a.I(f"s_add_u32 s{sA}, s{sA}, s{sBq}")
        a.I(f"s_add_u32 s{sA}, s{sA}, {i0*4*8192}")
        a.I(f"s_and_b32 s{sBq}, s{sTau}, 3")
        a.I(f"s_lshl_b32 s{sBq}, s{sBq}, 13")
        a.I(f"s_add_u32 s{sBq}, s{sBq}, {WR + i0*1024}")
        for i in range(4):
            a.I(f"s_add_u32 m0, s{sBq}, {i*1024}")
            if i: a.I(f"s_add_u32 s{sA}, s{sA}, 32768")
            else: a.I("s_nop 0")
            a.I(f"buffer_load_dwordx4 v8, s[{SW}:{SW+3}], s{sA} offen{cfg.wq_pol} lds")
        a.I(f"s_add_u32 s{sTau}, s{sTau}, 1")

    def issue_kv():
        a.I(f"s_lshl_b32 s{sA}, s{sT}, 13")
        a.I(f"s_add_u32 s{sA}, s{sA}, s{sKB}")
        a.I(f"s_and_b32 s{sBq}, s{sT}, 3")
        a.I(f"s_lshl_b32 s{sBq}, s{sBq}, 13")
        for half in range(2):
            if cfg.nokv: break
            a.I(f"s_add_u32 m0, s{sBq}, {LB + half*4096}")
            if half: a.I(f"s_add_u32 s{sA}, s{sA}, 4096")
            else: a.I("s_nop 0")
            for j in range(4):
                off = f" offset:{j*1024}" if j else ""
                a.I(f"buffer_load_dwordx4 v{4+j}, s[{SKV}:{SKV+3}], s{sA} offen{off}{cfg.kv_pol} lds")
        a.I(f"s_add_u32 s{sT}, s{sT}, 1")

    stamp_setup(a)
    a.I(f"s_mov_b32 s{sT}, 0")
    a.I(f"s_mov_b32 s{sTau}, 0")
    pstamp(a, 20)
    for _ in range(4): issue_w()
    pstamp(a, 20)
    a.I(f"s_waitcnt vmcnt({12 + (1 if cfg.stamps == 3 else 0)})")
    pstamp(a, 20)
    a.I("s_barrier")
    a.I("s_waitcnt vmcnt(8)")
    WLAST = 16 if cfg.nowq else 59
    def has_kv(n):
        if cfg.nokv: return False
        if isK and cfg.k0early:
            return n == cfg.k0early or (D + 1 <= n <= D + 63)
        return D <= n <= D + 63
    def cnt(n):
        if n < 0: return 4
        return (4 if n <= WLAST else 0) + (8 if has_kv(n) else 0)
    phases = []
    for n in range(79 if isK else 80):
        key = (has_kv(n), n <= WLAST, cnt(n) + cnt(n - 1))
        if phases and phases[-1][0] == key: phases[-1][2] = n
        else: phases.append([key, n, n])
    for pi, (key, n0, n1) in enumerate(phases):
        kv, w, N = key
        cntn = n1 - n0 + 1
        if cntn > 1:
            a.I(f"s_mov_b32 s{sN}, {cntn}")
            a.L(f"L_{tag}_ph{pi}")
        a.I("s_barrier")
        stamp(a, 20)
        if cfg.wfirst:
            if w: issue_w()
            if kv: issue_kv()
        else:
            if kv: issue_kv()
            if w: issue_w()
        stamp(a, 20)
        a.I(f"s_waitcnt vmcnt({N + (7 if cfg.stamps == 2 else 0)})")
        stamp(a, 20)
        if cntn > 1:
            a.I(f"s_sub_u32 s{sN}, s{sN}, 1")
            a.I(f"s_cmp_lg_u32 s{sN}, 0")
            a.I(f"s_cbranch_scc1 L_{tag}_ph{pi}")
    if not isK: a.I("s_mov_b32 s54, 2")
    a.I("s_branch L_tail_pre" if isK else "s_branch L_tail_mm")

STAMP_BASE = 32 << 20
def stamp_setup(a):
    if not cfg.stamps: return
    a.I(f"s_mov_b32 s92, s{P_WS}")
    a.I(f"s_and_b32 s93, s{P_WS+1}, 0xffff")
    a.I(f"s_mov_b32 s94, {hex(STAMP_BASE + (2<<20))}")
    a.I("s_mov_b32 s95, 0x20000")
    a.I("s_lshl_b32 s96, s2, 3")
    a.I(f"s_add_u32 s96, s96, s{S_WAVE}")
    a.I("s_lshl_b32 s96, s96, 10")
    a.I(f"s_add_u32 s96, s96, {STAMP_BASE}")
def stamp(a, vtmp, level=2):
    if cfg.stamps != level: return
    a.I("s_memrealtime s[98:99]")
    if level == 1: a.I("s_memtime s[100:101]")
    a.I("s_waitcnt lgkmcnt(0)")
    a.I(f"v_mov_b32 v{vtmp}, s98")
    a.I(f"v_mov_b32 v{vtmp+1}, 0")
    a.I(f"buffer_store_dword v{vtmp}, v{vtmp+1}, s[92:95], s96 offen")
    if level == 1:
        a.I(f"v_mov_b32 v{vtmp}, s100")
        a.I(f"buffer_store_dword v{vtmp}, v{vtmp+1}, s[92:95], s96 offen offset:4")
        a.I("s_add_u32 s96, s96, 4")
    a.I("s_add_u32 s96, s96, 4")

def pstamp(a, v):
    stamp(a, v, 3)
def dbg_setup(a):
    if not cfg.dbgst: return
    a.I("s_load_dwordx2 s[90:91], s[0:1], 88")
    a.I("s_waitcnt lgkmcnt(0)")
    a.I("s_mov_b32 s92, s90")
    a.I("s_and_b32 s93, s91, 0xffff")
    a.I("s_mov_b32 s94, 0")
    a.I("s_mov_b32 s96, 0")
    a.I(f"s_cmp_lg_u32 s{S_WAVE}, {cfg.dbgwave}")
    a.I("s_cbranch_scc1 L_dbg_done")
    a.I(f"s_cmp_eq_u32 s2, {cfg.dbgwg}")
    a.I("s_cselect_b32 s94, 64, 0")
    a.L("L_dbg_done")
    a.I("s_mov_b32 s95, 0x20000")
def dbg_stamp(a, vtmp):
    if not cfg.dbgst: return
    a.I("s_memrealtime s[98:99]")
    a.I("s_waitcnt lgkmcnt(0)")
    a.I(f"v_mov_b32 v{vtmp}, s98")
    a.I(f"v_mov_b32 v{vtmp+1}, 0")
    a.I(f"buffer_store_dword v{vtmp}, v{vtmp+1}, s[92:95], s96 offen")
    a.I("s_add_u32 s96, s96, 4")

GO_OFF = 26 << 20
def go_srd(a, dst):
    a.I(f"s_add_u32 s{dst}, s{P_WS}, {GO_OFF}")
    a.I(f"s_addc_u32 s{dst+1}, s{P_WS+1}, 0")
    a.I(f"s_and_b32 s{dst+1}, s{dst+1}, 0xffff")
    a.I(f"s_mov_b32 s{dst+2}, {256*128}")
    a.I(f"s_mov_b32 s{dst+3}, 0x20000")

def mfma(a, d, A, B, c=None):
    cs = vr(d, 4) if c is None else (c if isinstance(c, str) else vr(c, 4))
    a.I(f"v_mfma_f32_16x16x32_bf16 {vr(d,4)}, {vr(A,4)}, {vr(B,4)}, {cs}")

def kpattern_addr(a, dst, n):
    a.I("v_and_b32 v1, 15, v0")
    a.I("v_lshrrev_b32 v2, 4, v0")
    a.I("v_xor_b32 v3, v1, v2")
    a.I("v_lshlrev_b32 v1, 8, v1")
    for k in range(n):
        a.I(f"v_xor_b32 v2, {4*k}, v3")
        a.I(f"v_lshl_add_u32 v{dst+k}, v2, 4, v1")

def gen_G(a):
    a.L("L_roleG")
    X = 0; QA = 128; WF = 192; vWA = 224; vXA = 228; vXO = 236; vL16 = 240; vLane = 241
    SX = 32
    sW = 48; sA = 49; sBq = 50; sU = 51; sXb = 52; sC = 56; sPi = 53
    a.I(f"s_sub_u32 s{sW}, s{S_WAVE}, 4")
    a.I(f"s_mov_b32 s{sC}, {hex(f2u(CSCALE))}")
    a.I(f"s_mov_b32 s{sC+1}, {hex(f2u(CSCALE))}")
    a.I(f"v_mov_b32 v{vLane}, v0")
    a.I(f"v_lshlrev_b32 v{vL16}, 4, v0")
    kpattern_addr(a, vXA, 4)
    a.I(f"s_lshl_b32 s{sA}, s{sW}, 14")
    a.I(f"s_add_u32 s{sA}, s{sA}, {XS}")
    for k in range(4):
        a.I(f"v_add_u32 v{vXA+k}, s{sA}, v{vXA+k}")
    a.I("v_and_b32 v1, 15, v0")
    a.I("v_lshrrev_b32 v2, 4, v0")
    a.I("v_lshrrev_b32 v3, 2, v1")
    a.I("v_lshl_add_u32 v5, v2, 3, v3")
    a.I("v_lshlrev_b32 v5, 8, v5")
    a.I("v_and_b32 v6, 3, v1")
    a.I("v_lshl_add_u32 v5, v6, 4, v5")
    a.I(f"v_add_u32 v5, {WR}, v5")
    for i in range(4):
        a.I(f"v_xor_b32 v6, {i}, v3")
        a.I(f"v_lshl_add_u32 v{vWA+i}, v6, 6, v5")
    stamp_setup(a)
    pstamp(a, 246)
    pstamp(a, 246)

    def x_reads(piece):
        if piece == 2:
            for k in range(4): a.I(f"v_subrev_u32 v{vXA+k}, {XS}, v{vXA+k}")
        for t in range(4):
            for sb in range(2):
                a.I(f"ds_read_b128 {vr(X + piece*32 + t*8 + sb*4, 4)}, v{vXA+t} offset:{(piece&1)*8192 + sb*4096}")
    def rd(slot, i):
        return [f"ds_read_b64_tr_b16 {vr(WF + i*4 + sec*2, 2)}, v{vWA + (i >> 1)} offset:{slot*8192 + sec*1024 + (i & 1)*8}" for sec in range(2)]
    def qa(i, sb):
        return QA + (((i >> 1)*2 + sb)*2 + (i & 1))*4

    def task(t, first_unit, nxt=True):
        stamp(a, 246)
        a.I("s_barrier")
        stamp(a, 246)
        if cfg.nogr and not first_unit: return
        ns = (t + 1) & 3
        xb = X + t*8
        for i in range(8):
            for sb in range(2):
                if not (cfg.nog and not first_unit) and not (cfg.ghalf and not first_unit and i >= 8 - cfg.ghalf):
                    mfma(a, qa(i, sb), WF + i*4, xb + 4*sb, "0" if t == 0 else None)
                if nxt and i >= 1: a.I(rd(ns, i - 1)[sb])
        if nxt:
            for o in rd(ns, 7): a.I(o)
        if first_unit and t % 4 == 3 and t < 15:
            x_reads(t // 4 + 1)
        a.I("s_waitcnt lgkmcnt(0)")
        if first_unit: pstamp(a, 246)

    def handoff():
        a.I(f"s_cmp_lt_u32 s{sU}, 3")
        a.I(f"s_cselect_b32 s{sA}, {QH//8192}, {WR//8192}")
        a.I(f"s_add_u32 s{sA}, s{sA}, s{sW}")
        a.I(f"s_lshl_b32 s{sA}, s{sA}, 13")
        a.I(f"v_add_u32 v242, s{sA}, v{vL16}")
        a.I("s_nop 3")
        for k in range(8):
            for j in range(4):
                a.I(f"v_pk_mul_f32 {vr(QA+8*k+2*j,2)}, {vr(QA+8*k+2*j,2)}, s[{sC}:{sC+1}]")
            for j in range(4):
                a.I(f"v_cvt_pk_bf16_f32 v{QA+4*k+j}, v{QA+8*k+2*j}, v{QA+8*k+2*j+1}")
            a.I(f"ds_write_b128 v242, {vr(QA+4*k,4)} offset:{k*1024}")
        a.I("s_waitcnt lgkmcnt(0)")

    a.I("s_barrier")
    pstamp(a, 246)
    x_reads(0)
    for i in range(8):
        for o in rd(0, i): a.I(o)
    a.I("s_waitcnt lgkmcnt(0)")
    pstamp(a, 246)
    a.I(f"s_mov_b32 s{sU}, 0")
    for t in range(16): task(t, True)
    handoff()
    a.I(f"s_mov_b32 s{sU}, 1")
    a.L("L_G_unit")
    for t in range(15): task(t, False)
    task(15, False)
    handoff()
    a.I(f"s_add_u32 s{sU}, s{sU}, 1")
    a.I(f"s_cmp_lt_u32 s{sU}, 4")
    a.I("s_cbranch_scc1 L_G_unit")
    a.I("s_mov_b32 s54, 18")
    a.I("s_branch L_tail_mm")

def slab_voffsets(a, VO, lane, t):
    for jp in range(4):
        a.I(f"v_lshrrev_b32 v{t}, 5, v{lane}")
        a.I(f"v_bfe_u32 v{t+1}, v{lane}, 1, 3")
        a.I(f"v_add_u32 v{t+2}, {2*jp}, v{t}")
        a.I(f"v_xor_b32 v{t+1}, v{t+1}, v{t+2}")
        a.I(f"v_lshlrev_b32 v{t}, 10, v{t}")
        a.I(f"v_bfe_u32 v{t+2}, v{lane}, 4, 1")
        a.I(f"v_lshl_add_u32 v{t}, v{t+2}, 9, v{t}")
        a.I(f"v_lshrrev_b32 v{t+2}, 2, v{t+1}")
        a.I(f"v_lshl_add_u32 v{t}, v{t+2}, 8, v{t}")
        a.I(f"v_and_b32 v{t+2}, 3, v{t+1}")
        a.I(f"v_lshl_add_u32 v{t}, v{t+2}, 5, v{t}")
        a.I(f"v_and_b32 v{t+2}, 1, v{lane}")
        a.I(f"v_lshl_add_u32 v{VO+jp}, v{t+2}, 4, v{t}")

def tail_srds(a):
    srd(a, 32, P_WO, 0x400000)
    a.I(f"s_add_u32 s36, s{P_WS}, {cfg.part_off}")
    a.I(f"s_addc_u32 s37, s{P_WS+1}, 0")
    a.I("s_and_b32 s37, s37, 0xffff")
    a.I(f"s_mov_b32 s38, {hex(PART_BYTES)}")
    a.I("s_mov_b32 s39, 0x20000")
    go_srd(a, 64)

class LdsQ:
    def __init__(self): self.ops = []
    def issue(self, key): self.ops.append(key)
    def need(self, keys):
        last = max(len(self.ops) - 1 - self.ops[::-1].index(k) for k in keys)
        return len(self.ops) - 1 - last

def gen_A(a):
    a.L("L_roleA")
    O = 0; Q = 64; S = [96, 112]; NM = 128; P = [136, 144]; KF = 152; VF = 184
    vKA = 216; vVA = 220; l0 = 228; mx = 232; t0 = 233; inv = 234; vL16 = 242; vAd = 243; t1 = 238; t2 = 239; t3 = 240
    sIt = 48; sU = 49; sA = 50; sBq = 51; sW = S_WAVE
    if cfg.prio_a: a.I(f"s_setprio {cfg.prio_a}")
    stamp_setup(a)
    stamp(a, 246)
    stamp(a, 246, 1)
    dbg_stamp(a, 246)
    SX = 44; sXb = 58; sPi = 59
    srd(a, SX, P_X, 16*96*512*2)
    a.I("v_and_b32 v1, 15, v0")
    a.I("v_lshrrev_b32 v2, 4, v0")
    for j in range(4):
        a.I(f"v_add_u32 v3, {4*j}, v2")
        a.I("v_xor_b32 v3, v1, v3")
        a.I("v_lshlrev_b32 v3, 4, v3")
        a.I(f"v_lshl_add_u32 v{8+j}, v2, 10, v3")
    a.I(f"s_mul_i32 s{sXb}, s{S_B}, 98304")
    a.I(f"s_lshl_b32 s{sA}, s{sW}, 15")
    a.I(f"s_add_u32 s{sXb}, s{sXb}, s{sA}")
    def issue_x(piece, i0=0, i1=8):
        a.I(f"s_lshr_b32 s{sPi}, s{S_RHO}, 2")
        a.I(f"s_add_u32 s{sPi}, s{sPi}, {piece}")
        a.I(f"s_and_b32 s{sPi}, s{sPi}, 3")
        a.I(f"s_lshl_b32 s{sPi}, s{sPi}, 8")
        a.I(f"s_add_u32 s{sA}, s{sXb}, s{sPi}")
        if i0: a.I(f"s_add_u32 s{sA}, s{sA}, {i0*4096}")
        a.I(f"s_lshl_b32 s{sBq}, s{sW}, 14")
        a.I(f"s_add_u32 s{sBq}, s{sBq}, {(XS if piece < 2 else 0) + (piece & 1)*8192}")
        for i in range(i0, i1):
            a.I(f"s_add_u32 m0, s{sBq}, {i*1024}")
            if i > i0: a.I(f"s_add_u32 s{sA}, s{sA}, 4096")
            else: a.I("s_nop 0")
            a.I(f"buffer_load_dwordx4 v{8 + (i & 3)}, s[{SX}:{SX+3}], s{sA} offen{cfg.x_pol} lds")
    issue_x(0)
    sG = 55; sTrig = 54; vRdy = 245
    a.I(f"s_lshl_b32 s{sG}, s{S_P}, 4")
    a.I(f"s_add_u32 s{sG}, s{sG}, s{S_B}")
    a.I(f"s_mov_b32 s{sTrig}, 0xffff")
    a.I("s_load_dwordx2 s[56:57], s[0:1], 88")
    a.I("s_waitcnt lgkmcnt(0)")
    srd(a, 40, 56, 256)
    a.I(f"v_lshlrev_b32 v{vL16}, 4, v0")
    a.I("v_mov_b32 v255, v0")
    slab_voffsets(a, 248, 255, 1)
    tail_srds(a)
    kpattern_addr(a, vKA, 4)
    a.I("v_and_b32 v1, 15, v0")
    a.I("v_lshrrev_b32 v2, 4, v0")
    a.I("v_lshrrev_b32 v3, 2, v1")
    a.I("v_lshl_add_u32 v4, v2, 2, v3")
    a.I("v_lshlrev_b32 v5, 8, v4")
    a.I("v_and_b32 v6, 3, v1")
    a.I("v_lshl_add_u32 v5, v6, 3, v5")
    a.I(f"v_add_u32 v5, {VR}, v5")
    a.I("v_and_b32 v4, 7, v4")
    for i in range(8):
        a.I(f"v_xor_b32 v6, {i}, v4")
        a.I(f"v_lshl_add_u32 v{vVA+i}, v6, 5, v5")
    for j in range(4): a.I(f"v_mov_b32 v{l0+j}, 0")
    def handoff_setup():
        a.I(f"s_cmp_lg_u32 s{S_WAVE}, 0")
        a.I("s_cbranch_scc1 L_A_noreset")
        go_srd(a, 64)
        a.I(f"s_lshl_b32 s{sA}, s{sG}, 3")
        a.I(f"s_add_u32 s{sA}, s{sA}, s{S_MJ}")
        a.I(f"s_lshl_b32 s{sA}, s{sA}, 7")
        a.I("v_mov_b32 v1, 0")
        a.I("v_lshlrev_b32 v2, 2, v0")
        a.I("s_mov_b64 s[60:61], exec")
        a.I("s_mov_b64 exec, 0xff")
        a.I(f"buffer_store_dword v1, v2, s[64:67], s{sA} offen sc1")
        a.I("s_waitcnt vmcnt(0)")
        a.I("s_mov_b64 exec, 1")
        a.I("v_mov_b32 v2, 1")
        a.I(f"s_lshl_b32 s{sA}, s{sG}, 2")
        a.I(f"s_add_u32 s{sA}, s{sA}, 128")
        a.I(f"buffer_atomic_add v2, v1, s[40:43], s{sA} offen")
        a.I("s_mov_b64 exec, s[60:61]")
        a.I("s_lshr_b32 s3, s2, 3")
        a.I("s_mul_i32 s3, s3, 3")
        a.I("s_lshr_b32 s3, s3, 3")
        a.I(f"s_add_u32 s{sTrig}, s3, 4")
        a.L("L_A_noreset")
    def code_warm():
        a.I("s_getpc_b64 s[60:61]")
        a.L("L_pc_here")
        a.I(f"s_sub_u32 s60, s60, L_pc_here-{K1}")
        a.I("s_subb_u32 s61, s61, 0")
        a.I("s_mov_b32 s68, s60")
        a.I("s_and_b32 s69, s61, 0xffff")
        a.I(f"s_mov_b32 s70, L_k1_end-{K1}")
        a.I("s_mov_b32 s71, 0x20000")
        a.I(f"s_lshl_b32 s{sA}, s{S_SLOT}, 11")
        a.I(f"s_sub_u32 s{sBq}, s{sW}, 1")
        a.I(f"s_lshl_b32 s{sBq}, s{sBq}, 10")
        a.I(f"s_add_u32 s{sA}, s{sA}, s{sBq}")
        a.I("v_lshlrev_b32 v12, 4, v0")
        a.I(f"s_cmp_eq_u32 s{sW}, 0")
        a.I("s_cbranch_scc1 L_nowarm")
        a.I(f"buffer_load_dwordx4 v[244:247], v12, s[68:71], s{sA} offen")
        a.L("L_nowarm")
    a.I("s_waitcnt vmcnt(0)")
    for n in range(-1, 16):
        stamp(a, 246)
        a.I("s_barrier")
        stamp(a, 246)
        XP = cfg.xsched
        if XP == 0:
            if n in (-1, 0, 1): issue_x(n + 2)
            if n == 2: a.I("s_waitcnt vmcnt(16)")
            if n == 6: a.I("s_waitcnt vmcnt(8)")
        elif XP == 1:
            if n in (-1, 0): issue_x(1, 4*(n+1), 4*(n+2))
            if 1 <= n <= 4: issue_x(2, 2*(n-1), 2*n)
            if 5 <= n <= 8: issue_x(3, 2*(n-5), 2*(n-4))
            if n == 2: a.I("s_waitcnt vmcnt(4)")
            if n == 6: a.I("s_waitcnt vmcnt(4)")
        elif XP == 2:
            if -1 <= n <= 1: issue_x(1, [0,3,6][n+1], [3,6,8][n+1])
            if 2 <= n <= 4: issue_x(2, [0,3,6][n-2], [3,6,8][n-2])
            if 5 <= n <= 7: issue_x(3, [0,3,6][n-5], [3,6,8][n-5])
            if n == 2: a.I("s_waitcnt vmcnt(3)")
            if n == 6: a.I("s_waitcnt vmcnt(6)")
        if n == 10: a.I("s_waitcnt vmcnt(0)")
        if n == 11: handoff_setup()
        if n == cfg.cwstep and cfg.codewarm: code_warm()

    rare_blocks = []

    def oacc(i, sb):
        return O + (((i >> 1)*2 + sb)*2 + (i & 1))*4
    def xreduce(v, op, tmp):
        a.I(f"v_mov_b32 v{tmp}, v{v}")
        a.I("s_nop 1")
        a.I(f"v_permlane16_swap_b32 v{v}, v{tmp}")
        a.I("s_nop 0")
        a.I(f"{op} v{v}, v{v}, v{tmp}")
        a.I(f"v_mov_b32 v{tmp}, v{v}")
        a.I("s_nop 1")
        a.I(f"v_permlane32_swap_b32 v{v}, v{tmp}")
        a.I("s_nop 0")
        a.I(f"{op} v{v}, v{v}, v{tmp}")

    def step(pos, tag, pv=True, pv_c0=False, sm=True, qk=True, first=False, fin_l=False, finalize=False, vrd=True, check=True):
        Sn = S[pos % 2]; Sc = S[(pos + 1) % 2]
        Pw = P[(pos + 1) % 2]; Pr = P[pos % 2]
        vslot = (pos + 3) % 4
        stamp(a, 246)
        a.I("s_barrier")
        stamp(a, 246)
        if first: dbg_stamp(a, 246)
        if first or tag == "_l0": stamp(a, 246, 1)
        if cfg.noa: return
        if first:
            a.I(f"s_cmp_lt_u32 s{sU}, 3")
            a.I(f"s_cselect_b32 s{sA}, {QH//8192}, {WR//8192}")
            a.I(f"s_add_u32 s{sA}, s{sA}, s{sW}")
            a.I(f"s_lshl_b32 s{sA}, s{sA}, 13")
            a.I(f"v_add_u32 v{vAd}, s{sA}, v{vL16}")
            for k in range(8):
                a.I(f"ds_read_b128 {vr(Q+4*k,4)}, v{vAd} offset:{k*1024}")
        if finalize:
            a.I(f"s_sub_u32 s{sA}, s{sU}, 1")
            a.I(f"s_lshl_b32 s{sA}, s{sA}, 3")
            a.I(f"s_lshr_b32 s{sA}, 0x80C11, s{sA}")
            a.I(f"s_and_b32 s{sA}, s{sA}, 0xff")
            a.I(f"s_add_u32 s{sA}, s{sA}, s{sW}")
            a.I(f"s_lshl_b32 s{sA}, s{sA}, 13")
            a.I(f"v_add_u32 v{vAd}, s{sA}, v{vL16}")
        lq = LdsQ()
        def kread(k):
            a.I(f"ds_read_b128 {vr(KF+k*4,4)}, v{vKA + k//2} offset:{pos*8192 + (k % 2)*4096}")
            lq.issue(("K", k))
        def vread(idx):
            i, sec = idx // 2, idx % 2
            a.I(f"ds_read_b64_tr_b16 {vr(VF + i*4 + sec*2, 2)}, v{vVA+i} offset:{vslot*8192 + sec*4096}")
            lq.issue(("V", idx))
        def valu_slot(sl):
            if not sm: return
            j = sl // 2
            if sl % 2 == 0:
                a.I(f"v_exp_f32 v{Sc+j}, v{Sc+j}")
            else:
                if j >= 1:
                    e = j - 1
                    lr = l0 + 2*(e >> 3) + (e & 1)
                    a.I(f"v_add_f32 v{lr}, v{lr}, v{Sc+e}")
                if j >= 2 and j % 2 == 0:
                    m = j // 2 - 1
                    a.I(f"v_cvt_pk_bf16_f32 v{Pw+m}, v{Sc+2*m}, v{Sc+2*m+1}")
        vs = {}
        if vrd:
            if pv and cfg.vearly:
                for n_, sl_ in enumerate((8, 10, 12, 14)): vs[sl_] = n_
                for n_ in range(4, 16): vs[12 + n_] = n_
            else:
                for n_ in range(16): vs[16 + n_] = n_
        if qk and not pv:
            for k in range(8): kread(k)
        pv_mark = None
        for sl in range(16):
            i, sb = sl // 2, sl % 2
            if pv:
                mfma(a, oacc(i, sb), VF + i*4, Pr + 4*sb, "0" if pv_c0 else None)
                pv_mark = a.mark()
            valu_slot(sl)
            if qk and pv and sb == 1: kread(i)
            if sl in vs: vread(vs[sl])
        for k in range(8):
            kap, kt = k // 2, k % 2
            for sb in range(2):
                sl = 16 + 2*k + sb
                if qk:
                    if sb == 0: a.I(f"s_waitcnt lgkmcnt({min(15, lq.need([('K', k)]))})")
                    c = ("0" if first else vr(NM + 4*sb, 4)) if kap == 0 else None
                    mfma(a, Sn + (sb*2 + kt)*4, KF + k*4, Q + (kap*2 + sb)*4, c)
                    qk_mark = a.mark()
                valu_slot(sl)
                if sl in vs: vread(vs[sl])
            if finalize:
                if k == 0 and pv_mark is not None: a.pad_since(pv_mark, 8)
                sb = k & 1
                for j in range(4):
                    a.I(f"v_pk_mul_f32 {vr(O+8*k+2*j,2)}, {vr(O+8*k+2*j,2)}, {vr(inv+2*sb,2)}")
                for j in range(4):
                    a.I(f"v_cvt_pk_bf16_f32 v{O+4*k+j}, v{O+8*k+2*j}, v{O+8*k+2*j+1}")
                a.I(f"ds_write_b128 v{vAd}, {vr(O+4*k,4)} offset:{k*1024}")
                lq.issue(("W", k))
        if sm:
            a.I("s_nop 0")
            if cfg.pkadd: a.I(f"v_pk_add_f32 {vr(l0+2,2)}, {vr(l0+2,2)}, {vr(Sc+14,2)}")
            else: a.I(f"v_add_f32 v{l0+3}, v{l0+3}, v{Sc+15}")
            a.I(f"v_cvt_pk_bf16_f32 v{Pw+7}, v{Sc+14}, v{Sc+15}")
        if fin_l:
            for sb in range(2):
                a.I(f"v_add_f32 v{t0}, v{l0+2*sb}, v{l0+2*sb+1}")
                xreduce(t0, "v_add_f32", t1)
                a.I(f"v_rcp_f32 v{inv+2*sb}, v{t0}")
                a.I(f"v_mov_b32 v{l0+2*sb}, 0")
                a.I(f"v_mov_b32 v{inv+2*sb+1}, v{inv+2*sb}")
                a.I(f"v_mov_b32 v{l0+2*sb+1}, 0")
        if qk:
            a.pad_since(qk_mark, 8)
            if first:
                for sb in range(2):
                    b8 = Sn + 8*sb
                    a.I(f"v_max3_f32 v{mx}, v{b8}, v{b8+1}, v{b8+2}")
                    a.I(f"v_max3_f32 v{mx}, v{mx}, v{b8+3}, v{b8+4}")
                    a.I(f"v_max3_f32 v{mx}, v{mx}, v{b8+5}, v{b8+6}")
                    a.I(f"v_max_f32 v{mx}, v{mx}, v{b8+7}")
                    xreduce(mx, "v_max_f32", t0)
                    for j in range(8):
                        a.I(f"v_sub_f32 v{b8+j}, v{b8+j}, v{mx}")
                    for j in range(4):
                        a.I(f"v_sub_f32 v{NM+4*sb+j}, 0, v{mx}")
            else:
                a.I(f"v_max3_f32 v{mx}, v{Sn}, v{Sn+1}, v{Sn+2}")
                a.I(f"v_max3_f32 v{t1}, v{Sn+3}, v{Sn+4}, v{Sn+5}")
                a.I(f"v_max3_f32 v{mx}, v{mx}, v{Sn+6}, v{Sn+7}")
                a.I(f"v_max3_f32 v{t1}, v{t1}, v{Sn+8}, v{Sn+9}")
                a.I(f"v_max3_f32 v{mx}, v{mx}, v{Sn+10}, v{Sn+11}")
                a.I(f"v_max3_f32 v{t1}, v{t1}, v{Sn+12}, v{Sn+13}")
                a.I(f"v_max3_f32 v{mx}, v{mx}, v{Sn+14}, v{Sn+15}")
                a.I(f"v_max_f32 v{mx}, v{mx}, v{t1}")
                if check:
                    a.I(f"v_cmp_lt_f32 vcc, {hex(f2u(cfg.thresh))}, v{mx}")
                    a.I(f"s_cbranch_vccnz L_A_rare{tag}")
                    a.L(f"L_A_ret{tag}")
                    rare_blocks.append((tag, Sn, Pw, sm))
        a.I("s_waitcnt lgkmcnt(0)")

    a.I(f"s_mov_b32 s{sU}, 0")
    step(0, "_f0", pv=False, sm=False, first=True, vrd=False)
    step(1, "_f1", pv=False)
    a.I(f"s_mov_b32 s{sIt}, 0")
    a.I("s_branch L_A_b2")
    a.L("L_A_loop")
    a.I(f"s_lshl_b32 s{sA}, s{sU}, 2")
    a.I(f"s_add_u32 s{sA}, s{sA}, s{sIt}")
    a.I(f"s_cmp_lg_u32 s{sA}, s{sTrig}")
    a.I("s_cbranch_scc1 L_A_notrig")
    a.I(f"s_lshl_b32 s{sA}, s{sG}, 2")
    a.I(f"s_add_u32 s{sA}, s{sA}, 128")
    a.I("v_mov_b32 v252, 0")
    a.I(f"buffer_load_dword v253, v252, s[40:43], s{sA} offen sc1")
    a.L("L_A_notrig")
    a.I(f"s_cmp_lg_u32 s{sIt}, 0")
    a.I("s_cbranch_scc1 L_A_reg0")
    a.I(f"s_cmp_eq_u32 s{sU}, 4")
    a.I("s_cbranch_scc1 L_A_last")
    step(0, "_b0", first=True, fin_l=True)
    step(1, "_b1", finalize=True)
    a.L("L_A_b2")
    step(2, "_b2", pv_c0=True)
    a.I("s_branch L_A_reg3")
    a.L("L_A_reg0")
    step(0, "_0")
    step(1, "_1")
    step(2, "_2")
    a.L("L_A_reg3")
    step(3, "_3")
    a.I(f"s_add_u32 s{sIt}, s{sIt}, 1")
    a.I(f"s_cmp_eq_u32 s{sIt}, 4")
    a.I("s_cbranch_scc0 L_A_loop")
    a.I(f"s_mov_b32 s{sIt}, 0")
    a.I(f"s_add_u32 s{sU}, s{sU}, 1")
    a.I("s_branch L_A_loop")
    a.L("L_A_last")
    step(0, "_l0", qk=False, fin_l=True)
    step(1, "_l1", qk=False, sm=False, vrd=False, finalize=True)
    a.I("s_branch L_tail_ld")
    for tag, Sn, Pw, sm in rare_blocks:
        a.L(f"L_A_rare{tag}")
        a.I("s_nop 15")
        for sb in range(2):
            b8 = Sn + 8*sb
            a.I(f"v_max3_f32 v{mx}, v{b8}, v{b8+1}, v{b8+2}")
            a.I(f"v_max3_f32 v{mx}, v{mx}, v{b8+3}, v{b8+4}")
            a.I(f"v_max3_f32 v{mx}, v{mx}, v{b8+5}, v{b8+6}")
            a.I(f"v_max_f32 v{mx}, v{mx}, v{b8+7}")
            xreduce(mx, "v_max_f32", t0)
            a.I(f"v_max_f32 v{mx}, 0, v{mx}")
            a.I(f"v_ceil_f32 v{mx}, v{mx}")
            a.I(f"v_min_f32 v{t0}, 0x43480000, v{mx}")
            a.I(f"v_cvt_i32_f32 v{t0}, v{t0}")
            a.I(f"v_sub_u32 v{t0}, 0, v{t0}")
            a.I(f"v_ldexp_f32 v{t1}, 1.0, v{t0}")
            a.I(f"v_mov_b32 v{t2}, v{t1}")
            for j in range(8):
                a.I(f"v_sub_f32 v{b8+j}, v{b8+j}, v{mx}")
            for j in range(4):
                a.I(f"v_sub_f32 v{NM+4*sb+j}, v{NM+4*sb+j}, v{mx}")
            for kap in range(4):
                ob = O + (kap*2 + sb)*8
                for j in range(4):
                    a.I(f"v_pk_mul_f32 {vr(ob+2*j,2)}, {vr(ob+2*j,2)}, {vr(t1,2)}")
            a.I(f"v_mul_f32 v{l0+2*sb}, v{l0+2*sb}, v{t1}")
            a.I(f"v_mul_f32 v{l0+2*sb+1}, v{l0+2*sb+1}, v{t1}")
            for j in range(4):
                pr = Pw + 4*sb + j
                a.I(f"v_lshlrev_b32 v{mx}, 16, v{pr}")
                a.I(f"v_and_b32 v{t0}, 0xffff0000, v{pr}")
                a.I(f"v_mul_f32 v{mx}, v{mx}, v{t1}")
                a.I(f"v_mul_f32 v{t0}, v{t0}, v{t1}")
                a.I(f"v_cvt_pk_bf16_f32 v{pr}, v{mx}, v{t0}")
        a.I("s_nop 1")
        a.I(f"s_branch L_A_ret{tag}")

SLAB = [[122880, 131072], [40960, 49152], [24576, 32768], [57344, 90112]]
def gen_tail(a):
    SWO = 32; SPT = 36; SDB = 40; SOUT = 44; SGO = 64
    sSt = 48; sA = 49; sBq = 50; sIt = 52; sRow = 53; sG = 55; sJ = 63
    vL = 255
    def tail_stamp_reset():
        if cfg.stamps:
            a.I("s_and_b32 s96, s96, 0xfffffc00")
            a.I(f"s_add_u32 s96, s96, {1000 if cfg.stamps == 2 else 512}")
    def part_srd():
        a.I(f"s_add_u32 s{SPT}, s{P_WS}, {cfg.part_off}")
        a.I(f"s_addc_u32 s{SPT+1}, s{P_WS+1}, 0")
        a.I(f"s_and_b32 s{SPT+1}, s{SPT+1}, 0xffff")
        a.I(f"s_mov_b32 s{SPT+2}, {hex(PART_BYTES)}")
        a.I(f"s_mov_b32 s{SPT+3}, 0x20000")
    def lane_id():
        a.I(f"v_mbcnt_lo_u32_b32 v{vL}, -1, 0")
        a.I(f"v_mbcnt_hi_u32_b32 v{vL}, -1, v{vL}")
    def group_id():
        a.I(f"s_lshl_b32 s{sG}, s{S_P}, 4")
        a.I(f"s_add_u32 s{sG}, s{sG}, s{S_B}")
    VO = 248
    sTab = 56; sG0 = 57
    def ld_slab(j0, nj, j0_reg=None):
        a.I(f"s_and_b32 s{sA}, s{sJ}, 15")
        a.I(f"s_add_u32 s{sA}, s{sA}, s{S_B}")
        a.I(f"s_and_b32 s{sA}, s{sA}, 15")
        a.I(f"s_lshl_b32 s{sA}, s{sA}, 15")
        if cfg.wo_fake: a.I(f"s_mov_b32 s{sA}, 0")
        a.I(f"s_lshr_b32 s{sBq}, s{sJ}, 4")
        a.I(f"s_xor_b32 s{sBq}, s{sBq}, s{S_B}")
        a.I(f"s_and_b32 s{sBq}, s{sBq}, 1")
        a.I(f"s_lshl_b32 s{sBq}, s{sBq}, 7")
        a.I(f"s_add_u32 s{sA}, s{sA}, s{sBq}")
        a.I(f"s_add_u32 s{sA}, s{sA}, s{sRow}")
        blk = [SLAB[sl][hf] // 8192 for sl in range(4) for hf in range(2)]
        lo = sum(blk[2*sl] << (8*sl) for sl in range(4)); hi = sum(blk[2*sl+1] << (8*sl) for sl in range(4))
        a.I(f"s_and_b32 s{sBq}, s{sJ}, 3")
        a.I(f"s_lshl_b32 s{sBq}, s{sBq}, 3")
        if j0_reg is None:
            for hf, tab in ((0, lo), (1, hi)):
                a.I(f"s_lshr_b32 s{sIt}, {hex(tab)}, s{sBq}")
                a.I(f"s_and_b32 s{sIt}, s{sIt}, 0xff")
                a.I(f"s_lshl_b32 s{sIt}, s{sIt}, 13")
                for j in range(8):
                    a.I(f"s_add_u32 m0, s{sIt}, {j*1024}")
                    if hf or j: a.I(f"s_add_u32 s{sA}, s{sA}, 2048")
                    else: a.I("s_nop 0")
                    a.I(f"buffer_load_dwordx4 v{VO + (j & 3)}, s[{SWO}:{SWO+3}], s{sA} offen{cfg.wo_pol} lds")
        else:
            a.I(f"s_lshr_b32 s{sIt}, s{sTab}, s{sBq}")
            a.I(f"s_and_b32 s{sIt}, s{sIt}, 0xff")
            a.I(f"s_lshl_b32 s{sIt}, s{sIt}, 13")
            a.I(f"s_add_u32 s{sIt}, s{sIt}, s{j0_reg}")
            a.I(f"s_add_u32 s{sA}, s{sA}, s{sG0}")
            for j in range(4):
                a.I(f"s_add_u32 m0, s{sIt}, {j*1024}")
                if j: a.I(f"s_add_u32 s{sA}, s{sA}, 2048")
                else: a.I("s_nop 0")
                a.I(f"buffer_load_dwordx4 v{VO + (j & 3)}, s[{SWO}:{SWO+3}], s{sA} offen{cfg.wo_pol} lds")
        a.I(f"s_add_u32 s{sJ}, s{sJ}, 1")

    a.L("L_tail_pre")
    a.I("s_load_dwordx2 s[60:61], s[0:1], 88")
    a.I("s_waitcnt lgkmcnt(0)")
    srd(a, SDB, 60, 256)
    lane_id()
    slab_voffsets(a, VO, vL, 10)
    tail_srds(a)
    a.I(f"s_lshl_b32 s{sRow}, s{S_HB}, 17")
    a.I(f"s_mov_b32 s{sJ}, 0")
    for n in (79, 80, 81):
        stamp(a, 246)
        a.I("s_barrier")
        stamp(a, 246)
        ld_slab(0, 16)
        stamp(a, 246)
    a.I("s_waitcnt vmcnt(16)")
    a.I("s_branch L_tail_ld2")
    a.L("L_tail_ld")
    a.I("s_setprio 0")
    a.I(f"s_lshl_b32 s{sRow}, s{S_HB}, 17")
    a.I(f"s_mov_b32 s{sJ}, 3")
    a.L("L_tail_ld2")
    group_id()
    a.I(f"s_cmp_lg_u32 s{S_WAVE}, 0")
    a.I("s_cbranch_scc1 L_T_rdy")
    a.I("s_waitcnt vmcnt(0)")
    a.I("v_readfirstlane_b32 s62, v253")
    a.I("s_cmp_ge_u32 s62, 8")
    a.I("s_cbranch_scc1 L_T_rdy")
    a.I(f"s_lshl_b32 s{sA}, s{sG}, 2")
    a.I(f"s_add_u32 s{sA}, s{sA}, 128")
    a.I(f"s_mov_b32 s{sIt}, 0")
    a.I("v_mov_b32 v252, 0")
    a.L("L_T_rdypoll")
    a.I(f"buffer_load_dword v253, v252, s[{SDB}:{SDB+3}], s{sA} offen sc1")
    a.I("s_waitcnt vmcnt(0)")
    a.I("v_readfirstlane_b32 s62, v253")
    a.I(f"s_add_u32 s{sIt}, s{sIt}, 1")
    a.I("s_cmp_ge_u32 s62, 8")
    a.I("s_cbranch_scc1 L_T_rdy")
    a.I(f"s_cmp_lt_u32 s{sIt}, 0x4000")
    a.I("s_cbranch_scc0 L_T_rdy")
    a.I("s_sleep 8")
    a.I("s_branch L_T_rdypoll")
    a.L("L_T_rdy")
    sJ0 = 51
    blk = [SLAB[sl][hf] // 8192 for sl in range(4) for hf in range(2)]
    lo = sum(blk[2*sl] << (8*sl) for sl in range(4)); hi = sum(blk[2*sl+1] << (8*sl) for sl in range(4))
    a.I(f"s_mov_b32 s{sTab}, {hex(lo)}")
    a.I(f"s_cmp_ge_u32 s{S_WAVE}, 2")
    a.I(f"s_cselect_b32 s{sTab}, {hex(hi)}, s{sTab}")
    a.I(f"s_and_b32 s{sJ0}, s{S_WAVE}, 1")
    a.I(f"s_lshl_b32 s{sJ0}, s{sJ0}, 12")
    a.I(f"s_lshl_b32 s{sG0}, s{S_WAVE}, 13")
    a.I("s_barrier")
    tail_stamp_reset()
    stamp(a, 246); stamp(a, 246, 1); dbg_stamp(a, 246)
    a.I(f"s_mov_b32 s{sSt}, 29")
    a.L("L_TL_loop")
    ld_slab(0, 4, sJ0)
    a.I("s_waitcnt vmcnt(4)")
    a.I("s_barrier")
    a.I(f"s_sub_u32 s{sSt}, s{sSt}, 1")
    a.I(f"s_cmp_lg_u32 s{sSt}, 0")
    a.I("s_cbranch_scc1 L_TL_loop")
    a.I("s_waitcnt vmcnt(0)")
    a.I("s_barrier")
    a.I("s_barrier")
    stamp(a, 246); stamp(a, 246, 1); dbg_stamp(a, 246)
    a.I(f"s_mov_b32 s{sJ}, s{S_WAVE}")
    a.I("s_branch L_T_reduce")

    a.L("L_tail_mm")
    ACC = [0, 96]; AF = 192; BF = 208; vAA = 232; vB = 240; vL16 = 242; PK = 244
    sWp = 51
    a.I(f"s_setprio {cfg.mmprio}")
    part_srd()
    group_id()
    go_srd(a, SGO)
    lane_id()
    a.I(f"s_sub_u32 s{sWp}, s{S_WAVE}, 4")
    T0 = 244
    a.I(f"v_and_b32 v{T0}, 15, v{vL}")
    a.I(f"v_lshrrev_b32 v{T0+1}, 4, v{vL}")
    a.I(f"v_lshrrev_b32 v{T0+2}, 2, v{T0}")
    a.I(f"v_lshl_add_u32 v{T0+3}, v{T0+1}, 2, v{T0+2}")
    a.I(f"v_lshlrev_b32 v{T0+4}, 9, v{T0+3}")
    a.I(f"v_and_b32 v{T0+5}, 3, v{T0}")
    a.I(f"v_lshl_add_u32 v{T0+4}, v{T0+5}, 3, v{T0+4}")
    a.I(f"s_lshr_b32 s{sA}, s{sWp}, 1")
    a.I(f"s_lshl_b32 s{sA}, s{sA}, 8")
    a.I(f"v_add_u32 v{T0+4}, s{sA}, v{T0+4}")
    a.I(f"v_and_b32 v{T0+3}, 7, v{T0+3}")
    a.I(f"s_and_b32 s{sA}, s{sWp}, 1")
    a.I(f"s_lshl_b32 s{sA}, s{sA}, 2")
    for t in range(4):
        a.I(f"s_add_u32 s{sBq}, s{sA}, {t}")
        a.I(f"v_xor_b32 v{T0+5}, s{sBq}, v{T0+3}")
        a.I(f"v_lshl_add_u32 v{vAA+t}, v{T0+5}, 5, v{T0+4}")
    a.I(f"v_lshlrev_b32 v{vL16}, 4, v{vL}")
    for j in range(192): a.I(f"v_mov_b32 v{j}, 0")
    TB = 68
    for i in range(16):
        a.I(f"s_add_u32 s{sA}, s{S_B}, {i}")
        a.I(f"s_and_b32 s{sA}, s{sA}, 15")
        a.I(f"s_lshr_b32 s{sBq}, s{sA}, 2")
        a.I(f"s_lshl_b32 s{sBq}, s{sBq}, 3")
        a.I(f"s_lshr_b32 s{sBq}, 0x80C11, s{sBq}")
        a.I(f"s_and_b32 s{sBq}, s{sBq}, 0xff")
        a.I(f"s_lshl_b32 s{sBq}, s{sBq}, 13")
        a.I(f"s_and_b32 s{sA}, s{sA}, 3")
        a.I(f"s_lshl_b32 s{sA}, s{sA}, 11")
        a.I(f"s_add_u32 s{TB+i}, s{sBq}, s{sA}")
    vAH = 236
    HI = 90112
    for t in range(4): a.I(f"v_add_u32 v{vAH+t}, {HI}, v{vAA+t}")
    q = LdsQ()
    done = [-1]
    def rdA(slot, t):
        for sec in range(2):
            base = SLAB[slot][sec]
            if base >= 65536: a.I(f"ds_read_b64_tr_b16 {vr(AF + t*4 + sec*2, 2)}, v{vAH+t} offset:{base - HI}")
            else: a.I(f"ds_read_b64_tr_b16 {vr(AF + t*4 + sec*2, 2)}, v{vAA+t} offset:{base}")
            q.issue(("A", t, sec))
    def rdB(par, sub):
        a.I(f"ds_read_b128 {vr(BF + sub*4, 4)}, v{vB+par} offset:{(sub >> 1)*8192 + (sub & 1)*1024}")
        q.issue(("B", sub))
    def acc(P, t, sub):
        return ACC[P] + ((sub*2 + (t >> 1))*2 + (t & 1))*4
    a.I(f"v_add_u32 v{vB}, s{TB}, v{vL16}")
    a.I(f"v_add_u32 v{vB+1}, s{TB+1}, v{vL16}")
    a.L("L_T_idle")
    a.I("s_barrier")
    a.I("s_sub_u32 s54, s54, 1")
    a.I("s_cmp_lg_u32 s54, 0")
    a.I("s_cbranch_scc1 L_T_idle")
    a.I("s_barrier")
    tail_stamp_reset()
    stamp(a, 246); stamp(a, 246, 1); dbg_stamp(a, 246)
    def issue_read(p, slot, par):
        if p[0] == "B":
            rdB(par, p[1])
        else:
            t, sec = p[1], p[2]
            base = SLAB[slot][sec]
            if base >= 65536: a.I(f"ds_read_b64_tr_b16 {vr(AF + t*4 + sec*2, 2)}, v{vAH+t} offset:{base - HI}")
            else: a.I(f"ds_read_b64_tr_b16 {vr(AF + t*4 + sec*2, 2)}, v{vAA+t} offset:{base}")
            q.issue(("A", t, sec))
    def order():
        return [(hf, t, j) for hf in range(2) for t in range(4) for j in range(3)]
    for sub in range(6): rdB(0, sub)
    for t in range(4): rdA(0, t)
    def store_tile(P, ch, first_of_stage):
        base = ACC[P] + ch*16
        ops = [f"v_cvt_pk_bf16_f32 v{PK+j}, v{base+2*j}, v{base+2*j+1}" for j in range(8)]
        ops.append(f"s_add_u32 s{sBq}, s{sJ}, {ch*2048}")
        ops.append(f"buffer_store_dwordx4 {vr(PK,4)}, v{vL16}, s[{SPT}:{SPT+3}], s{sBq} offen{cfg.part_st_pol}")
        ops.append(f"buffer_store_dwordx4 {vr(PK+4,4)}, v{vL16}, s[{SPT}:{SPT+3}], s{sBq} offen offset:1024{cfg.part_st_pol}")
        ops.append("s_nop 1")
        return ops
    def part_base(P):
        a.I(f"s_lshl_b32 s{sJ}, s{sG}, 2")
        a.I(f"s_add_u32 s{sJ}, s{sJ}, s{sWp}")
        a.I(f"s_lshl_b32 s{sJ}, s{sJ}, 1")
        a.I(f"s_and_b32 s{sA}, s{S_B}, 1")
        a.I(f"s_xor_b32 s{sA}, s{sA}, {P}")
        a.I(f"s_add_u32 s{sJ}, s{sJ}, s{sA}")
        a.I(f"s_lshl_b32 s{sJ}, s{sJ}, 3")
        a.I(f"s_add_u32 s{sJ}, s{sJ}, s{S_MJ}")
        a.I(f"s_mul_i32 s{sJ}, s{sJ}, 12288")
    def raise_flag(P):
        a.I("s_waitcnt vmcnt(0)")
        a.I(f"s_lshl_b32 s{sA}, s{sG}, 2")
        a.I(f"s_add_u32 s{sA}, s{sA}, s{sWp}")
        a.I(f"s_lshl_b32 s{sA}, s{sA}, 1")
        a.I(f"s_and_b32 s{sBq}, s{S_B}, 1")
        a.I(f"s_xor_b32 s{sBq}, s{sBq}, {P}")
        a.I(f"s_add_u32 s{sA}, s{sA}, s{sBq}")
        a.I(f"s_lshl_b32 s{sA}, s{sA}, 7")
        a.I(f"s_lshl_b32 s{sBq}, s{S_MJ}, 2")
        a.I(f"s_add_u32 s{sA}, s{sA}, s{sBq}")
        a.I(f"v_mov_b32 v{PK}, 1")
        a.I(f"v_mov_b32 v{PK+1}, 0")
        a.I("s_mov_b64 s[60:61], exec")
        a.I("s_mov_b64 exec, 1")
        a.I(f"buffer_store_dword v{PK}, v{PK+1}, s[{SGO}:{SGO+3}], s{sA} offen sc1")
        a.I("s_mov_b64 exec, s[60:61]")
    def stage(sg, P, nxt=True, bar=True, extra=None, late=None):
        ns = (sg + 1) & 3; npar = (sg + 1) & 1
        extra = list(extra or []); late = list(late or [])
        pend = []
        nm = 0
        for (hf, t, j) in order():
            sub = 3*hf + j
            c = q.need([("B", sub), ("A", t, 0), ("A", t, 1)])
            pos = len(q.ops) - 1 - c
            if pos > done[0]:
                a.I(f"s_waitcnt lgkmcnt({min(15, c)})")
                done[0] = len(q.ops) - 1 - min(15, c)
            mfma(a, acc(P, t, sub), AF + t*4, BF + sub*4)
            nm += 1
            if nxt and t == 3: pend.append(("B", sub))
            if nxt and hf == 1 and j == 2: pend += [("A", t, 0), ("A", t, 1)]
            if pend:
                issue_read(pend.pop(0), ns, npar)
            elif nm == 1 and sg + 2 < 32:
                a.I(f"v_add_u32 v{vB + (sg & 1)}, s{TB + ((sg + 2) & 15)}, v{vL16}")
            elif extra:
                a.I(extra.pop(0))
                if extra: a.I(extra.pop(0))
            if nm in (17, 19) and late: a.I(late.pop(0))
        for p in pend: issue_read(p, ns, npar)
        for o in extra + late: a.I(o)
        if bar: a.I("s_barrier")
    for sg in range(16): stage(sg, 0)
    if cfg.tailst: stamp(a, 246, 1)
    part_base(0)
    for st in range(16):
        extra = []; late = []
        if st < 6:
            ops = store_tile(0, st, False)
            extra = ops[:9]
            late = ops[9:11]
        stage(16 + st, 1, nxt=(st < 15), bar=(st < 15), extra=extra, late=late)
        if st == 7 and cfg.tailst: stamp(a, 246, 1)
        if st == 11: raise_flag(0)
        if st == 11 and cfg.tailst: stamp(a, 246, 1)
    mk = a.mark()
    part_base(1)
    stamp(a, 246); stamp(a, 246, 1); dbg_stamp(a, 246)
    a.pad_since(mk, 8)
    PKs = [244, 192, 200, 208]
    for t in range(6):
        PK = PKs[t % 4]
        for o in store_tile(1, t, False): a.I(o)
    PK = 244
    raise_flag(1)
    stamp(a, 246, 1); dbg_stamp(a, 246)
    a.I(f"s_cmp_ge_u32 s{S_WAVE}, 6")
    a.I("s_cbranch_scc1 L_k1_end")
    a.I(f"s_mov_b32 s{sJ}, s{S_WAVE}")
    a.L("L_T_reduce")
    vB = 242
    a.I(f"v_lshlrev_b32 v{vB}, 4, v{vL}")
    a.I("s_load_dwordx2 s[58:59], s[0:1], 80")
    sFl = 51
    a.I(f"s_lshl_b32 s{sFl}, s{sG}, 3")
    a.I(f"s_add_u32 s{sFl}, s{sFl}, s{S_MJ}")
    a.I(f"s_lshl_b32 s{sFl}, s{sFl}, 7")
    a.I(f"v_lshlrev_b32 v2, 2, v{vL}")
    a.I(f"s_lshl_b32 s{sA}, s{sG}, 3")
    a.I(f"s_add_u32 s{sA}, s{sA}, s{S_MJ}")
    a.I(f"s_mul_i32 s{sA}, s{sA}, 98304")
    a.I(f"s_lshl_b32 s{sBq}, s{sJ}, 11")
    a.I(f"s_add_u32 s{sA}, s{sA}, s{sBq}")
    a.I("s_mov_b64 s[60:61], exec")
    a.I(f"s_mov_b32 s{sIt}, 0")
    a.I("s_mov_b32 s62, 0")
    for src in range(8):
        a.L(f"L_T_w{src}")
        a.I(f"s_bitcmp1_b32 s62, {src}")
        a.I(f"s_cbranch_scc1 L_T_h{src}")
        a.I("s_mov_b64 exec, 0xff")
        a.I(f"buffer_load_dword v3, v2, s[{SGO}:{SGO+3}], s{sFl} offen sc1")
        a.I("s_waitcnt vmcnt(0)")
        a.I("v_cmp_eq_u32 vcc, 1, v3")
        a.I(f"s_add_u32 s{sIt}, s{sIt}, 1")
        a.I("s_mov_b64 exec, s[60:61]")
        a.I("s_and_b32 s62, vcc_lo, 0xff")
        a.I(f"s_cmp_lt_u32 s{sIt}, 0x8000")
        a.I("s_cselect_b32 s62, s62, 0xff")
        a.I(f"s_bitcmp1_b32 s62, {src}")
        a.I(f"s_cbranch_scc1 L_T_h{src}")
        a.I("s_sleep 1")
        a.I(f"s_branch L_T_w{src}")
        a.L(f"L_T_h{src}")
        a.I(f"s_add_u32 s{sBq}, s{sA}, {src*12288}")
        a.I(f"buffer_load_dwordx4 {vr(8+src*8,4)}, v{vB}, s[{SPT}:{SPT+3}], s{sBq} offen{cfg.part_ld_pol}")
        a.I(f"buffer_load_dwordx4 {vr(8+src*8+4,4)}, v{vB}, s[{SPT}:{SPT+3}], s{sBq} offen offset:1024{cfg.part_ld_pol}")
    stamp(a, 246); stamp(a, 246, 1); dbg_stamp(a, 246)
    if cfg.pollcnt:
        a.I("s_load_dwordx2 s[84:85], s[0:1], 88")
        a.I("s_waitcnt lgkmcnt(0)")
        srd(a, 88, 84, 256)
        a.I(f"v_mov_b32 v4, s{sIt}")
        a.I("v_mov_b32 v5, 0")
        a.I("s_mov_b64 exec, 1")
        a.I("buffer_atomic_umax v4, v5, s[88:91], 0 offen offset:64")
        a.I("s_mov_b64 exec, s[60:61]")
    a.I("s_waitcnt lgkmcnt(0)")
    srd(a, SOUT, 58, 16*96*1024*2)
    a.I(f"s_lshl_b32 s{sBq}, s{sJ}, 4")
    a.I(f"s_mul_i32 s{sA}, s{S_B}, 96")
    a.I(f"s_add_u32 s{sA}, s{sA}, s{sBq}")
    a.I(f"s_lshl_b32 s{sA}, s{sA}, 11")
    a.I(f"s_lshl_b32 s{sBq}, s{S_P}, 10")
    a.I(f"s_add_u32 s{sA}, s{sA}, s{sBq}")
    a.I(f"s_lshl_b32 s{sBq}, s{S_MJ}, 7")
    a.I(f"s_add_u32 s{sA}, s{sA}, s{sBq}")
    a.I(f"v_and_b32 v2, 15, v{vL}")
    a.I("v_lshlrev_b32 v2, 11, v2")
    a.I(f"v_lshrrev_b32 v3, 4, v{vL}")
    a.I("v_lshl_add_u32 v2, v3, 3, v2")
    RA = 80
    for src in range(8):
        a.I(f"s_waitcnt vmcnt({14 - 2*src})")
        for d in range(8):
            r = 8 + src*8 + d
            if src == 0:
                a.I(f"v_lshlrev_b32 v{RA+2*d}, 16, v{r}")
                a.I(f"v_and_b32 v{RA+2*d+1}, 0xffff0000, v{r}")
            else:
                tp = 4 + 2*(d & 1)
                a.I(f"v_lshlrev_b32 v{tp}, 16, v{r}")
                a.I(f"v_and_b32 v{tp+1}, 0xffff0000, v{r}")
                a.I(f"v_pk_add_f32 {vr(RA+2*d,2)}, {vr(RA+2*d,2)}, {vr(tp,2)}")
    for d in range(8):
        a.I(f"v_cvt_pk_bf16_f32 v{8+d}, v{RA+2*d}, v{RA+2*d+1}")
    for e4 in range(4):
        a.I(f"buffer_store_dwordx2 v[{8+2*e4}:{9+2*e4}], v2, s[{SOUT}:{SOUT+3}], s{sA} offen offset:{e4*32}")
    a.I("s_waitcnt vmcnt(0)")
    stamp(a, 246); stamp(a, 246, 1); dbg_stamp(a, 246)
    a.I("s_waitcnt vmcnt(0)")
    a.L("L_k1_end")
    a.I("s_endpgm")

def gen_k2(a):
    a.I("s_cmp_ge_u32 s2, 256")
    a.I("s_cbranch_scc1 L_k2_end")
    a.I("s_load_dwordx2 s[4:5], s[0:1], 80")
    a.I("s_load_dwordx2 s[6:7], s[0:1], 96")
    if cfg.dbgst: a.I("s_memrealtime s[34:35]")
    a.I("v_lshrrev_b32 v1, 6, v0")
    a.I("v_and_b32 v0, 63, v0")
    a.I("v_readfirstlane_b32 s20, v1")
    a.I("s_waitcnt lgkmcnt(0)")
    srd(a, 8, 6, PART_BYTES)
    srd(a, 12, 4, 16*96*1024*2)
    a.I("s_mul_i32 s21, s2, 98304")
    a.I("s_lshl_b32 s22, s20, 11")
    a.I("s_add_u32 s21, s21, s22")
    a.I("v_lshlrev_b32 v1, 4, v0")
    for src in range(8):
        a.I(f"s_add_u32 s23, s21, {src*12288}")
        a.I(f"buffer_load_dwordx4 {vr(8+src*8,4)}, v1, s[8:11], s23 offen{cfg.part_ld_pol}")
        a.I(f"buffer_load_dwordx4 {vr(8+src*8+4,4)}, v1, s[8:11], s23 offen offset:1024{cfg.part_ld_pol}")
    a.I("s_lshr_b32 s24, s2, 3")
    a.I("s_and_b32 s25, s2, 7")
    a.I("s_and_b32 s26, s24, 15")
    a.I("s_lshr_b32 s27, s24, 4")
    a.I("s_lshr_b32 s28, s20, 1")
    a.I("s_and_b32 s29, s20, 1")
    a.I("s_mul_i32 s26, s26, 96")
    a.I("s_lshl_b32 s28, s28, 5")
    a.I("s_add_u32 s26, s26, s28")
    a.I("s_lshl_b32 s26, s26, 11")
    a.I("s_lshl_b32 s27, s27, 10")
    a.I("s_lshl_b32 s25, s25, 7")
    a.I("s_lshl_b32 s29, s29, 6")
    a.I("s_add_u32 s26, s26, s27")
    a.I("s_add_u32 s26, s26, s25")
    a.I("s_add_u32 s26, s26, s29")
    a.I("v_and_b32 v2, 31, v0")
    a.I("v_lshlrev_b32 v2, 11, v2")
    a.I("v_lshrrev_b32 v3, 5, v0")
    a.I("v_lshl_add_u32 v2, v3, 5, v2")
    ACC = 80
    for src in range(8):
        a.I(f"s_waitcnt vmcnt({14 - 2*src})")
        for d in range(8):
            r = 8 + src*8 + d
            if src == 0:
                a.I(f"v_lshlrev_b32 v{ACC+2*d}, 16, v{r}")
                a.I(f"v_and_b32 v{ACC+2*d+1}, 0xffff0000, v{r}")
            else:
                a.I(f"v_lshlrev_b32 v4, 16, v{r}")
                a.I(f"v_and_b32 v5, 0xffff0000, v{r}")
                a.I(f"v_add_f32 v{ACC+2*d}, v{ACC+2*d}, v4")
                a.I(f"v_add_f32 v{ACC+2*d+1}, v{ACC+2*d+1}, v5")
    for d in range(8):
        a.I(f"v_cvt_pk_bf16_f32 v{8+d}, v{ACC+2*d}, v{ACC+2*d+1}")
    a.I("buffer_store_dwordx4 v[8:11], v2, s[12:15], s26 offen")
    a.I("buffer_store_dwordx4 v[12:15], v2, s[12:15], s26 offen offset:16")
    a.I("s_waitcnt vmcnt(0)")
    if cfg.dbgst:
        a.I("s_cmp_lg_u32 s2, 0")
        a.I("s_cbranch_scc1 L_k2_end")
        a.I("s_cmp_lg_u32 s20, 0")
        a.I("s_cbranch_scc1 L_k2_end")
        a.I("s_memrealtime s[36:37]")
        a.I("s_load_dwordx2 s[30:31], s[0:1], 88")
        a.I("s_waitcnt lgkmcnt(0)")
        a.I(f"s_add_u32 s8, s6, {40<<20}")
        a.I("s_addc_u32 s9, s7, 0")
        a.I("s_and_b32 s9, s9, 0xffff")
        a.I("s_mov_b32 s10, 256")
        a.I("s_mov_b32 s11, 0x20000")
        a.I("s_mov_b32 s12, s30")
        a.I("s_and_b32 s13, s31, 0xffff")
        a.I("s_mov_b32 s14, 64")
        a.I("s_mov_b32 s15, 0x20000")
        a.I("v_lshlrev_b32 v1, 2, v0")
        a.I("buffer_load_dword v2, v1, s[8:11], 0 offen sc1")
        a.I("s_waitcnt vmcnt(0)")
        a.I("v_mov_b32 v3, s34")
        a.I("v_cmp_eq_u32 vcc, 14, v0")
        a.I("s_nop 1")
        a.I("v_cndmask_b32 v2, v2, v3, vcc")
        a.I("v_mov_b32 v3, s36")
        a.I("v_cmp_eq_u32 vcc, 15, v0")
        a.I("s_nop 1")
        a.I("v_cndmask_b32 v2, v2, v3, vcc")
        a.I("buffer_store_dword v2, v1, s[12:15], 0 offen")
        a.I("s_waitcnt vmcnt(0)")
    a.L("L_k2_end")
    a.I("s_endpgm")

def kd(a, name, vgpr, sgpr):
    a.raw('.section .rodata,"a"')
    a.raw(".p2align 6")
    a.raw(f".amdhsa_kernel {name}")
    a.raw(f"  .amdhsa_next_free_vgpr {vgpr}")
    a.raw(f"  .amdhsa_next_free_sgpr {sgpr}")
    a.raw(f"  .amdhsa_accum_offset {(vgpr+3)//4*4}")
    a.raw("  .amdhsa_group_segment_fixed_size 0")
    a.raw("  .amdhsa_kernarg_size 104")
    a.raw("  .amdhsa_user_sgpr_count 2")
    a.raw("  .amdhsa_user_sgpr_kernarg_segment_ptr 1")
    a.raw("  .amdhsa_system_sgpr_workgroup_id_x 1")
    a.raw(".end_amdhsa_kernel")

def build():
    a = Asm()
    global K1
    if cfg.fused:
        K1 = NAME + "_kernel"
        a.raw(f"; @launch grid=(256,1,1) block=(512,1,1) lds={LDS_BYTES}")
    else:
        a.raw(f"; @launch kernel={K1} grid=(256,1,1) block=(512,1,1) lds={LDS_BYTES}")
        a.raw(f"; @launch kernel={K2} grid=(256,1,1) block=(384,1,1) lds=0")
    a.raw('.amdgcn_target "amdgcn-amd-amdhsa--gfx950"')
    a.raw(".text")
    a.raw(f".globl {K1}")
    a.raw(".p2align 8")
    a.raw(f".type {K1},@function")
    a.L(K1)
    setup_common(a)
    gen_loader(a, True)
    gen_loader(a, False)
    gen_G(a)
    gen_A(a)
    gen_tail(a)
    if not cfg.fused:
        a.raw(f".globl {K2}")
        a.raw(".p2align 8")
        a.raw(f".type {K2},@function")
        a.L(K2)
        gen_k2(a)
    kd(a, K1, 256, 102 if (cfg.stamps or cfg.dbgst) else (96 if cfg.pollcnt else 84))
    if not cfg.fused:
        a.raw(".text")
        kd(a, K2, 96, 40)
    return a

if __name__ == "__main__":
    for arg in sys.argv[2:]:
        k, v = arg.split("=", 1)
        cur = getattr(cfg, k)
        if isinstance(cur, bool): v = v in ("1", "True", "true")
        elif isinstance(cur, int): v = int(v)
        elif isinstance(cur, float): v = float(v)
        else: v = v.replace("_", " ")
        setattr(cfg, k, v)
    a = build()
    out = sys.argv[1] if len(sys.argv) > 1 else f"cdna_kernels/{NAME}.s"
    open(out, "w").write(a.text())
    probs = check_file(a.lines)
    for p in probs: print("HAZARD", p)
    print("wrote", out, len(a.lines), "lines;", len(probs), "hazard reports")
```

```python
import struct, math, sys
from asmlib import Asm, vr, sr, check_file

NAME = "concat_heads__mha_block_cached__gqa_block_cached__near_ridge"
K1 = "attn_kernel"
K2 = "reduce_kernel"

def f2u(x): return struct.unpack("<I", struct.pack("<f", x))[0]
CSCALE = math.log2(math.e) / math.sqrt(128.0)

KR = 0; VR = 32768; WR = 65536; QH = 98304; XS = 98304
OS = [122880, 98304, 65536, 0]
STAGE = [24576, 32768, 40960, 49152, 57344, 90112, 147456, 155648]
LDS_BYTES = 163840
PART_BYTES = 32 * 64 * 12288

class Cfg:
    kv_pol = " nt"
    wq_pol = " nt"
    x_pol = ""
    wo_pol = ""
    part_st_pol = " sc1"
    part_ld_pol = " sc1"
    thresh = 8.0
    debug_dump = False
    prio_a = 0
    stamps = 0
    nokv = False
    nog = False
    out_pol = ""
    rothq = False
    mmprio = 3
    vearly = False
    pollcnt = False
    pkadd = False
    rotmask = 0
    rotshift = 2
    cwstep = 11
    codewarm = False
    k0early = 9
    xsched = 1
    wfirst = True
    ldprio = 0
    tailst = False
    ghalf = 0
    t_nowait = False
    t_contig = False
    t_nodma = False
    t_nord = False
    t_early = False
    wo_fake = False
    dbgwave = 0
    dbgwg = 0
    part_off = 0
    fused = True
    noa = False
    nogr = False
    nowq = False
    dbgst = False

cfg = Cfg()

S_WAVE = 20; S_XCD = 21; S_SLOT = 22; S_P = 23; S_B = 24; S_HQ = 25; S_HB = 26; S_RHO = 27; S_MJ = 28
P_X = 8; P_K = 10; P_V = 12; P_WQ = 14; P_WO = 16; P_WS = 18

def srd(a, dst, ptr, size):
    a.I(f"s_mov_b32 s{dst}, s{ptr}")
    a.I(f"s_and_b32 s{dst+1}, s{ptr+1}, 0xffff")
    a.I(f"s_mov_b32 s{dst+2}, {hex(size)}")
    a.I(f"s_mov_b32 s{dst+3}, 0x20000")

def setup_common(a):
    a.I("s_cmp_ge_u32 s2, 256")
    a.I("s_cbranch_scc1 L_k1_end")
    a.I(f"s_and_b32 s{S_XCD}, s2, 7")
    a.I(f"s_lshr_b32 s{S_SLOT}, s2, 3")
    a.I(f"s_lshr_b32 s{S_P}, s{S_XCD}, 2")
    a.I(f"s_mul_i32 s3, s{S_P}, 40")
    a.I("s_add_u32 s4, s0, s3")
    a.I("s_addc_u32 s5, s1, 0")
    a.I("s_load_dwordx8 s[8:15], s[4:5], 0")
    a.I(f"s_load_dwordx2 s[{P_WO}:{P_WO+1}], s[4:5], 32")
    a.I(f"s_load_dwordx2 s[{P_WS}:{P_WS+1}], s[0:1], 96")
    a.I("v_lshrrev_b32 v1, 6, v0")
    a.I("v_and_b32 v0, 63, v0")
    a.I(f"v_readfirstlane_b32 s{S_WAVE}, v1")
    a.I(f"s_lshr_b32 s{S_B}, s{S_SLOT}, 1")
    a.I(f"s_and_b32 s{S_HQ}, s{S_SLOT}, 1")
    a.I(f"s_and_b32 s3, s{S_XCD}, 3")
    a.I("s_lshl_b32 s3, s3, 1")
    a.I(f"s_add_u32 s{S_MJ}, s3, s{S_HQ}")
    a.I(f"s_lshl_b32 s{S_HB}, s{S_MJ}, 2")
    if cfg.rothq:
        a.I(f"s_lshl_b32 s{S_RHO}, s{S_HQ}, 3")
    else:
        a.I(f"s_and_b32 s{S_RHO}, s{S_B}, {cfg.rotmask}")
        a.I(f"s_lshl_b32 s{S_RHO}, s{S_RHO}, {cfg.rotshift}")
    a.I("s_waitcnt lgkmcnt(0)")
    dbg_setup(a)
    a.I(f"s_cmp_lt_u32 s{S_WAVE}, 3")
    a.I("s_cbranch_scc1 L_roleA")
    a.I(f"s_cmp_eq_u32 s{S_WAVE}, 3")
    a.I("s_cbranch_scc1 L_roleLK")
    a.I(f"s_cmp_eq_u32 s{S_WAVE}, 7")
    a.I("s_cbranch_scc1 L_roleLV")
    a.I("s_branch L_roleG")

def gen_loader(a, isK):
    tag = "LK" if isK else "LV"
    D = 13 if isK else 14
    a.L(f"L_role{tag}")
    if cfg.ldprio: a.I(f"s_setprio {cfg.ldprio}")
    SKV = 32; SW = 36
    srd(a, SKV, P_K if isK else P_V, 0x4000000)
    srd(a, SW, P_WQ, 0x400000)
    sKB = 48; sT = 49; sTau = 50; sN = 51; sA = 52; sBq = 53; sWrow = 54
    a.I(f"s_lshl_b32 s{sKB}, s{S_B}, 5")
    a.I(f"s_add_u32 s{sKB}, s{sKB}, s{S_HB}")
    a.I(f"s_lshl_b32 s{sKB}, s{sKB}, 17")
    a.I("v_and_b32 v1, 15, v0")
    a.I("v_lshrrev_b32 v2, 4, v0")
    if isK:
        for j in range(4):
            a.I(f"v_add_u32 v3, {4*j}, v2")
            a.I("v_xor_b32 v3, v1, v3")
            a.I("v_lshlrev_b32 v3, 4, v3")
            a.I(f"v_lshl_add_u32 v{4+j}, v2, 8, v3")
    else:
        for j in range(4):
            a.I(f"v_add_u32 v3, {4*(j & 1)}, v2")
            a.I("v_lshlrev_b32 v3, 1, v3")
            a.I("v_xor_b32 v3, v1, v3")
            a.I("v_lshlrev_b32 v3, 4, v3")
            a.I(f"v_lshl_add_u32 v{4+j}, v2, 8, v3")
    a.I("v_lshlrev_b32 v3, 2, v2")
    a.I("v_xor_b32 v3, v1, v3")
    a.I("v_lshlrev_b32 v3, 4, v3")
    a.I("v_lshlrev_b32 v9, 13, v2")
    a.I("v_add_u32 v8, v9, v3")
    i0 = 0 if isK else 4
    LB = KR if isK else VR

    def issue_w():
        a.I(f"s_add_u32 s{sA}, s{S_RHO}, s{sTau}")
        a.I(f"s_and_b32 s{sA}, s{sA}, 15")
        a.I(f"s_lshl_b32 s{sA}, s{sA}, 18")
        a.I(f"s_lshr_b32 s{sBq}, s{sTau}, 4")
        a.I(f"s_add_u32 s{sBq}, s{sBq}, s{S_HB}")
        a.I(f"s_lshl_b32 s{sBq}, s{sBq}, 8")
        a.I(f"s_add_u32 s{sA}, s{sA}, s{sBq}")
        a.I(f"s_add_u32 s{sA}, s{sA}, {i0*4*8192}")
        a.I(f"s_and_b32 s{sBq}, s{sTau}, 3")
        a.I(f"s_lshl_b32 s{sBq}, s{sBq}, 13")
        a.I(f"s_add_u32 s{sBq}, s{sBq}, {WR + i0*1024}")
        for i in range(4):
            a.I(f"s_add_u32 m0, s{sBq}, {i*1024}")
            if i: a.I(f"s_add_u32 s{sA}, s{sA}, 32768")
            else: a.I("s_nop 0")
            a.I(f"buffer_load_dwordx4 v8, s[{SW}:{SW+3}], s{sA} offen{cfg.wq_pol} lds")
        a.I(f"s_add_u32 s{sTau}, s{sTau}, 1")

    def issue_kv():
        a.I(f"s_lshl_b32 s{sA}, s{sT}, 13")
        a.I(f"s_add_u32 s{sA}, s{sA}, s{sKB}")
        a.I(f"s_and_b32 s{sBq}, s{sT}, 3")
        a.I(f"s_lshl_b32 s{sBq}, s{sBq}, 13")
        for half in range(2):
            if cfg.nokv: break
            a.I(f"s_add_u32 m0, s{sBq}, {LB + half*4096}")
            if half: a.I(f"s_add_u32 s{sA}, s{sA}, 4096")
            else: a.I("s_nop 0")
            for j in range(4):
                off = f" offset:{j*1024}" if j else ""
                a.I(f"buffer_load_dwordx4 v{4+j}, s[{SKV}:{SKV+3}], s{sA} offen{off}{cfg.kv_pol} lds")
        a.I(f"s_add_u32 s{sT}, s{sT}, 1")

    stamp_setup(a)
    a.I(f"s_mov_b32 s{sT}, 0")
    a.I(f"s_mov_b32 s{sTau}, 0")
    pstamp(a, 20)
    for _ in range(4): issue_w()
    pstamp(a, 20)
    a.I(f"s_waitcnt vmcnt({12 + (1 if cfg.stamps == 3 else 0)})")
    pstamp(a, 20)
    a.I("s_barrier")
    a.I("s_waitcnt vmcnt(8)")
    WLAST = 16 if cfg.nowq else 59
    def has_kv(n):
        if cfg.nokv: return False
        if isK and cfg.k0early:
            return n == cfg.k0early or (D + 1 <= n <= D + 63)
        return D <= n <= D + 63
    def cnt(n):
        if n < 0: return 4
        return (4 if n <= WLAST else 0) + (8 if has_kv(n) else 0)
    phases = []
    for n in range(79 if isK else 80):
        key = (has_kv(n), n <= WLAST, cnt(n) + cnt(n - 1))
        if phases and phases[-1][0] == key: phases[-1][2] = n
        else: phases.append([key, n, n])
    for pi, (key, n0, n1) in enumerate(phases):
        kv, w, N = key
        cntn = n1 - n0 + 1
        if cntn > 1:
            a.I(f"s_mov_b32 s{sN}, {cntn}")
            a.L(f"L_{tag}_ph{pi}")
        a.I("s_barrier")
        stamp(a, 20)
        if cfg.wfirst:
            if w: issue_w()
            if kv: issue_kv()
        else:
            if kv: issue_kv()
            if w: issue_w()
        stamp(a, 20)
        a.I(f"s_waitcnt vmcnt({N + (7 if cfg.stamps == 2 else 0)})")
        stamp(a, 20)
        if cntn > 1:
            a.I(f"s_sub_u32 s{sN}, s{sN}, 1")
            a.I(f"s_cmp_lg_u32 s{sN}, 0")
            a.I(f"s_cbranch_scc1 L_{tag}_ph{pi}")
    if not isK: a.I("s_mov_b32 s54, 2")
    a.I("s_branch L_tail_pre" if isK else "s_branch L_tail_mm")

STAMP_BASE = 32 << 20
def stamp_setup(a):
    if not cfg.stamps: return
    a.I(f"s_mov_b32 s92, s{P_WS}")
    a.I(f"s_and_b32 s93, s{P_WS+1}, 0xffff")
    a.I(f"s_mov_b32 s94, {hex(STAMP_BASE + (2<<20))}")
    a.I("s_mov_b32 s95, 0x20000")
    a.I("s_lshl_b32 s96, s2, 3")
    a.I(f"s_add_u32 s96, s96, s{S_WAVE}")
    a.I("s_lshl_b32 s96, s96, 10")
    a.I(f"s_add_u32 s96, s96, {STAMP_BASE}")
def stamp(a, vtmp, level=2):
    if cfg.stamps != level: return
    a.I("s_memrealtime s[98:99]")
    if level == 1: a.I("s_memtime s[100:101]")
    a.I("s_waitcnt lgkmcnt(0)")
    a.I(f"v_mov_b32 v{vtmp}, s98")
    a.I(f"v_mov_b32 v{vtmp+1}, 0")
    a.I(f"buffer_store_dword v{vtmp}, v{vtmp+1}, s[92:95], s96 offen")
    if level == 1:
        a.I(f"v_mov_b32 v{vtmp}, s100")
        a.I(f"buffer_store_dword v{vtmp}, v{vtmp+1}, s[92:95], s96 offen offset:4")
        a.I("s_add_u32 s96, s96, 4")
    a.I("s_add_u32 s96, s96, 4")

def pstamp(a, v):
    stamp(a, v, 3)
def dbg_setup(a):
    if not cfg.dbgst: return
    a.I("s_load_dwordx2 s[90:91], s[0:1], 88")
    a.I("s_waitcnt lgkmcnt(0)")
    a.I("s_mov_b32 s92, s90")
    a.I("s_and_b32 s93, s91, 0xffff")
    a.I("s_mov_b32 s94, 0")
    a.I("s_mov_b32 s96, 0")
    a.I(f"s_cmp_lg_u32 s{S_WAVE}, {cfg.dbgwave}")
    a.I("s_cbranch_scc1 L_dbg_done")
    a.I(f"s_cmp_eq_u32 s2, {cfg.dbgwg}")
    a.I("s_cselect_b32 s94, 64, 0")
    a.L("L_dbg_done")
    a.I("s_mov_b32 s95, 0x20000")
def dbg_stamp(a, vtmp):
    if not cfg.dbgst: return
    a.I("s_memrealtime s[98:99]")
    a.I("s_waitcnt lgkmcnt(0)")
    a.I(f"v_mov_b32 v{vtmp}, s98")
    a.I(f"v_mov_b32 v{vtmp+1}, 0")
    a.I(f"buffer_store_dword v{vtmp}, v{vtmp+1}, s[92:95], s96 offen")
    a.I("s_add_u32 s96, s96, 4")

GO_OFF = 26 << 20
def go_srd(a, dst):
    a.I(f"s_add_u32 s{dst}, s{P_WS}, {GO_OFF}")
    a.I(f"s_addc_u32 s{dst+1}, s{P_WS+1}, 0")
    a.I(f"s_and_b32 s{dst+1}, s{dst+1}, 0xffff")
    a.I(f"s_mov_b32 s{dst+2}, {256*128}")
    a.I(f"s_mov_b32 s{dst+3}, 0x20000")

def mfma(a, d, A, B, c=None):
    cs = vr(d, 4) if c is None else (c if isinstance(c, str) else vr(c, 4))
    a.I(f"v_mfma_f32_16x16x32_bf16 {vr(d,4)}, {vr(A,4)}, {vr(B,4)}, {cs}")

def kpattern_addr(a, dst, n):
    a.I("v_and_b32 v1, 15, v0")
    a.I("v_lshrrev_b32 v2, 4, v0")
    a.I("v_xor_b32 v3, v1, v2")
    a.I("v_lshlrev_b32 v1, 8, v1")
    for k in range(n):
        a.I(f"v_xor_b32 v2, {4*k}, v3")
        a.I(f"v_lshl_add_u32 v{dst+k}, v2, 4, v1")

def gen_G(a):
    a.L("L_roleG")
    X = 0; QA = 128; WF = 192; vWA = 224; vXA = 228; vXO = 236; vL16 = 240; vLane = 241
    SX = 32
    sW = 48; sA = 49; sBq = 50; sU = 51; sXb = 52; sC = 56; sPi = 53
    a.I(f"s_sub_u32 s{sW}, s{S_WAVE}, 4")
    a.I(f"s_mov_b32 s{sC}, {hex(f2u(CSCALE))}")
    a.I(f"s_mov_b32 s{sC+1}, {hex(f2u(CSCALE))}")
    a.I(f"v_mov_b32 v{vLane}, v0")
    a.I(f"v_lshlrev_b32 v{vL16}, 4, v0")
    kpattern_addr(a, vXA, 4)
    a.I(f"s_lshl_b32 s{sA}, s{sW}, 14")
    a.I(f"s_add_u32 s{sA}, s{sA}, {XS}")
    for k in range(4):
        a.I(f"v_add_u32 v{vXA+k}, s{sA}, v{vXA+k}")
    a.I("v_and_b32 v1, 15, v0")
    a.I("v_lshrrev_b32 v2, 4, v0")
    a.I("v_lshrrev_b32 v3, 2, v1")
    a.I("v_lshl_add_u32 v5, v2, 3, v3")
    a.I("v_lshlrev_b32 v5, 8, v5")
    a.I("v_and_b32 v6, 3, v1")
    a.I("v_lshl_add_u32 v5, v6, 4, v5")
    a.I(f"v_add_u32 v5, {WR}, v5")
    for i in range(4):
        a.I(f"v_xor_b32 v6, {i}, v3")
        a.I(f"v_lshl_add_u32 v{vWA+i}, v6, 6, v5")
    stamp_setup(a)
    pstamp(a, 246)
    pstamp(a, 246)

    def x_reads(piece):
        if piece == 2:
            for k in range(4): a.I(f"v_subrev_u32 v{vXA+k}, {XS}, v{vXA+k}")
        for t in range(4):
            for sb in range(2):
                a.I(f"ds_read_b128 {vr(X + piece*32 + t*8 + sb*4, 4)}, v{vXA+t} offset:{(piece&1)*8192 + sb*4096}")
    def rd(slot, i):
        return [f"ds_read_b64_tr_b16 {vr(WF + i*4 + sec*2, 2)}, v{vWA + (i >> 1)} offset:{slot*8192 + sec*1024 + (i & 1)*8}" for sec in range(2)]
    def qa(i, sb):
        return QA + (((i >> 1)*2 + sb)*2 + (i & 1))*4

    def task(t, first_unit, nxt=True):
        stamp(a, 246)
        a.I("s_barrier")
        stamp(a, 246)
        if cfg.nogr and not first_unit: return
        ns = (t + 1) & 3
        xb = X + t*8
        for i in range(8):
            for sb in range(2):
                if not (cfg.nog and not first_unit) and not (cfg.ghalf and not first_unit and i >= 8 - cfg.ghalf):
                    mfma(a, qa(i, sb), WF + i*4, xb + 4*sb, "0" if t == 0 else None)
                if nxt and i >= 1: a.I(rd(ns, i - 1)[sb])
        if nxt:
            for o in rd(ns, 7): a.I(o)
        if first_unit and t % 4 == 3 and t < 15:
            x_reads(t // 4 + 1)
        a.I("s_waitcnt lgkmcnt(0)")
        if first_unit: pstamp(a, 246)

    def handoff():
        a.I(f"s_cmp_lt_u32 s{sU}, 3")
        a.I(f"s_cselect_b32 s{sA}, {QH//8192}, {WR//8192}")
        a.I(f"s_add_u32 s{sA}, s{sA}, s{sW}")
        a.I(f"s_lshl_b32 s{sA}, s{sA}, 13")
        a.I(f"v_add_u32 v242, s{sA}, v{vL16}")
        a.I("s_nop 3")
        for k in range(8):
            for j in range(4):
                a.I(f"v_pk_mul_f32 {vr(QA+8*k+2*j,2)}, {vr(QA+8*k+2*j,2)}, s[{sC}:{sC+1}]")
            for j in range(4):
                a.I(f"v_cvt_pk_bf16_f32 v{QA+4*k+j}, v{QA+8*k+2*j}, v{QA+8*k+2*j+1}")
            a.I(f"ds_write_b128 v242, {vr(QA+4*k,4)} offset:{k*1024}")
        a.I("s_waitcnt lgkmcnt(0)")

    a.I("s_barrier")
    pstamp(a, 246)
    x_reads(0)
    for i in range(8):
        for o in rd(0, i): a.I(o)
    a.I("s_waitcnt lgkmcnt(0)")
    pstamp(a, 246)
    a.I(f"s_mov_b32 s{sU}, 0")
    for t in range(16): task(t, True)
    handoff()
    a.I(f"s_mov_b32 s{sU}, 1")
    a.L("L_G_unit")
    for t in range(15): task(t, False)
    task(15, False)
    handoff()
    a.I(f"s_add_u32 s{sU}, s{sU}, 1")
    a.I(f"s_cmp_lt_u32 s{sU}, 4")
    a.I("s_cbranch_scc1 L_G_unit")
    a.I("s_mov_b32 s54, 18")
    a.I("s_branch L_tail_mm")

def slab_voffsets(a, VO, lane, t):
    for jp in range(4):
        a.I(f"v_lshrrev_b32 v{t}, 5, v{lane}")
        a.I(f"v_bfe_u32 v{t+1}, v{lane}, 1, 3")
        a.I(f"v_add_u32 v{t+2}, {2*jp}, v{t}")
        a.I(f"v_xor_b32 v{t+1}, v{t+1}, v{t+2}")
        a.I(f"v_lshlrev_b32 v{t}, 10, v{t}")
        a.I(f"v_bfe_u32 v{t+2}, v{lane}, 4, 1")
        a.I(f"v_lshl_add_u32 v{t}, v{t+2}, 9, v{t}")
        a.I(f"v_lshrrev_b32 v{t+2}, 2, v{t+1}")
        a.I(f"v_lshl_add_u32 v{t}, v{t+2}, 8, v{t}")
        a.I(f"v_and_b32 v{t+2}, 3, v{t+1}")
        a.I(f"v_lshl_add_u32 v{t}, v{t+2}, 5, v{t}")
        a.I(f"v_and_b32 v{t+2}, 1, v{lane}")
        a.I(f"v_lshl_add_u32 v{VO+jp}, v{t+2}, 4, v{t}")

def tail_srds(a):
    srd(a, 32, P_WO, 0x400000)
    a.I(f"s_add_u32 s36, s{P_WS}, {cfg.part_off}")
    a.I(f"s_addc_u32 s37, s{P_WS+1}, 0")
    a.I("s_and_b32 s37, s37, 0xffff")
    a.I(f"s_mov_b32 s38, {hex(PART_BYTES)}")
    a.I("s_mov_b32 s39, 0x20000")
    go_srd(a, 64)

class LdsQ:
    def __init__(self): self.ops = []
    def issue(self, key): self.ops.append(key)
    def need(self, keys):
        last = max(len(self.ops) - 1 - self.ops[::-1].index(k) for k in keys)
        return len(self.ops) - 1 - last

def gen_A(a):
    a.L("L_roleA")
    O = 0; Q = 64; S = [96, 112]; NM = 128; P = [136, 144]; KF = 152; VF = 184
    vKA = 216; vVA = 220; l0 = 228; mx = 232; t0 = 233; inv = 234; vL16 = 242; vAd = 243; t1 = 238; t2 = 239; t3 = 240
    sIt = 48; sU = 49; sA = 50; sBq = 51; sW = S_WAVE
    if cfg.prio_a: a.I(f"s_setprio {cfg.prio_a}")
    stamp_setup(a)
    stamp(a, 246)
    stamp(a, 246, 1)
    dbg_stamp(a, 246)
    SX = 44; sXb = 58; sPi = 59
    srd(a, SX, P_X, 16*96*512*2)
    a.I("v_and_b32 v1, 15, v0")
    a.I("v_lshrrev_b32 v2, 4, v0")
    for j in range(4):
        a.I(f"v_add_u32 v3, {4*j}, v2")
        a.I("v_xor_b32 v3, v1, v3")
        a.I("v_lshlrev_b32 v3, 4, v3")
        a.I(f"v_lshl_add_u32 v{8+j}, v2, 10, v3")
    a.I(f"s_mul_i32 s{sXb}, s{S_B}, 98304")
    a.I(f"s_lshl_b32 s{sA}, s{sW}, 15")
    a.I(f"s_add_u32 s{sXb}, s{sXb}, s{sA}")
    def issue_x(piece, i0=0, i1=8):
        a.I(f"s_lshr_b32 s{sPi}, s{S_RHO}, 2")
        a.I(f"s_add_u32 s{sPi}, s{sPi}, {piece}")
        a.I(f"s_and_b32 s{sPi}, s{sPi}, 3")
        a.I(f"s_lshl_b32 s{sPi}, s{sPi}, 8")
        a.I(f"s_add_u32 s{sA}, s{sXb}, s{sPi}")
        if i0: a.I(f"s_add_u32 s{sA}, s{sA}, {i0*4096}")
        a.I(f"s_lshl_b32 s{sBq}, s{sW}, 14")
        a.I(f"s_add_u32 s{sBq}, s{sBq}, {(XS if piece < 2 else 0) + (piece & 1)*8192}")
        for i in range(i0, i1):
            a.I(f"s_add_u32 m0, s{sBq}, {i*1024}")
            if i > i0: a.I(f"s_add_u32 s{sA}, s{sA}, 4096")
            else: a.I("s_nop 0")
            a.I(f"buffer_load_dwordx4 v{8 + (i & 3)}, s[{SX}:{SX+3}], s{sA} offen{cfg.x_pol} lds")
    issue_x(0)
    sG = 55; sTrig = 54; vRdy = 245
    a.I(f"s_lshl_b32 s{sG}, s{S_P}, 4")
    a.I(f"s_add_u32 s{sG}, s{sG}, s{S_B}")
    a.I(f"s_mov_b32 s{sTrig}, 0xffff")
    a.I("s_load_dwordx2 s[56:57], s[0:1], 88")
    a.I("s_waitcnt lgkmcnt(0)")
    srd(a, 40, 56, 256)
    a.I(f"v_lshlrev_b32 v{vL16}, 4, v0")
    a.I("v_mov_b32 v255, v0")
    slab_voffsets(a, 248, 255, 1)
    tail_srds(a)
    kpattern_addr(a, vKA, 4)
    a.I("v_and_b32 v1, 15, v0")
    a.I("v_lshrrev_b32 v2, 4, v0")
    a.I("v_lshrrev_b32 v3, 2, v1")
    a.I("v_lshl_add_u32 v4, v2, 2, v3")
    a.I("v_lshlrev_b32 v5, 8, v4")
    a.I("v_and_b32 v6, 3, v1")
    a.I("v_lshl_add_u32 v5, v6, 3, v5")
    a.I(f"v_add_u32 v5, {VR}, v5")
    a.I("v_and_b32 v4, 7, v4")
    for i in range(8):
        a.I(f"v_xor_b32 v6, {i}, v4")
        a.I(f"v_lshl_add_u32 v{vVA+i}, v6, 5, v5")
    for j in range(4): a.I(f"v_mov_b32 v{l0+j}, 0")
    def handoff_setup(part):
        a.I(f"s_cmp_lg_u32 s{S_WAVE}, 0")
        a.I(f"s_cbranch_scc1 L_A_noreset{part}")
        if part == 0:
            go_srd(a, 64)
            a.I(f"s_lshl_b32 s{sA}, s{sG}, 3")
            a.I(f"s_add_u32 s{sA}, s{sA}, s{S_MJ}")
            a.I(f"s_lshl_b32 s{sA}, s{sA}, 7")
            a.I("v_mov_b32 v1, 0")
            a.I("v_lshlrev_b32 v2, 2, v0")
            a.I("s_mov_b64 s[60:61], exec")
            a.I("s_mov_b64 exec, 0xff")
            a.I(f"buffer_store_dword v1, v2, s[64:67], s{sA} offen sc1")
            a.I("s_mov_b64 exec, s[60:61]")
        else:
            a.I("s_waitcnt vmcnt(0)")
            a.I("v_mov_b32 v1, 0")
            a.I("v_mov_b32 v2, 1")
            a.I(f"s_lshl_b32 s{sA}, s{sG}, 2")
            a.I(f"s_add_u32 s{sA}, s{sA}, 128")
            a.I("s_mov_b64 s[60:61], exec")
            a.I("s_mov_b64 exec, 1")
            a.I(f"buffer_atomic_add v2, v1, s[40:43], s{sA} offen")
            a.I("s_mov_b64 exec, s[60:61]")
            a.I("s_lshr_b32 s3, s2, 3")
            a.I("s_mul_i32 s3, s3, 3")
            a.I("s_lshr_b32 s3, s3, 3")
            a.I(f"s_add_u32 s{sTrig}, s3, 4")
        a.L(f"L_A_noreset{part}")
    def code_warm():
        a.I("s_getpc_b64 s[60:61]")
        a.L("L_pc_here")
        a.I(f"s_sub_u32 s60, s60, L_pc_here-{K1}")
        a.I("s_subb_u32 s61, s61, 0")
        a.I("s_mov_b32 s68, s60")
        a.I("s_and_b32 s69, s61, 0xffff")
        a.I(f"s_mov_b32 s70, L_k1_end-{K1}")
        a.I("s_mov_b32 s71, 0x20000")
        a.I(f"s_lshl_b32 s{sA}, s{S_SLOT}, 11")
        a.I(f"s_sub_u32 s{sBq}, s{sW}, 1")
        a.I(f"s_lshl_b32 s{sBq}, s{sBq}, 10")
        a.I(f"s_add_u32 s{sA}, s{sA}, s{sBq}")
        a.I("v_lshlrev_b32 v12, 4, v0")
        a.I(f"s_cmp_eq_u32 s{sW}, 0")
        a.I("s_cbranch_scc1 L_nowarm")
        a.I(f"buffer_load_dwordx4 v[244:247], v12, s[68:71], s{sA} offen")
        a.L("L_nowarm")
    a.I("s_waitcnt vmcnt(0)")
    for n in range(-1, 16):
        stamp(a, 246)
        a.I("s_barrier")
        stamp(a, 246)
        XP = cfg.xsched
        if XP == 0:
            if n in (-1, 0, 1): issue_x(n + 2)
            if n == 2: a.I("s_waitcnt vmcnt(16)")
            if n == 6: a.I("s_waitcnt vmcnt(8)")
        elif XP == 1:
            if n in (-1, 0): issue_x(1, 4*(n+1), 4*(n+2))
            if 1 <= n <= 4: issue_x(2, 2*(n-1), 2*n)
            if 5 <= n <= 8: issue_x(3, 2*(n-5), 2*(n-4))
            if n == 2: a.I("s_waitcnt vmcnt(4)")
            if n == 6: a.I("s_waitcnt vmcnt(4)")
        elif XP == 2:
            if -1 <= n <= 1: issue_x(1, [0,3,6][n+1], [3,6,8][n+1])
            if 2 <= n <= 4: issue_x(2, [0,3,6][n-2], [3,6,8][n-2])
            if 5 <= n <= 7: issue_x(3, [0,3,6][n-5], [3,6,8][n-5])
            if n == 2: a.I("s_waitcnt vmcnt(3)")
            if n == 6: a.I("s_waitcnt vmcnt(6)")
        if n == 10: a.I("s_waitcnt vmcnt(0)")
        if n == 11: handoff_setup(0)
        if n == 15: handoff_setup(1)
        if n == cfg.cwstep and cfg.codewarm: code_warm()

    rare_blocks = []

    def oacc(i, sb):
        return O + (((i >> 1)*2 + sb)*2 + (i & 1))*4
    def xreduce(v, op, tmp):
        a.I(f"v_mov_b32 v{tmp}, v{v}")
        a.I("s_nop 1")
        a.I(f"v_permlane16_swap_b32 v{v}, v{tmp}")
        a.I("s_nop 0")
        a.I(f"{op} v{v}, v{v}, v{tmp}")
        a.I(f"v_mov_b32 v{tmp}, v{v}")
        a.I("s_nop 1")
        a.I(f"v_permlane32_swap_b32 v{v}, v{tmp}")
        a.I("s_nop 0")
        a.I(f"{op} v{v}, v{v}, v{tmp}")

    def step(pos, tag, pv=True, pv_c0=False, sm=True, qk=True, first=False, fin_l=False, finalize=False, vrd=True, check=True):
        Sn = S[pos % 2]; Sc = S[(pos + 1) % 2]
        Pw = P[(pos + 1) % 2]; Pr = P[pos % 2]
        vslot = (pos + 3) % 4
        stamp(a, 246)
        a.I("s_barrier")
        stamp(a, 246)
        if first: dbg_stamp(a, 246)
        if first or tag == "_l0": stamp(a, 246, 1)
        if cfg.noa: return
        if first:
            a.I(f"s_cmp_lt_u32 s{sU}, 3")
            a.I(f"s_cselect_b32 s{sA}, {QH//8192}, {WR//8192}")
            a.I(f"s_add_u32 s{sA}, s{sA}, s{sW}")
            a.I(f"s_lshl_b32 s{sA}, s{sA}, 13")
            a.I(f"v_add_u32 v{vAd}, s{sA}, v{vL16}")
            for k in range(8):
                a.I(f"ds_read_b128 {vr(Q+4*k,4)}, v{vAd} offset:{k*1024}")
        if finalize:
            a.I(f"s_sub_u32 s{sA}, s{sU}, 1")
            a.I(f"s_lshl_b32 s{sA}, s{sA}, 3")
            a.I(f"s_lshr_b32 s{sA}, 0x80C11, s{sA}")
            a.I(f"s_and_b32 s{sA}, s{sA}, 0xff")
            a.I(f"s_add_u32 s{sA}, s{sA}, s{sW}")
            a.I(f"s_lshl_b32 s{sA}, s{sA}, 13")
            a.I(f"v_add_u32 v{vAd}, s{sA}, v{vL16}")
        lq = LdsQ()
        def kread(k):
            a.I(f"ds_read_b128 {vr(KF+k*4,4)}, v{vKA + k//2} offset:{pos*8192 + (k % 2)*4096}")
            lq.issue(("K", k))
        def vread(idx):
            i, sec = idx // 2, idx % 2
            a.I(f"ds_read_b64_tr_b16 {vr(VF + i*4 + sec*2, 2)}, v{vVA+i} offset:{vslot*8192 + sec*4096}")
            lq.issue(("V", idx))
        def valu_slot(sl):
            if not sm: return
            j = sl // 2
            if sl % 2 == 0:
                a.I(f"v_exp_f32 v{Sc+j}, v{Sc+j}")
            else:
                if j >= 1:
                    e = j - 1
                    lr = l0 + 2*(e >> 3) + (e & 1)
                    a.I(f"v_add_f32 v{lr}, v{lr}, v{Sc+e}")
                if j >= 2 and j % 2 == 0:
                    m = j // 2 - 1
                    a.I(f"v_cvt_pk_bf16_f32 v{Pw+m}, v{Sc+2*m}, v{Sc+2*m+1}")
        vs = {}
        if vrd:
            if pv and cfg.vearly:
                for n_, sl_ in enumerate((8, 10, 12, 14)): vs[sl_] = n_
                for n_ in range(4, 16): vs[12 + n_] = n_
            else:
                for n_ in range(16): vs[16 + n_] = n_
        if qk and not pv:
            for k in range(8): kread(k)
        pv_mark = None
        for sl in range(16):
            i, sb = sl // 2, sl % 2
            if pv:
                mfma(a, oacc(i, sb), VF + i*4, Pr + 4*sb, "0" if pv_c0 else None)
                pv_mark = a.mark()
            valu_slot(sl)
            if qk and pv and sb == 1: kread(i)
            if sl in vs: vread(vs[sl])
        for k in range(8):
            kap, kt = k // 2, k % 2
            for sb in range(2):
                sl = 16 + 2*k + sb
                if qk:
                    if sb == 0: a.I(f"s_waitcnt lgkmcnt({min(15, lq.need([('K', k)]))})")
                    c = ("0" if first else vr(NM + 4*sb, 4)) if kap == 0 else None
                    mfma(a, Sn + (sb*2 + kt)*4, KF + k*4, Q + (kap*2 + sb)*4, c)
                    qk_mark = a.mark()
                valu_slot(sl)
                if sl in vs: vread(vs[sl])
            if finalize:
                if k == 0 and pv_mark is not None: a.pad_since(pv_mark, 8)
                sb = k & 1
                for j in range(4):
                    a.I(f"v_pk_mul_f32 {vr(O+8*k+2*j,2)}, {vr(O+8*k+2*j,2)}, {vr(inv+2*sb,2)}")
                for j in range(4):
                    a.I(f"v_cvt_pk_bf16_f32 v{O+4*k+j}, v{O+8*k+2*j}, v{O+8*k+2*j+1}")
                a.I(f"ds_write_b128 v{vAd}, {vr(O+4*k,4)} offset:{k*1024}")
                lq.issue(("W", k))
        if sm:
            a.I("s_nop 0")
            if cfg.pkadd: a.I(f"v_pk_add_f32 {vr(l0+2,2)}, {vr(l0+2,2)}, {vr(Sc+14,2)}")
            else: a.I(f"v_add_f32 v{l0+3}, v{l0+3}, v{Sc+15}")
            a.I(f"v_cvt_pk_bf16_f32 v{Pw+7}, v{Sc+14}, v{Sc+15}")
        if fin_l:
            for sb in range(2):
                a.I(f"v_add_f32 v{t0}, v{l0+2*sb}, v{l0+2*sb+1}")
                xreduce(t0, "v_add_f32", t1)
                a.I(f"v_rcp_f32 v{inv+2*sb}, v{t0}")
                a.I(f"v_mov_b32 v{l0+2*sb}, 0")
                a.I(f"v_mov_b32 v{inv+2*sb+1}, v{inv+2*sb}")
                a.I(f"v_mov_b32 v{l0+2*sb+1}, 0")
        if qk:
            a.pad_since(qk_mark, 8)
            if first:
                for sb in range(2):
                    b8 = Sn + 8*sb
                    a.I(f"v_max3_f32 v{mx}, v{b8}, v{b8+1}, v{b8+2}")
                    a.I(f"v_max3_f32 v{mx}, v{mx}, v{b8+3}, v{b8+4}")
                    a.I(f"v_max3_f32 v{mx}, v{mx}, v{b8+5}, v{b8+6}")
                    a.I(f"v_max_f32 v{mx}, v{mx}, v{b8+7}")
                    xreduce(mx, "v_max_f32", t0)
                    for j in range(8):
                        a.I(f"v_sub_f32 v{b8+j}, v{b8+j}, v{mx}")
                    for j in range(4):
                        a.I(f"v_sub_f32 v{NM+4*sb+j}, 0, v{mx}")
            else:
                a.I(f"v_max3_f32 v{mx}, v{Sn}, v{Sn+1}, v{Sn+2}")
                a.I(f"v_max3_f32 v{t1}, v{Sn+3}, v{Sn+4}, v{Sn+5}")
                a.I(f"v_max3_f32 v{mx}, v{mx}, v{Sn+6}, v{Sn+7}")
                a.I(f"v_max3_f32 v{t1}, v{t1}, v{Sn+8}, v{Sn+9}")
                a.I(f"v_max3_f32 v{mx}, v{mx}, v{Sn+10}, v{Sn+11}")
                a.I(f"v_max3_f32 v{t1}, v{t1}, v{Sn+12}, v{Sn+13}")
                a.I(f"v_max3_f32 v{mx}, v{mx}, v{Sn+14}, v{Sn+15}")
                a.I(f"v_max_f32 v{mx}, v{mx}, v{t1}")
                if check:
                    a.I(f"v_cmp_lt_f32 vcc, {hex(f2u(cfg.thresh))}, v{mx}")
                    a.I(f"s_cbranch_vccnz L_A_rare{tag}")
                    a.L(f"L_A_ret{tag}")
                    rare_blocks.append((tag, Sn, Pw, sm))
        a.I("s_waitcnt lgkmcnt(0)")

    a.I(f"s_mov_b32 s{sU}, 0")
    step(0, "_f0", pv=False, sm=False, first=True, vrd=False)
    step(1, "_f1", pv=False)
    a.I(f"s_mov_b32 s{sIt}, 0")
    a.I("s_branch L_A_b2")
    a.L("L_A_loop")
    a.I(f"s_lshl_b32 s{sA}, s{sU}, 2")
    a.I(f"s_add_u32 s{sA}, s{sA}, s{sIt}")
    a.I(f"s_cmp_lg_u32 s{sA}, s{sTrig}")
    a.I("s_cbranch_scc1 L_A_notrig")
    a.I(f"s_lshl_b32 s{sA}, s{sG}, 2")
    a.I(f"s_add_u32 s{sA}, s{sA}, 128")
    a.I("v_mov_b32 v252, 0")
    a.I(f"buffer_load_dword v253, v252, s[40:43], s{sA} offen sc1")
    a.L("L_A_notrig")
    a.I(f"s_cmp_lg_u32 s{sIt}, 0")
    a.I("s_cbranch_scc1 L_A_reg0")
    a.I(f"s_cmp_eq_u32 s{sU}, 4")
    a.I("s_cbranch_scc1 L_A_last")
    step(0, "_b0", first=True, fin_l=True)
    step(1, "_b1", finalize=True)
    a.L("L_A_b2")
    step(2, "_b2", pv_c0=True)
    a.I("s_branch L_A_reg3")
    a.L("L_A_reg0")
    step(0, "_0")
    step(1, "_1")
    step(2, "_2")
    a.L("L_A_reg3")
    step(3, "_3")
    a.I(f"s_add_u32 s{sIt}, s{sIt}, 1")
    a.I(f"s_cmp_eq_u32 s{sIt}, 4")
    a.I("s_cbranch_scc0 L_A_loop")
    a.I(f"s_mov_b32 s{sIt}, 0")
    a.I(f"s_add_u32 s{sU}, s{sU}, 1")
    a.I("s_branch L_A_loop")
    a.L("L_A_last")
    step(0, "_l0", qk=False, fin_l=True)
    step(1, "_l1", qk=False, sm=False, vrd=False, finalize=True)
    a.I("s_branch L_tail_ld")
    for tag, Sn, Pw, sm in rare_blocks:
        a.L(f"L_A_rare{tag}")
        a.I("s_nop 15")
        for sb in range(2):
            b8 = Sn + 8*sb
            a.I(f"v_max3_f32 v{mx}, v{b8}, v{b8+1}, v{b8+2}")
            a.I(f"v_max3_f32 v{mx}, v{mx}, v{b8+3}, v{b8+4}")
            a.I(f"v_max3_f32 v{mx}, v{mx}, v{b8+5}, v{b8+6}")
            a.I(f"v_max_f32 v{mx}, v{mx}, v{b8+7}")
            xreduce(mx, "v_max_f32", t0)
            a.I(f"v_max_f32 v{mx}, 0, v{mx}")
            a.I(f"v_ceil_f32 v{mx}, v{mx}")
            a.I(f"v_min_f32 v{t0}, 0x43480000, v{mx}")
            a.I(f"v_cvt_i32_f32 v{t0}, v{t0}")
            a.I(f"v_sub_u32 v{t0}, 0, v{t0}")
            a.I(f"v_ldexp_f32 v{t1}, 1.0, v{t0}")
            a.I(f"v_mov_b32 v{t2}, v{t1}")
            for j in range(8):
                a.I(f"v_sub_f32 v{b8+j}, v{b8+j}, v{mx}")
            for j in range(4):
                a.I(f"v_sub_f32 v{NM+4*sb+j}, v{NM+4*sb+j}, v{mx}")
            for kap in range(4):
                ob = O + (kap*2 + sb)*8
                for j in range(4):
                    a.I(f"v_pk_mul_f32 {vr(ob+2*j,2)}, {vr(ob+2*j,2)}, {vr(t1,2)}")
            a.I(f"v_mul_f32 v{l0+2*sb}, v{l0+2*sb}, v{t1}")
            a.I(f"v_mul_f32 v{l0+2*sb+1}, v{l0+2*sb+1}, v{t1}")
            for j in range(4):
                pr = Pw + 4*sb + j
                a.I(f"v_lshlrev_b32 v{mx}, 16, v{pr}")
                a.I(f"v_and_b32 v{t0}, 0xffff0000, v{pr}")
                a.I(f"v_mul_f32 v{mx}, v{mx}, v{t1}")
                a.I(f"v_mul_f32 v{t0}, v{t0}, v{t1}")
                a.I(f"v_cvt_pk_bf16_f32 v{pr}, v{mx}, v{t0}")
        a.I("s_nop 1")
        a.I(f"s_branch L_A_ret{tag}")

SLAB = [[122880, 131072], [40960, 49152], [24576, 32768], [57344, 90112]]
def gen_tail(a):
    SWO = 32; SPT = 36; SDB = 40; SOUT = 44; SGO = 64
    sSt = 48; sA = 49; sBq = 50; sIt = 52; sRow = 53; sG = 55; sJ = 63
    vL = 255
    def tail_stamp_reset():
        if cfg.stamps:
            a.I("s_and_b32 s96, s96, 0xfffffc00")
            a.I(f"s_add_u32 s96, s96, {1000 if cfg.stamps == 2 else 512}")
    def part_srd():
        a.I(f"s_add_u32 s{SPT}, s{P_WS}, {cfg.part_off}")
        a.I(f"s_addc_u32 s{SPT+1}, s{P_WS+1}, 0")
        a.I(f"s_and_b32 s{SPT+1}, s{SPT+1}, 0xffff")
        a.I(f"s_mov_b32 s{SPT+2}, {hex(PART_BYTES)}")
        a.I(f"s_mov_b32 s{SPT+3}, 0x20000")
    def lane_id():
        a.I(f"v_mbcnt_lo_u32_b32 v{vL}, -1, 0")
        a.I(f"v_mbcnt_hi_u32_b32 v{vL}, -1, v{vL}")
    def group_id():
        a.I(f"s_lshl_b32 s{sG}, s{S_P}, 4")
        a.I(f"s_add_u32 s{sG}, s{sG}, s{S_B}")
    VO = 248
    sTab = 56; sG0 = 57
    def ld_slab(j0, nj, j0_reg=None):
        a.I(f"s_and_b32 s{sA}, s{sJ}, 15")
        a.I(f"s_add_u32 s{sA}, s{sA}, s{S_B}")
        a.I(f"s_and_b32 s{sA}, s{sA}, 15")
        a.I(f"s_lshl_b32 s{sA}, s{sA}, 15")
        if cfg.wo_fake: a.I(f"s_mov_b32 s{sA}, 0")
        a.I(f"s_lshr_b32 s{sBq}, s{sJ}, 4")
        a.I(f"s_xor_b32 s{sBq}, s{sBq}, s{S_B}")
        a.I(f"s_and_b32 s{sBq}, s{sBq}, 1")
        a.I(f"s_lshl_b32 s{sBq}, s{sBq}, 7")
        a.I(f"s_add_u32 s{sA}, s{sA}, s{sBq}")
        a.I(f"s_add_u32 s{sA}, s{sA}, s{sRow}")
        blk = [SLAB[sl][hf] // 8192 for sl in range(4) for hf in range(2)]
        lo = sum(blk[2*sl] << (8*sl) for sl in range(4)); hi = sum(blk[2*sl+1] << (8*sl) for sl in range(4))
        a.I(f"s_and_b32 s{sBq}, s{sJ}, 3")
        a.I(f"s_lshl_b32 s{sBq}, s{sBq}, 3")
        if j0_reg is None:
            for hf, tab in ((0, lo), (1, hi)):
                a.I(f"s_lshr_b32 s{sIt}, {hex(tab)}, s{sBq}")
                a.I(f"s_and_b32 s{sIt}, s{sIt}, 0xff")
                a.I(f"s_lshl_b32 s{sIt}, s{sIt}, 13")
                for j in range(8):
                    a.I(f"s_add_u32 m0, s{sIt}, {j*1024}")
                    if hf or j: a.I(f"s_add_u32 s{sA}, s{sA}, 2048")
                    else: a.I("s_nop 0")
                    a.I(f"buffer_load_dwordx4 v{VO + (j & 3)}, s[{SWO}:{SWO+3}], s{sA} offen{cfg.wo_pol} lds")
        else:
            a.I(f"s_lshr_b32 s{sIt}, s{sTab}, s{sBq}")
            a.I(f"s_and_b32 s{sIt}, s{sIt}, 0xff")
            a.I(f"s_lshl_b32 s{sIt}, s{sIt}, 13")
            a.I(f"s_add_u32 s{sIt}, s{sIt}, s{j0_reg}")
            a.I(f"s_add_u32 s{sA}, s{sA}, s{sG0}")
            for j in range(4):
                a.I(f"s_add_u32 m0, s{sIt}, {j*1024}")
                if j: a.I(f"s_add_u32 s{sA}, s{sA}, 2048")
                else: a.I("s_nop 0")
                a.I(f"buffer_load_dwordx4 v{VO + (j & 3)}, s[{SWO}:{SWO+3}], s{sA} offen{cfg.wo_pol} lds")
        a.I(f"s_add_u32 s{sJ}, s{sJ}, 1")

    a.L("L_tail_pre")
    a.I("s_load_dwordx2 s[60:61], s[0:1], 88")
    a.I("s_waitcnt lgkmcnt(0)")
    srd(a, SDB, 60, 256)
    lane_id()
    slab_voffsets(a, VO, vL, 10)
    tail_srds(a)
    a.I(f"s_lshl_b32 s{sRow}, s{S_HB}, 17")
    a.I(f"s_mov_b32 s{sJ}, 0")
    for n in (79, 80, 81):
        stamp(a, 246)
        a.I("s_barrier")
        stamp(a, 246)
        ld_slab(0, 16)
        stamp(a, 246)
    a.I("s_waitcnt vmcnt(16)")
    a.I("s_branch L_tail_ld2")
    a.L("L_tail_ld")
    a.I("s_setprio 0")
    a.I(f"s_lshl_b32 s{sRow}, s{S_HB}, 17")
    a.I(f"s_mov_b32 s{sJ}, 3")
    a.L("L_tail_ld2")
    group_id()
    a.I(f"s_cmp_lg_u32 s{S_WAVE}, 0")
    a.I("s_cbranch_scc1 L_T_rdy")
    a.I("s_waitcnt vmcnt(0)")
    a.I("v_readfirstlane_b32 s62, v253")
    a.I("s_cmp_ge_u32 s62, 8")
    a.I("s_cbranch_scc1 L_T_rdy")
    a.I(f"s_lshl_b32 s{sA}, s{sG}, 2")
    a.I(f"s_add_u32 s{sA}, s{sA}, 128")
    a.I(f"s_mov_b32 s{sIt}, 0")
    a.I("v_mov_b32 v252, 0")
    a.L("L_T_rdypoll")
    a.I(f"buffer_load_dword v253, v252, s[{SDB}:{SDB+3}], s{sA} offen sc1")
    a.I("s_waitcnt vmcnt(0)")
    a.I("v_readfirstlane_b32 s62, v253")
    a.I(f"s_add_u32 s{sIt}, s{sIt}, 1")
    a.I("s_cmp_ge_u32 s62, 8")
    a.I("s_cbranch_scc1 L_T_rdy")
    a.I(f"s_cmp_lt_u32 s{sIt}, 0x4000")
    a.I("s_cbranch_scc0 L_T_rdy")
    a.I("s_sleep 8")
    a.I("s_branch L_T_rdypoll")
    a.L("L_T_rdy")
    sJ0 = 51
    blk = [SLAB[sl][hf] // 8192 for sl in range(4) for hf in range(2)]
    lo = sum(blk[2*sl] << (8*sl) for sl in range(4)); hi = sum(blk[2*sl+1] << (8*sl) for sl in range(4))
    a.I(f"s_mov_b32 s{sTab}, {hex(lo)}")
    a.I(f"s_cmp_ge_u32 s{S_WAVE}, 2")
    a.I(f"s_cselect_b32 s{sTab}, {hex(hi)}, s{sTab}")
    a.I(f"s_and_b32 s{sJ0}, s{S_WAVE}, 1")
    a.I(f"s_lshl_b32 s{sJ0}, s{sJ0}, 12")
    a.I(f"s_lshl_b32 s{sG0}, s{S_WAVE}, 13")
    a.I("s_barrier")
    tail_stamp_reset()
    stamp(a, 246); stamp(a, 246, 1); dbg_stamp(a, 246)
    a.I(f"s_mov_b32 s{sSt}, 29")
    a.L("L_TL_loop")
    ld_slab(0, 4, sJ0)
    a.I("s_waitcnt vmcnt(4)")
    a.I("s_barrier")
    a.I(f"s_sub_u32 s{sSt}, s{sSt}, 1")
    a.I(f"s_cmp_lg_u32 s{sSt}, 0")
    a.I("s_cbranch_scc1 L_TL_loop")
    a.I("s_waitcnt vmcnt(0)")
    a.I("s_barrier")
    a.I("s_barrier")
    stamp(a, 246); stamp(a, 246, 1); dbg_stamp(a, 246)
    a.I(f"s_mov_b32 s{sJ}, s{S_WAVE}")
    a.I("s_branch L_T_reduce")

    a.L("L_tail_mm")
    ACC = [0, 96]; AF = 192; BF = 208; vAA = 232; vB = 240; vL16 = 242; PK = 244
    sWp = 51
    a.I(f"s_setprio {cfg.mmprio}")
    part_srd()
    group_id()
    go_srd(a, SGO)
    lane_id()
    a.I(f"s_sub_u32 s{sWp}, s{S_WAVE}, 4")
    T0 = 244
    a.I(f"v_and_b32 v{T0}, 15, v{vL}")
    a.I(f"v_lshrrev_b32 v{T0+1}, 4, v{vL}")
    a.I(f"v_lshrrev_b32 v{T0+2}, 2, v{T0}")
    a.I(f"v_lshl_add_u32 v{T0+3}, v{T0+1}, 2, v{T0+2}")
    a.I(f"v_lshlrev_b32 v{T0+4}, 9, v{T0+3}")
    a.I(f"v_and_b32 v{T0+5}, 3, v{T0}")
    a.I(f"v_lshl_add_u32 v{T0+4}, v{T0+5}, 3, v{T0+4}")
    a.I(f"s_lshr_b32 s{sA}, s{sWp}, 1")
    a.I(f"s_lshl_b32 s{sA}, s{sA}, 8")
    a.I(f"v_add_u32 v{T0+4}, s{sA}, v{T0+4}")
    a.I(f"v_and_b32 v{T0+3}, 7, v{T0+3}")
    a.I(f"s_and_b32 s{sA}, s{sWp}, 1")
    a.I(f"s_lshl_b32 s{sA}, s{sA}, 2")
    for t in range(4):
        a.I(f"s_add_u32 s{sBq}, s{sA}, {t}")
        a.I(f"v_xor_b32 v{T0+5}, s{sBq}, v{T0+3}")
        a.I(f"v_lshl_add_u32 v{vAA+t}, v{T0+5}, 5, v{T0+4}")
    a.I(f"v_lshlrev_b32 v{vL16}, 4, v{vL}")
    for j in range(192): a.I(f"v_mov_b32 v{j}, 0")
    TB = 68
    for i in range(16):
        a.I(f"s_add_u32 s{sA}, s{S_B}, {i}")
        a.I(f"s_and_b32 s{sA}, s{sA}, 15")
        a.I(f"s_lshr_b32 s{sBq}, s{sA}, 2")
        a.I(f"s_lshl_b32 s{sBq}, s{sBq}, 3")
        a.I(f"s_lshr_b32 s{sBq}, 0x80C11, s{sBq}")
        a.I(f"s_and_b32 s{sBq}, s{sBq}, 0xff")
        a.I(f"s_lshl_b32 s{sBq}, s{sBq}, 13")
        a.I(f"s_and_b32 s{sA}, s{sA}, 3")
        a.I(f"s_lshl_b32 s{sA}, s{sA}, 11")
        a.I(f"s_add_u32 s{TB+i}, s{sBq}, s{sA}")
    vAH = 236
    HI = 90112
    for t in range(4): a.I(f"v_add_u32 v{vAH+t}, {HI}, v{vAA+t}")
    q = LdsQ()
    done = [-1]
    def rdA(slot, t):
        for sec in range(2):
            base = SLAB[slot][sec]
            if base >= 65536: a.I(f"ds_read_b64_tr_b16 {vr(AF + t*4 + sec*2, 2)}, v{vAH+t} offset:{base - HI}")
            else: a.I(f"ds_read_b64_tr_b16 {vr(AF + t*4 + sec*2, 2)}, v{vAA+t} offset:{base}")
            q.issue(("A", t, sec))
    def rdB(par, sub):
        a.I(f"ds_read_b128 {vr(BF + sub*4, 4)}, v{vB+par} offset:{(sub >> 1)*8192 + (sub & 1)*1024}")
        q.issue(("B", sub))
    def acc(P, t, sub):
        return ACC[P] + ((sub*2 + (t >> 1))*2 + (t & 1))*4
    a.I(f"v_add_u32 v{vB}, s{TB}, v{vL16}")
    a.I(f"v_add_u32 v{vB+1}, s{TB+1}, v{vL16}")
    a.L("L_T_idle")
    a.I("s_barrier")
    a.I("s_sub_u32 s54, s54, 1")
    a.I("s_cmp_lg_u32 s54, 0")
    a.I("s_cbranch_scc1 L_T_idle")
    a.I("s_barrier")
    tail_stamp_reset()
    stamp(a, 246); stamp(a, 246, 1); dbg_stamp(a, 246)
    def issue_read(p, slot, par):
        if p[0] == "B":
            rdB(par, p[1])
        else:
            t, sec = p[1], p[2]
            base = SLAB[slot][sec]
            if base >= 65536: a.I(f"ds_read_b64_tr_b16 {vr(AF + t*4 + sec*2, 2)}, v{vAH+t} offset:{base - HI}")
            else: a.I(f"ds_read_b64_tr_b16 {vr(AF + t*4 + sec*2, 2)}, v{vAA+t} offset:{base}")
            q.issue(("A", t, sec))
    def order():
        return [(hf, t, j) for hf in range(2) for t in range(4) for j in range(3)]
    for sub in range(6): rdB(0, sub)
    for t in range(4): rdA(0, t)
    def store_tile(P, ch, first_of_stage):
        base = ACC[P] + ch*16
        ops = [f"v_cvt_pk_bf16_f32 v{PK+j}, v{base+2*j}, v{base+2*j+1}" for j in range(8)]
        ops.append(f"s_add_u32 s{sBq}, s{sJ}, {ch*2048}")
        ops.append(f"buffer_store_dwordx4 {vr(PK,4)}, v{vL16}, s[{SPT}:{SPT+3}], s{sBq} offen{cfg.part_st_pol}")
        ops.append(f"buffer_store_dwordx4 {vr(PK+4,4)}, v{vL16}, s[{SPT}:{SPT+3}], s{sBq} offen offset:1024{cfg.part_st_pol}")
        ops.append("s_nop 1")
        return ops
    def part_base(P):
        a.I(f"s_lshl_b32 s{sJ}, s{sG}, 2")
        a.I(f"s_add_u32 s{sJ}, s{sJ}, s{sWp}")
        a.I(f"s_lshl_b32 s{sJ}, s{sJ}, 1")
        a.I(f"s_and_b32 s{sA}, s{S_B}, 1")
        a.I(f"s_xor_b32 s{sA}, s{sA}, {P}")
        a.I(f"s_add_u32 s{sJ}, s{sJ}, s{sA}")
        a.I(f"s_lshl_b32 s{sJ}, s{sJ}, 3")
        a.I(f"s_add_u32 s{sJ}, s{sJ}, s{S_MJ}")
        a.I(f"s_mul_i32 s{sJ}, s{sJ}, 12288")
    def raise_flag(P):
        a.I("s_waitcnt vmcnt(0)")
        a.I(f"s_lshl_b32 s{sA}, s{sG}, 2")
        a.I(f"s_add_u32 s{sA}, s{sA}, s{sWp}")
        a.I(f"s_lshl_b32 s{sA}, s{sA}, 1")
        a.I(f"s_and_b32 s{sBq}, s{S_B}, 1")
        a.I(f"s_xor_b32 s{sBq}, s{sBq}, {P}")
        a.I(f"s_add_u32 s{sA}, s{sA}, s{sBq}")
        a.I(f"s_lshl_b32 s{sA}, s{sA}, 7")
        a.I(f"s_lshl_b32 s{sBq}, s{S_MJ}, 2")
        a.I(f"s_add_u32 s{sA}, s{sA}, s{sBq}")
        a.I(f"v_mov_b32 v{PK}, 1")
        a.I(f"v_mov_b32 v{PK+1}, 0")
        a.I("s_mov_b64 s[60:61], exec")
        a.I("s_mov_b64 exec, 1")
        a.I(f"buffer_store_dword v{PK}, v{PK+1}, s[{SGO}:{SGO+3}], s{sA} offen sc1")
        a.I("s_mov_b64 exec, s[60:61]")
    def stage(sg, P, nxt=True, bar=True, extra=None, late=None):
        ns = (sg + 1) & 3; npar = (sg + 1) & 1
        extra = list(extra or []); late = list(late or [])
        pend = []
        nm = 0
        for (hf, t, j) in order():
            sub = 3*hf + j
            c = q.need([("B", sub), ("A", t, 0), ("A", t, 1)])
            pos = len(q.ops) - 1 - c
            if pos > done[0]:
                a.I(f"s_waitcnt lgkmcnt({min(15, c)})")
                done[0] = len(q.ops) - 1 - min(15, c)
            mfma(a, acc(P, t, sub), AF + t*4, BF + sub*4)
            nm += 1
            if nxt and t == 3: pend.append(("B", sub))
            if nxt and hf == 1 and j == 2: pend += [("A", t, 0), ("A", t, 1)]
            if pend:
                issue_read(pend.pop(0), ns, npar)
            elif nm == 1 and sg + 2 < 32:
                a.I(f"v_add_u32 v{vB + (sg & 1)}, s{TB + ((sg + 2) & 15)}, v{vL16}")
            elif extra:
                a.I(extra.pop(0))
                if extra: a.I(extra.pop(0))
            if nm in (17, 19) and late: a.I(late.pop(0))
        for p in pend: issue_read(p, ns, npar)
        for o in extra + late: a.I(o)
        if bar: a.I("s_barrier")
    for sg in range(16): stage(sg, 0)
    if cfg.tailst: stamp(a, 246, 1)
    part_base(0)
    for st in range(16):
        extra = []; late = []
        if st < 6:
            ops = store_tile(0, st, False)
            extra = ops[:9]
            late = ops[9:11]
        stage(16 + st, 1, nxt=(st < 15), bar=(st < 15), extra=extra, late=late)
        if st == 7 and cfg.tailst: stamp(a, 246, 1)
        if st == 11: raise_flag(0)
        if st == 11 and cfg.tailst: stamp(a, 246, 1)
    mk = a.mark()
    part_base(1)
    stamp(a, 246); stamp(a, 246, 1); dbg_stamp(a, 246)
    a.pad_since(mk, 8)
    PKs = [244, 192, 200, 208]
    for t in range(6):
        PK = PKs[t % 4]
        for o in store_tile(1, t, False): a.I(o)
    PK = 244
    raise_flag(1)
    stamp(a, 246, 1); dbg_stamp(a, 246)
    a.I(f"s_cmp_ge_u32 s{S_WAVE}, 6")
    a.I("s_cbranch_scc1 L_k1_end")
    a.I(f"s_mov_b32 s{sJ}, s{S_WAVE}")
    a.L("L_T_reduce")
    vB = 242
    a.I(f"v_lshlrev_b32 v{vB}, 4, v{vL}")
    a.I("s_load_dwordx2 s[58:59], s[0:1], 80")
    sFl = 51
    a.I(f"s_lshl_b32 s{sFl}, s{sG}, 3")
    a.I(f"s_add_u32 s{sFl}, s{sFl}, s{S_MJ}")
    a.I(f"s_lshl_b32 s{sFl}, s{sFl}, 7")
    a.I(f"v_lshlrev_b32 v2, 2, v{vL}")
    a.I(f"s_lshl_b32 s{sA}, s{sG}, 3")
    a.I(f"s_add_u32 s{sA}, s{sA}, s{S_MJ}")
    a.I(f"s_mul_i32 s{sA}, s{sA}, 98304")
    a.I(f"s_lshl_b32 s{sBq}, s{sJ}, 11")
    a.I(f"s_add_u32 s{sA}, s{sA}, s{sBq}")
    a.I("s_mov_b64 s[60:61], exec")
    a.I(f"s_mov_b32 s{sIt}, 0")
    a.I("s_mov_b32 s62, 0")
    for src in range(8):
        a.L(f"L_T_w{src}")
        a.I(f"s_bitcmp1_b32 s62, {src}")
        a.I(f"s_cbranch_scc1 L_T_h{src}")
        a.I("s_mov_b64 exec, 0xff")
        a.I(f"buffer_load_dword v3, v2, s[{SGO}:{SGO+3}], s{sFl} offen sc1")
        a.I("s_waitcnt vmcnt(0)")
        a.I("v_cmp_eq_u32 vcc, 1, v3")
        a.I(f"s_add_u32 s{sIt}, s{sIt}, 1")
        a.I("s_mov_b64 exec, s[60:61]")
        a.I("s_and_b32 s62, vcc_lo, 0xff")
        a.I(f"s_cmp_lt_u32 s{sIt}, 0x8000")
        a.I("s_cselect_b32 s62, s62, 0xff")
        a.I(f"s_bitcmp1_b32 s62, {src}")
        a.I(f"s_cbranch_scc1 L_T_h{src}")
        a.I("s_sleep 1")
        a.I(f"s_branch L_T_w{src}")
        a.L(f"L_T_h{src}")
        a.I(f"s_add_u32 s{sBq}, s{sA}, {src*12288}")
        a.I(f"buffer_load_dwordx4 {vr(8+src*8,4)}, v{vB}, s[{SPT}:{SPT+3}], s{sBq} offen{cfg.part_ld_pol}")
        a.I(f"buffer_load_dwordx4 {vr(8+src*8+4,4)}, v{vB}, s[{SPT}:{SPT+3}], s{sBq} offen offset:1024{cfg.part_ld_pol}")
    stamp(a, 246); stamp(a, 246, 1); dbg_stamp(a, 246)
    if cfg.pollcnt:
        a.I("s_load_dwordx2 s[84:85], s[0:1], 88")
        a.I("s_waitcnt lgkmcnt(0)")
        srd(a, 88, 84, 256)
        a.I(f"v_mov_b32 v4, s{sIt}")
        a.I("v_mov_b32 v5, 0")
        a.I("s_mov_b64 exec, 1")
        a.I("buffer_atomic_umax v4, v5, s[88:91], 0 offen offset:64")
        a.I("s_mov_b64 exec, s[60:61]")
    a.I("s_waitcnt lgkmcnt(0)")
    srd(a, SOUT, 58, 16*96*1024*2)
    a.I(f"s_lshl_b32 s{sBq}, s{sJ}, 4")
    a.I(f"s_mul_i32 s{sA}, s{S_B}, 96")
    a.I(f"s_add_u32 s{sA}, s{sA}, s{sBq}")
    a.I(f"s_lshl_b32 s{sA}, s{sA}, 11")
    a.I(f"s_lshl_b32 s{sBq}, s{S_P}, 10")
    a.I(f"s_add_u32 s{sA}, s{sA}, s{sBq}")
    a.I(f"s_lshl_b32 s{sBq}, s{S_MJ}, 7")
    a.I(f"s_add_u32 s{sA}, s{sA}, s{sBq}")
    a.I(f"v_and_b32 v2, 15, v{vL}")
    a.I("v_lshlrev_b32 v2, 11, v2")
    a.I(f"v_lshrrev_b32 v3, 4, v{vL}")
    a.I("v_lshl_add_u32 v2, v3, 3, v2")
    RA = 80
    for src in range(8):
        a.I(f"s_waitcnt vmcnt({14 - 2*src})")
        for d in range(8):
            r = 8 + src*8 + d
            if src == 0:
                a.I(f"v_lshlrev_b32 v{RA+2*d}, 16, v{r}")
                a.I(f"v_and_b32 v{RA+2*d+1}, 0xffff0000, v{r}")
            else:
                tp = 4 + 2*(d & 1)
                a.I(f"v_lshlrev_b32 v{tp}, 16, v{r}")
                a.I(f"v_and_b32 v{tp+1}, 0xffff0000, v{r}")
                a.I(f"v_pk_add_f32 {vr(RA+2*d,2)}, {vr(RA+2*d,2)}, {vr(tp,2)}")
    for d in range(8):
        a.I(f"v_cvt_pk_bf16_f32 v{8+d}, v{RA+2*d}, v{RA+2*d+1}")
    for e4 in range(4):
        a.I(f"buffer_store_dwordx2 v[{8+2*e4}:{9+2*e4}], v2, s[{SOUT}:{SOUT+3}], s{sA} offen offset:{e4*32}{cfg.out_pol}")
    a.I("s_waitcnt vmcnt(0)")
    stamp(a, 246); stamp(a, 246, 1); dbg_stamp(a, 246)
    a.I("s_waitcnt vmcnt(0)")
    a.L("L_k1_end")
    a.I("s_endpgm")

def gen_k2(a):
    a.I("s_cmp_ge_u32 s2, 256")
    a.I("s_cbranch_scc1 L_k2_end")
    a.I("s_load_dwordx2 s[4:5], s[0:1], 80")
    a.I("s_load_dwordx2 s[6:7], s[0:1], 96")
    if cfg.dbgst: a.I("s_memrealtime s[34:35]")
    a.I("v_lshrrev_b32 v1, 6, v0")
    a.I("v_and_b32 v0, 63, v0")
    a.I("v_readfirstlane_b32 s20, v1")
    a.I("s_waitcnt lgkmcnt(0)")
    srd(a, 8, 6, PART_BYTES)
    srd(a, 12, 4, 16*96*1024*2)
    a.I("s_mul_i32 s21, s2, 98304")
    a.I("s_lshl_b32 s22, s20, 11")
    a.I("s_add_u32 s21, s21, s22")
    a.I("v_lshlrev_b32 v1, 4, v0")
    for src in range(8):
        a.I(f"s_add_u32 s23, s21, {src*12288}")
        a.I(f"buffer_load_dwordx4 {vr(8+src*8,4)}, v1, s[8:11], s23 offen{cfg.part_ld_pol}")
        a.I(f"buffer_load_dwordx4 {vr(8+src*8+4,4)}, v1, s[8:11], s23 offen offset:1024{cfg.part_ld_pol}")
    a.I("s_lshr_b32 s24, s2, 3")
    a.I("s_and_b32 s25, s2, 7")
    a.I("s_and_b32 s26, s24, 15")
    a.I("s_lshr_b32 s27, s24, 4")
    a.I("s_lshr_b32 s28, s20, 1")
    a.I("s_and_b32 s29, s20, 1")
    a.I("s_mul_i32 s26, s26, 96")
    a.I("s_lshl_b32 s28, s28, 5")
    a.I("s_add_u32 s26, s26, s28")
    a.I("s_lshl_b32 s26, s26, 11")
    a.I("s_lshl_b32 s27, s27, 10")
    a.I("s_lshl_b32 s25, s25, 7")
    a.I("s_lshl_b32 s29, s29, 6")
    a.I("s_add_u32 s26, s26, s27")
    a.I("s_add_u32 s26, s26, s25")
    a.I("s_add_u32 s26, s26, s29")
    a.I("v_and_b32 v2, 31, v0")
    a.I("v_lshlrev_b32 v2, 11, v2")
    a.I("v_lshrrev_b32 v3, 5, v0")
    a.I("v_lshl_add_u32 v2, v3, 5, v2")
    ACC = 80
    for src in range(8):
        a.I(f"s_waitcnt vmcnt({14 - 2*src})")
        for d in range(8):
            r = 8 + src*8 + d
            if src == 0:
                a.I(f"v_lshlrev_b32 v{ACC+2*d}, 16, v{r}")
                a.I(f"v_and_b32 v{ACC+2*d+1}, 0xffff0000, v{r}")
            else:
                a.I(f"v_lshlrev_b32 v4, 16, v{r}")
                a.I(f"v_and_b32 v5, 0xffff0000, v{r}")
                a.I(f"v_add_f32 v{ACC+2*d}, v{ACC+2*d}, v4")
                a.I(f"v_add_f32 v{ACC+2*d+1}, v{ACC+2*d+1}, v5")
    for d in range(8):
        a.I(f"v_cvt_pk_bf16_f32 v{8+d}, v{ACC+2*d}, v{ACC+2*d+1}")
    a.I("buffer_store_dwordx4 v[8:11], v2, s[12:15], s26 offen")
    a.I("buffer_store_dwordx4 v[12:15], v2, s[12:15], s26 offen offset:16")
    a.I("s_waitcnt vmcnt(0)")
    if cfg.dbgst:
        a.I("s_cmp_lg_u32 s2, 0")
        a.I("s_cbranch_scc1 L_k2_end")
        a.I("s_cmp_lg_u32 s20, 0")
        a.I("s_cbranch_scc1 L_k2_end")
        a.I("s_memrealtime s[36:37]")
        a.I("s_load_dwordx2 s[30:31], s[0:1], 88")
        a.I("s_waitcnt lgkmcnt(0)")
        a.I(f"s_add_u32 s8, s6, {40<<20}")
        a.I("s_addc_u32 s9, s7, 0")
        a.I("s_and_b32 s9, s9, 0xffff")
        a.I("s_mov_b32 s10, 256")
        a.I("s_mov_b32 s11, 0x20000")
        a.I("s_mov_b32 s12, s30")
        a.I("s_and_b32 s13, s31, 0xffff")
        a.I("s_mov_b32 s14, 64")
        a.I("s_mov_b32 s15, 0x20000")
        a.I("v_lshlrev_b32 v1, 2, v0")
        a.I("buffer_load_dword v2, v1, s[8:11], 0 offen sc1")
        a.I("s_waitcnt vmcnt(0)")
        a.I("v_mov_b32 v3, s34")
        a.I("v_cmp_eq_u32 vcc, 14, v0")
        a.I("s_nop 1")
        a.I("v_cndmask_b32 v2, v2, v3, vcc")
        a.I("v_mov_b32 v3, s36")
        a.I("v_cmp_eq_u32 vcc, 15, v0")
        a.I("s_nop 1")
        a.I("v_cndmask_b32 v2, v2, v3, vcc")
        a.I("buffer_store_dword v2, v1, s[12:15], 0 offen")
        a.I("s_waitcnt vmcnt(0)")
    a.L("L_k2_end")
    a.I("s_endpgm")

def kd(a, name, vgpr, sgpr):
    a.raw('.section .rodata,"a"')
    a.raw(".p2align 6")
    a.raw(f".amdhsa_kernel {name}")
    a.raw(f"  .amdhsa_next_free_vgpr {vgpr}")
    a.raw(f"  .amdhsa_next_free_sgpr {sgpr}")
    a.raw(f"  .amdhsa_accum_offset {(vgpr+3)//4*4}")
    a.raw("  .amdhsa_group_segment_fixed_size 0")
    a.raw("  .amdhsa_kernarg_size 104")
    a.raw("  .amdhsa_user_sgpr_count 2")
    a.raw("  .amdhsa_user_sgpr_kernarg_segment_ptr 1")
    a.raw("  .amdhsa_system_sgpr_workgroup_id_x 1")
    a.raw(".end_amdhsa_kernel")

HEADER = """
Fused Q-projection + attention + out-projection for both problems, one workgroup per CU (256 workgroups x 8 waves).
Workgroup (xcd = id&7, slot = id>>3): problem p = xcd>>2, batch b = slot>>1, heads 4*mj .. 4*mj+3 with mj = (xcd&3)*2 + (slot&1).
Waves 0-2 (A): attention for one 32-row q tile, software pipelined QK(T) | softmax(T-1) | PV(T-2), lazy running max
  (rescale only when a score exceeds the reference max by more than 2^8; exact power-of-two factors).
Waves 4-6 (G): Q projection of the next head (x fragments stay in registers, wq streamed through LDS), scaled by log2(e)/sqrt(128).
Waves 3,7: LDS-DMA loaders for K / V / wq.  One s_barrier per 32-key step.
Tail: waves 4-7 multiply the four normalised O tiles (kept in LDS) with wo (two passes of 64 columns per wave), waves 0-3 stream wo.
  The bf16 partial sums of the 8 workgroups of one (p, b) meet in d_ws (write-through stores, per-wave flags that each workgroup
  clears itself; d_debug counts the workgroups that have cleared theirs), each workgroup reduces one 64-column slice into d_out.
Generated by a hand-written Python scheduler (gen16.py); every instruction sequence is hand-designed.
"""

def build():
    a = Asm()
    global K1
    if cfg.fused:
        K1 = NAME + "_kernel"
        a.raw(f"; @launch grid=(256,1,1) block=(512,1,1) lds={LDS_BYTES}")
        for ln in HEADER.strip("\n").split("\n"): a.raw("; " + ln)
    else:
        a.raw(f"; @launch kernel={K1} grid=(256,1,1) block=(512,1,1) lds={LDS_BYTES}")
        a.raw(f"; @launch kernel={K2} grid=(256,1,1) block=(384,1,1) lds=0")
    a.raw('.amdgcn_target "amdgcn-amd-amdhsa--gfx950"')
    a.raw(".text")
    a.raw(f".globl {K1}")
    a.raw(".p2align 8")
    a.raw(f".type {K1},@function")
    a.L(K1)
    setup_common(a)
    gen_loader(a, True)
    gen_loader(a, False)
    gen_G(a)
    gen_A(a)
    gen_tail(a)
    if not cfg.fused:
        a.raw(f".globl {K2}")
        a.raw(".p2align 8")
        a.raw(f".type {K2},@function")
        a.L(K2)
        gen_k2(a)
    kd(a, K1, 256, 102 if (cfg.stamps or cfg.dbgst) else (96 if cfg.pollcnt else 84))
    if not cfg.fused:
        a.raw(".text")
        kd(a, K2, 96, 40)
    return a

if __name__ == "__main__":
    for arg in sys.argv[2:]:
        k, v = arg.split("=", 1)
        cur = getattr(cfg, k)
        if isinstance(cur, bool): v = v in ("1", "True", "true")
        elif isinstance(cur, int): v = int(v)
        elif isinstance(cur, float): v = float(v)
        else: v = v.replace("_", " ")
        setattr(cfg, k, v)
    a = build()
    out = sys.argv[1] if len(sys.argv) > 1 else f"cdna_kernels/{NAME}.s"
    open(out, "w").write(a.text())
    probs = check_file(a.lines)
    for p in probs: print("HAZARD", p)
    print("wrote", out, len(a.lines), "lines;", len(probs), "hazard reports")
```
